```python
import torch

def _softmax(x, axis=-1):
    return torch.softmax(x, dim=axis)
def _gelu(x):
    return torch.nn.functional.gelu(x, approximate="tanh")
def _silu(x):
    return torch.nn.functional.silu(x)
def _sigmoid(x):
    return torch.sigmoid(x)
def _layernorm(x, axis=-1, eps=1e-5):
    m = x.mean(dim=axis, keepdim=True)
    v = x.var(dim=axis, keepdim=True, unbiased=False)
    return (x - m) / torch.sqrt(v + eps)
def _scatter_add(tgt, idx, src, axis=0):
    return tgt.clone().index_add_(axis, idx, src)
def _segment_sum(src, seg, n):
    out = torch.zeros((n,) + src.shape[1:], dtype=src.dtype)
    return out.index_add_(0, seg, src)
def _pad(x, pw):
    flat = tuple(v for pair in reversed(pw) for v in pair)
    return torch.nn.functional.pad(x, flat)

kernel_name = 'sequential_preLN__compressed_kv_cla__glu_gated_swiglu__prompt'

def setup_inputs():

    _w = (lambda a: (lambda t: t.to(torch.bfloat16) if t.is_floating_point() else t)(torch.as_tensor(a)))
    def _A_setup():
        B, H, Sq, Sk, D, M = 1, 16, 2048, 2048, 256, 448
        Dc = 4 * D
        return {
            "x": _w((lambda *s: torch.randn(*s, dtype=torch.bfloat16) * 0.05)(B, Sq, M)),
            "c_kv": _w((lambda *s: torch.randn(*s, dtype=torch.bfloat16) * 0.4)(B, Sk, Dc)),
            "w_q": _w((lambda *s: torch.randn(*s, dtype=torch.bfloat16) * 1.6)(M, H, D) * (M ** -0.5)),
            "w_uk": _w((lambda *s: torch.randn(*s, dtype=torch.bfloat16) * 1.6)(Dc, H, D) * (Dc ** -0.5)),
            "w_uv": _w((lambda *s: torch.randn(*s, dtype=torch.bfloat16) * 0.4)(Dc, H, D) * (Dc ** -0.5)),
            "w_o": _w((lambda *s: torch.randn(*s, dtype=torch.bfloat16) * 0.4)(H, D, M) * ((H * D) ** -0.5)),
        }
    _A_in = _A_setup()

    def _B_setup():
        B, S, D, F = 1, 2048, 448, 1792
        return {
            "x": _w((lambda *s: torch.randn(*s, dtype=torch.bfloat16) * 0.05)(B, S, D)),
            "w1": _w((lambda *s: torch.randn(*s, dtype=torch.bfloat16) * 0.2)(D, F) * (2.0 / D) ** 0.5),
            "w3": _w((lambda *s: torch.randn(*s, dtype=torch.bfloat16) * 0.2)(D, F) * (2.0 / D) ** 0.5),
            "w2": _w((lambda *s: torch.randn(*s, dtype=torch.bfloat16) * 0.2)(F, D) * (2.0 / F) ** 0.5),
        }
    _B_in = _B_setup()

    return {
        "A_x": _A_in["x"],
        "A_c_kv": _A_in["c_kv"],
        "A_w_q": _A_in["w_q"],
        "A_w_uk": _A_in["w_uk"],
        "A_w_uv": _A_in["w_uv"],
        "A_w_o": _A_in["w_o"],
        "B_x": _B_in["x"],
        "B_w1": _B_in["w1"],
        "B_w3": _B_in["w3"],
        "B_w2": _B_in["w2"],
    }

def reference(A_x, A_c_kv, A_w_q, A_w_uk, A_w_uv, A_w_o, B_x, B_w1, B_w3, B_w2):
    def _A_ref(x, c_kv, w_q, w_uk, w_uv, w_o):
        B, Sq, M = x.shape[0], x.shape[1], x.shape[2]
        Sk = c_kv.shape[1]
        H, D = w_q.shape[1], w_q.shape[2]
        q = torch.einsum("bqm,mhd->bhqd", x, w_q)
        k = torch.einsum("bkc,chd->bhkd", c_kv, w_uk)
        v = torch.einsum("bkc,chd->bhkd", c_kv, w_uv)
        scores = torch.einsum("bhqd,bhkd->bhqk", q, k) * (D ** -0.5)
        off = Sk - Sq
        qi = torch.arange(Sq)[:, None]
        kj = torch.arange(Sk)[None, :]
        cmask = kj <= (qi + off)
        scores = torch.where(cmask[None, None], scores, -1e9)
        p = _softmax(scores, axis=-1)
        ctx = torch.einsum("bhqk,bhkd->bhqd", p, v)
        return torch.einsum("bhqd,hdm->bqm", ctx, w_o)

    def _B_ref(x, w1, w3, w2):
        gate = torch.einsum("bsd,df->bsf", x, w1)
        up = torch.einsum("bsd,df->bsf", x, w3)
        h = _silu(gate) * up
        out = torch.einsum("bsf,fd->bsd", h, w2)
        return out

    x = A_x
    h = x + _A_ref(_layernorm(x, axis=-1), A_c_kv, A_w_q, A_w_uk, A_w_uv, A_w_o)
    h2 = h + _B_ref(_layernorm(h, axis=-1), B_w1, B_w3, B_w2)
    return h2
```

```python
NAME = "sequential_preLN__compressed_kv_cla__glu_gated_swiglu__prompt"

class Asm:
    def __init__(self):
        self.lines = []
        self.uid = 0
    def __call__(self, s=""):
        for l in s.split("\n"):
            self.lines.append("    " + l.strip() if l.strip() and not l.strip().endswith(":") else l.strip())
    def label(self, name):
        self.lines.append(name + ":")
    def newlabel(self, base="L"):
        self.uid += 1
        return "%s_%d" % (base, self.uid)
    def comment(self, s):
        self.lines.append("    ; " + s)
    def text(self):
        return "\n".join(self.lines) + "\n"

def kernel_header(name):
    return (".text\n.globl %s\n.p2align 8\n.type %s,@function\n%s:\n" % (name, name, name))

def kernel_desc(name, vgpr, sgpr, accum, wgy=False):
    s = ".section .rodata,\"a\"\n.p2align 6\n.amdhsa_kernel %s\n" % name
    s += "  .amdhsa_next_free_vgpr %d\n  .amdhsa_next_free_sgpr %d\n  .amdhsa_accum_offset %d\n" % (vgpr, sgpr, accum)
    s += "  .amdhsa_group_segment_fixed_size 0\n  .amdhsa_kernarg_size 104\n"
    s += "  .amdhsa_user_sgpr_count 2\n  .amdhsa_user_sgpr_kernarg_segment_ptr 1\n"
    s += "  .amdhsa_system_sgpr_workgroup_id_x 1\n"
    if wgy:
        s += "  .amdhsa_system_sgpr_workgroup_id_y 1\n"
    s += "  .amdhsa_float_denorm_mode_32 3\n  .amdhsa_float_denorm_mode_16_64 3\n"
    s += ".end_amdhsa_kernel\n"
    return s

def build_file(kernels, header_comments=""):
    out = header_comments
    for k in kernels:
        out += "; @launch kernel=%s grid=(%d,%d,%d) block=(%d,%d,%d) lds=%d\n" % (
            k["name"], *k["grid"], *k["block"], k["lds"])
    out += ".amdgcn_target \"amdgcn-amd-amdhsa--gfx950\"\n"
    seen = set()
    for k in kernels:
        if k["name"] in seen: continue
        seen.add(k["name"])
        out += kernel_header(k["name"]) + k["body"] + "\n"
    seen = set()
    for k in kernels:
        if k["name"] in seen: continue
        seen.add(k["name"])
        out += kernel_desc(k["name"], k["vgpr"], k["sgpr"], k["accum"], k.get("wgy", False))
    return out
```

```python
from common import *
from p0 import f2u

V_DMA, V_RDK, V_RDV, V_TABK, V_TABV = 4, 5, 6, 7, 8
V_T = 9
V_NEGM, V_L, V_TS = 16, 18, 20
V_T2 = 22
V_S = [32, 48]; V_P = [64, 72]; V_E = 80; V_C = 96; V_X = 112
V_O = 128
A_CTX = 0; A_SP = 64; A_Q = 128; A_F = 192
S_G3, S_END, S_WQ, S_KO, S_VO = 20, 21, 22, 23, 24
S_RET, S_RET2 = 26, 28
S_MASK = 70
S_HEAD, S_I, S_ROLE, S_QB = 30, 31, 32, 33
S_N1, S_N2, S_ST = 34, 35, 36
S_THR = 37
NEG = 0xff7fffff - 0x00400000
XA = 36
EXP = set()
DMAFL = ""

def St(buf, kb, qb): return V_S[buf] + 4 * (2 * kb + qb)
def Ct(kb, qb): return V_C + 4 * (2 * kb + qb)
def Ot(db, qb): return V_O + 4 * (2 * db + qb)
def Fr(n): return ar(A_F + 4 * (n % 16))
def Qf(qb, s): return ar(A_Q + 4 * (8 * qb + s))
def MF(d, a_, b_, c): return "v_mfma_f32_16x16x32_bf16 %s, %s, %s, %s" % (d, a_, b_, c)

class Sched:
    def __init__(self, mf):
        self.mf = mf
        self.items = {g: [] for g in range(-1, 64)}
        self.tail = {g: [] for g in range(-1, 64)}
        self.free = {g: (2 if (g >= 0 and mf[g] is not None) else 99) for g in range(-1, 64)}
    def at(self, g, s, cost=1, last=False):
        (self.tail if last else self.items)[g].append(s)
        self.free[g] -= cost
    def flow(self, stream, g0, g1):
        tot = sum(c for _, c in stream)
        cap = sum(max(0, min(self.free[g], 2)) for g in range(g0, g1 + 1))
        g = g0; used = 0.0; done = 0
        capacc = 0
        pos = g0
        for s, c in stream:
            while pos < g1:
                if self.free[pos] >= c:
                    frac_pos = (pos - g0) / float(g1 - g0 + 1)
                    if frac_pos + 1e-9 >= done / float(tot) - 0.06: break
                pos += 1
            self.at(pos, s, c)
            done += c
    def emit(self, a0):
        def a(s):
            if "nodma" in EXP and " lds" in s and s.startswith("buffer_load"): return
            if "halfdma" in EXP and " lds" in s and s.startswith("buffer_load") and ("offset:1024" in s or "offset:3072" in s): return
            if "nosm" in EXP and s.split()[0] in ("v_exp_f32", "v_add_f32", "v_cvt_pk_bf16_f32", "v_max_f32", "v_cmp_lt_f32", "s_cbranch_vccnz"): return
            if "nobr" in EXP and s.split()[0] in ("s_cbranch_vccnz",): return
            if "nobar" in EXP and s == "s_barrier": return
            if "novm" in EXP and s.startswith("s_waitcnt vmcnt"): s = "s_waitcnt lgkmcnt(4)"
            if "nord" in EXP and s.startswith("ds_read"): return
            a0(s)
        for g in range(-1, 64):
            if g >= 0 and self.mf[g] is not None: a(self.mf[g])
            for s in self.items[g]: a(s)
            for s in self.tail[g]: a(s)
    def overflow(self):
        return sum(-f for f in self.free.values() if f < 0)

def ring_fixed(sc, p, useK=True, useV=True, vm=12, loop=None):
    out = [0, 0, 0, 0, 1, 1, 1, 1]
    def wait_for(grp):
        if grp not in out: return None
        idx = max(i for i, x in enumerate(out) if x == grp)
        n = len(out) - 1 - idx
        del out[:idx + 1]
        return n
    for gam in range(8):
        need = (gam < 4 and useK) or (gam >= 4 and useV)
        n = wait_for(gam) if need else None
        if gam == 0 and not useK:
            n = 0; del out[:]
        if gam == 6:
            sc.at(47, "s_waitcnt vmcnt(%d)%s" % (vm, "" if n is None else " lgkmcnt(%d)" % n), last=True)
            sc.at(47, "s_barrier", last=True)
        elif n is not None:
            sc.at(8 * gam - 1, "s_waitcnt lgkmcnt(%d)" % n, last=True)
        t = gam + 2
        for k in range(4):
            if t < 4:
                if not useK: continue
                s = "ds_read_b128 %s, v%d offset:%d" % (Fr(4 * t + k), V_RDK, p * 16384 + (4 * t + k) * 1024)
            elif t < 8:
                if not useV: continue
                s = "ds_read_b128 %s, v%d offset:%d" % (Fr(4 * t + k), V_RDV, p * 16384 + (4 * (t - 4) + k) * 1024)
            else:
                s = "ds_read_b128 %s, v%d offset:%d" % (Fr(4 * t + k), V_RDK, (1 - p) * 16384 + (4 * (t - 8) + k) * 1024)
            sc.at(8 * gam + 2 * k, s)
            out.append(t % 8 if t >= 8 else t)
            if t >= 8: out[-1] = 100 + t
    nomf0 = sc.mf[0] is None
    nomf1 = sc.mf[63] is None
    if p == 1:
        sc.at(0, "s_xor_b32 s%d, s%d, 0x8000" % (S_WQ, S_WQ))
        sc.at(18, "v_xor_b32 v%d, 0x8000, v%d" % (V_RDK, V_RDK))
        sc.at(50, "v_xor_b32 v%d, 0x8000, v%d" % (V_RDV, V_RDV))
    sc.at(1, "v_readlane_b32 s%d, v%d, s%d" % (S_KO, V_TABK, S_G3))
    sc.at(1, "s_add_u32 m0, s%d, %d" % (S_WQ, (1 - p) * 16384))
    if nomf0: sc.at(1, "s_nop 4")
    for k, g in enumerate((4, 10, 16, 22)):
        sc.at(g, "buffer_load_dwordx4 v%d, s[12:15], s%d offen offset:%d lds%s" % (V_DMA, S_KO, k * 1024, DMAFL))
    sc.at(42, "v_readlane_b32 s%d, v%d, s%d" % (S_VO, V_TABV, S_G3))
    sc.at(44, "s_add_u32 m0, s%d, %d" % (S_WQ, (1 - p) * 16384 + 65536))
    if nomf1: sc.at(44, "s_nop 4")
    for k, g in enumerate((48, 52, 56, 60)):
        sc.at(g, "buffer_load_dwordx4 v%d, s[12:15], s%d offen offset:%d lds%s" % (V_DMA, S_VO, k * 1024, DMAFL))
    sc.at(61, "s_add_u32 s%d, s%d, 1" % (S_G3, S_G3))
    if loop:
        sc.at(62, "s_cmp_eq_u32 s%d, s%d" % (S_G3, S_END), last=True)
        sc.at(63, loop, last=True)
    sc.free[63] -= 1

def ring_restart(a, p):
    a("v_mov_b32 v%d, v1" % V_RDK)
    a("v_add_u32 v%d, 0x10000, v1" % V_RDV)
    a("s_lshl_b32 s%d, s66, 12" % S_WQ)
    a("s_sub_u32 s3, s%d, 3" % S_G3)
    for k in range(3):
        slot = p + k
        a("v_readlane_b32 s%d, v%d, s3" % (S_KO, V_TABK))
        a("v_readlane_b32 s%d, v%d, s3" % (S_VO, V_TABV))
        a("s_add_u32 m0, s%d, %d" % (S_WQ, slot * 16384))
        a("s_add_u32 s3, s3, 1")
        a("s_nop 2")
        for j in range(4): a("buffer_load_dwordx4 v%d, s[12:15], s%d offen offset:%d lds%s" % (V_DMA, S_KO, j * 1024, DMAFL))
        a("s_add_u32 m0, s%d, %d" % (S_WQ, slot * 16384 + 65536))
        a("s_nop 0")
        for j in range(4): a("buffer_load_dwordx4 v%d, s[12:15], s%d offen offset:%d lds%s" % (V_DMA, S_VO, j * 1024, DMAFL))
    a("s_xor_b32 s%d, s%d, 0x8000" % (S_WQ, S_WQ))

def ring_first_reads(a, p):
    for n in range(8):
        a("ds_read_b128 %s, v%d offset:%d" % (Fr(n), V_RDK, p * 16384 + n * 1024))

def sm_part(buf, kb, ordered=False):
    ex, rest, mix = [], [], []
    for qb in range(2):
        s = St(buf, kb, qb); e = V_E + 8 * kb + 4 * qb; ts = V_TS + qb; P = V_P[buf] + 4 * qb + 2 * kb
        X = [("v_exp_f32 v%d, v%d" % (e + j, s + j), 2) for j in range(4)]
        if kb == 0:
            A = [("v_add_f32 v%d, v%d, v%d" % (ts, e, e + 1), 1)]
        else:
            A = [("v_add_f32 v%d, v%d, v%d" % (ts, ts, e), 1), ("v_add_f32 v%d, v%d, v%d" % (ts, ts, e + 1), 1)]
        B = [("v_add_f32 v%d, v%d, v%d" % (ts, ts, e + 2), 1), ("v_add_f32 v%d, v%d, v%d" % (ts, ts, e + 3), 1)]
        C = [("v_cvt_pk_bf16_f32 v%d, v%d, v%d" % (P, e, e + 1), 1), ("v_cvt_pk_bf16_f32 v%d, v%d, v%d" % (P + 1, e + 2, e + 3), 1)]
        ex += X; rest += A + [C[0]] + B + [C[1]]
        mix.append((X, A, B, C))
    if ordered: return ex + rest
    (X0, A0, B0, C0), (X1, A1, B1, C1) = mix
    return [X0[0], X0[1], X0[2]] + A0 + [C0[0], X0[3], X1[0], B0[0], B0[1], C0[1], X1[1], X1[2]] + A1 + [C1[0], X1[3], B1[0]] + [B1[1], C1[1]]

def qk_mfmas(buf):
    mf = []
    for kb in range(2):
        for s in range(8):
            for qb in range(2):
                d = vr(St(buf, kb, qb))
                mf.append(MF(d, Fr(8 * kb + s), Qf(qb, s), vr(Ct(kb, qb)) if s == 0 else d))
    return mf
def pv_mfmas(buf):
    mf = []
    for db in range(16):
        for qb in range(2):
            d = vr(Ot(db, qb))
            mf.append(MF(d, Fr(16 + db), vr(V_P[buf] + 4 * qb), d))
    return mf

def check_items():
    return [("v_max_f32 v%d, v%d, v%d" % (V_T, V_TS, V_TS + 1), 1), ("v_cmp_lt_f32 vcc, s%d, v%d" % (S_THR, V_T), 1)]
def lacc_items():
    return [("v_add_f32 v%d, v%d, v%d" % (V_L + qb, V_L + qb, V_TS + qb), 1) for qb in range(2)]

def body_full(a, p, loop, stubs):
    sc = Sched(qk_mfmas(p) + pv_mfmas(1 - p))
    ring_fixed(sc, p, loop=loop)
    back = "AT_full%d_back" % p
    sc.at(31, "s_cbranch_vccnz AT_full%d_stub" % p, last=False)
    sc.at(31, back + ":", cost=0)
    stubs.append(("AT_full%d_stub" % p, p, back))
    sc.flow(sm_part(1 - p, 1) + check_items(), 0, 29)
    sc.flow(lacc_items() + sm_part(p, 0), 32, 63)
    sc.emit(a)
    return sc.overflow()

def body_pvlast(a, p, stubs):
    sc = Sched([None] * 32 + pv_mfmas(1 - p))
    ring_fixed(sc, p, useK=False)
    back = "AT_pv%d_back" % p
    for s, c in sm_part(1 - p, 1, ordered=True) + check_items(): sc.at(30, s, c)
    sc.at(30, "s_nop 2")
    sc.at(31, "s_cbranch_vccnz AT_pv%d_stub" % p)
    sc.at(31, back + ":", cost=0)
    stubs.append(("AT_pv%d_stub" % p, p, back))
    sc.flow(lacc_items(), 33, 40)
    sc.emit(a)

def body_qkfirst(a, p):
    sc = Sched(qk_mfmas(p) + [None] * 32)
    ring_fixed(sc, p, useV=False)
    z = [("v_mov_b64 %s, 0" % vr(V_O + 2 * k, 2), 1) for k in range(64)]
    sc.flow(z[:36], 0, 31)
    t = Asm()
    for s, c in z[36:]: t(s)
    for qb in range(2):
        m = V_T + qb
        s0, s1 = St(p, 0, qb), St(p, 1, qb)
        t("v_max3_f32 v%d, v%d, v%d, v%d" % (m, s0, s0 + 1, s0 + 2))
        t("v_max3_f32 v%d, v%d, v%d, v%d" % (m, m, s0 + 3, s1))
        t("v_max3_f32 v%d, v%d, v%d, v%d" % (m, m, s1 + 1, s1 + 2))
        t("v_max_f32 v%d, v%d, v%d" % (m, m, s1 + 3))
        xlane_reduce(t, "v_max_f32", m, V_T + 2)
        t("v_sub_f32 v%d, 0, v%d" % (V_NEGM + qb, m))
        t("v_mov_b32 v%d, 0" % (V_L + qb))
        for kb in range(2):
            for j in range(4):
                t("v_sub_f32 v%d, v%d, v%d" % (St(p, kb, qb) + j, St(p, kb, qb) + j, m))
                t("v_mov_b32 v%d, v%d" % (Ct(kb, qb) + j, V_NEGM + qb))
    for s, c in sm_part(p, 0, ordered=True): t(s)
    for l in t.lines: sc.at(33, l.strip())
    sc.emit(a)

def body_idle(a, p, loop):
    sc = Sched([None] * 64)
    ring_fixed(sc, p, useK=False, useV=False, loop=loop)
    sc.emit(a)

def rescale_sub(a, p):
    cur, nxt = 1 - p, p
    a.label("AT_rescale%d" % p)
    a("s_nop 7")
    for qb in range(2):
        m = V_T; f = V_T + 1
        s0, s1 = St(cur, 0, qb), St(cur, 1, qb)
        a("v_max3_f32 v%d, v%d, v%d, v%d" % (m, s0, s0 + 1, s0 + 2))
        a("v_max3_f32 v%d, v%d, v%d, v%d" % (m, m, s0 + 3, s1))
        a("v_max3_f32 v%d, v%d, v%d, v%d" % (m, m, s1 + 1, s1 + 2))
        a("v_max3_f32 v%d, v%d, v%d, 0" % (m, m, s1 + 3))
        xlane_reduce(a, "v_max_f32", m, V_T + 2)
        a("v_exp_f32 v%d, -v%d" % (f, m))
        a("v_sub_f32 v%d, v%d, v%d" % (V_NEGM + qb, V_NEGM + qb, m))
        a("v_mul_f32 v%d, v%d, v%d" % (V_L + qb, V_L + qb, f))
        for kb in range(2):
            for j in range(4):
                for r in (St(cur, kb, qb), St(nxt, kb, qb), Ct(kb, qb)):
                    a("v_sub_f32 v%d, v%d, v%d" % (r + j, r + j, m))
        for db in range(16):
            for j in range(4):
                a("v_mul_f32 v%d, v%d, v%d" % (Ot(db, qb) + j, Ot(db, qb) + j, f))
    for kb in range(2):
        for s, c in sm_part(cur, kb, ordered=True): a(s)
    a("s_nop 1")
    a("s_setpc_b64 s[%d:%d]" % (S_RET2, S_RET2 + 1))

def op_acc(buf, e, qb): return V_O + 32 * buf + 4 * (2 * e + qb)
def op_flush_items(buf):
    it = []
    for qb in range(2):
        for sp in range(2):
            r = V_S[0] + 4 * (2 * qb + sp)
            for d in range(4):
                j = 2 * sp + (d >> 1); e = 2 * (d & 1)
                it.append(("v_cvt_pk_bf16_f32 v%d, v%d, v%d" % (r + d, op_acc(buf, e, qb) + j, op_acc(buf, e + 1, qb) + j), 1))
            it.append(("buffer_store_dwordx4 %s, v%d, s[12:15], s%d offen offset:%d sc1" % (vr(r), V_T2 + qb, S_ST, sp * 1024), 1))
    return it
def body_oproj(a, p, loop):
    mf = []
    for s in range(8):
        for e in range(4):
            for qb in range(2):
                d = vr(op_acc(p, e, qb))
                mf.append(MF(d, Fr(4 * s + e), ar(A_CTX + 4 * (8 * qb + s)), "0" if s == 0 else d))
    sc = Sched(mf)
    ring_fixed(sc, p, vm=16, loop=loop)
    sc.flow(op_flush_items(1 - p), 5, 40)
    sc.at(45, "s_mov_b32 s%d, s38" % S_ST)
    sc.at(45, "s_add_u32 s38, s38, 2048")
    sc.emit(a)

def subroutines(a):
    stubs = []
    ret = "s_setpc_b64 s[%d:%d]" % (S_RET, S_RET + 1)
    def looped(name, fn):
        a.label("AT_%s" % name)
        a("s_bitcmp1_b32 s%d, 0" % S_G3)
        a("s_cbranch_scc0 AT_%s_odd" % name)
        a(".p2align 4")
        a.label("AT_%s_even" % name)
        fn(0, "s_cbranch_scc1 AT_%s_ret" % name)
        a.label("AT_%s_odd" % name)
        fn(1, "s_cbranch_scc0 AT_%s_even" % name)
        a.label("AT_%s_ret" % name)
        a(ret)
    def single(name, fn):
        a.label("AT_%s" % name)
        a("s_bitcmp1_b32 s%d, 0" % S_G3)
        a("s_cbranch_scc0 AT_%s_odd" % name)
        fn(0); a(ret)
        a.label("AT_%s_odd" % name)
        fn(1); a(ret)
    looped("full", lambda p, l: print("full overflow", body_full(a, p, l, stubs)))
    looped("idle", lambda p, l: body_idle(a, p, l))
    looped("oproj", lambda p, l: body_oproj(a, p, l))
    single("qkfirst", lambda p: body_qkfirst(a, p))
    single("pvlast", lambda p: body_pvlast(a, p, stubs))
    for lab, p, back in stubs:
        a.label(lab)
        a("s_call_b64 s[%d:%d], AT_rescale%d" % (S_RET2, S_RET2 + 1, p))
        a("s_branch %s" % back)
    rescale_sub(a, 0); rescale_sub(a, 1)

def call(a, name): a("s_call_b64 s[%d:%d], AT_%s" % (S_RET, S_RET + 1, name))
def run_n(a, name, cnt):
    sk = a.newlabel("skip")
    a("s_cmp_lt_i32 s%d, 1" % cnt)
    a("s_cbranch_scc1 %s" % sk)
    a("s_add_u32 s%d, s%d, s%d" % (S_END, S_G3, cnt))
    call(a, name)
    a.label(sk)

def cinit(a, masked, zero):
    if masked:
        a("v_mov_b32 v%d, 0x%x" % (V_T, NEG))
    for kb in range(2):
        for qb in range(2):
            base = "0" if zero else "v%d" % (V_NEGM + qb)
            for j in range(4):
                r = Ct(kb, qb) + j
                if masked and kb == qb:
                    a("v_cndmask_b32 v%d, %s, v%d, s[%d:%d]" % (r, base, V_T, S_MASK + 2 * j, S_MASK + 2 * j + 1))
                elif masked and kb > qb:
                    a("v_mov_b32 v%d, v%d" % (r, V_T))
                elif zero:
                    a("v_mov_b32 v%d, 0" % r)
    a("s_nop 1")

def sgemm1(a, p0, xfrag, vm=12):
    for c in range(7):
        p = (p0 + c) & 1
        mf = []
        for h in range(2):
            s = 2 * c + h
            for n in range(16):
                for qb in range(2):
                    d = vr(Ot(n, qb))
                    mf.append(MF(d, Fr(16 * h + n), xfrag(qb, s), "0" if s == 0 else d))
        sc = Sched(mf)
        ring_fixed(sc, p, vm=vm)
        sc.emit(a)

def tab_seg(a, start, baseK, baseV, stride, cntK, lagV, first=False):
    t = V_T
    a("v_subrev_u32 v%d, %s, v2" % (t, start))
    a("v_min_i32 v%d, %s, v%d" % (t + 1, cntK, t))
    a("v_subrev_u32 v%d, %d, v%d" % (t + 2, lagV, t))
    a("v_max_i32 v%d, 0, v%d" % (t + 2, t + 2))
    a("v_min_i32 v%d, %s, v%d" % (t + 2, cntK, t + 2))
    a("v_mul_i32_i24 v%d, %d, v%d" % (t + 1, stride, t + 1))
    a("v_mul_i32_i24 v%d, %d, v%d" % (t + 2, stride, t + 2))
    a("v_add_u32 v%d, %s, v%d" % (t + 1, baseK, t + 1))
    a("v_add_u32 v%d, %s, v%d" % (t + 2, baseV, t + 2))
    if first:
        a("v_mov_b32 v%d, v%d" % (V_TABK, t + 1))
        a("v_mov_b32 v%d, v%d" % (V_TABV, t + 2))
    else:
        a("v_cmp_le_i32 vcc, 0, v%d" % t)
        a("s_nop 1")
        a("v_cndmask_b32 v%d, v%d, v%d, vcc" % (V_TABK, V_TABK, t + 1))
        a("v_cndmask_b32 v%d, v%d, v%d, vcc" % (V_TABV, V_TABV, t + 2))

def roles(a):
    a("s_and_b32 s3, s68, 1")
    a("s_lshl_b32 s%d, s67, 1" % S_HEAD)
    a("s_add_u32 s%d, s%d, s3" % (S_HEAD, S_HEAD))
    a("s_bfe_u32 s%d, s68, 0x30001" % S_I)
    a("s_lshr_b32 s%d, s68, 4" % S_ROLE)
    a("s_sub_u32 s3, 15, s%d" % S_I)
    a("s_cmp_eq_u32 s%d, 1" % S_ROLE)
    a("s_cselect_b32 s%d, s3, s%d" % (S_QB, S_I))
    a("s_lshl_b32 s3, s%d, 2" % S_I)
    a("s_add_u32 s%d, s3, 4" % S_N1)
    a("s_sub_u32 s%d, %d, s3" % (S_N2, 64 - XA))
    a("s_cmp_eq_u32 s%d, 1" % S_ROLE)
    a("s_cselect_b32 s%d, %d, s%d" % (S_N1, XA, S_N1))
    a("s_cselect_b32 s%d, 0, s%d" % (S_N2, S_N2))
    a("s_mov_b32 s%d, 0x%x" % (S_THR, f2u(65536.0)))
    a("s_lshl_b32 s3, s66, 12")
    a("v_add_u32 v%d, s3, v1" % V_DMA)
    a("s_mul_i32 s38, s%d, %d" % (S_HEAD, WBLK))
    a("s_add_u32 s25, s38, %d" % WQP)
    a("s_add_u32 s39, s25, 16384")
    tab_seg(a, "0", "s25", "s39", 32768, "6", 0, first=True)
    a("s_lshl_b32 s25, s%d, 21" % S_HEAD)
    a("s_add_u32 s25, s25, %d" % KV)
    a("s_add_u32 s39, s25, 16384")
    a("s_sub_u32 s3, s%d, 1" % S_N1)
    tab_seg(a, "7", "s25", "s39", 32768, "s3", 1)
    a("s_lshl_b32 s3, s%d, 2" % S_I)
    a("s_sub_u32 s3, 63, s3")
    a("s_lshl_b32 s3, s3, 15")
    a("s_add_u32 s25, s25, s3")
    a("s_add_u32 s39, s25, 16384")
    a("s_sub_u32 s3, s%d, 1" % S_N2)
    a("s_add_u32 s69, s%d, 8" % S_N1)
    tab_seg(a, "s69", "s25", "s39", -32768, "s3", 1)
    a("s_add_u32 s3, s%d, 1" % S_N2)
    a("s_cmp_eq_u32 s%d, 0" % S_N2)
    a("s_cselect_b32 s3, 0, s3")
    a("s_add_u32 s69, s69, s3")
    a("s_add_u32 s25, s38, %d" % WOP)
    a("s_add_u32 s39, s25, 16384")
    tab_seg(a, "s69", "s25", "s39", 32768, "6", 0)
    a("v_lshrrev_b32 v%d, 4, v2" % V_T)
    a("v_lshlrev_b32 v%d, 2, v%d" % (V_T, V_T))
    a("v_and_b32 v%d, 15, v2" % (V_T + 1))
    for j in range(4):
        a("v_add_u32 v%d, %d, v%d" % (V_T + 2, j, V_T))
        a("v_cmp_gt_u32 s[%d:%d], v%d, v%d" % (S_MASK + 2 * j, S_MASK + 2 * j + 1, V_T + 2, V_T + 1))

def pair_off(a, dst, base, per_wave):
    a("s_lshl_b32 s%d, s%d, 3" % (dst, S_HEAD))
    a("s_add_u32 s%d, s%d, s%d" % (dst, dst, S_I))
    a("s_lshl_b32 s%d, s%d, 2" % (dst, dst))
    a("s_add_u32 s%d, s%d, s66" % (dst, dst))
    a("s_mul_i32 s%d, s%d, %d" % (dst, dst, per_wave))
    a("s_add_u32 s%d, s%d, %d" % (dst, dst, base))
def pair_flag(a, dst, base):
    a("s_lshl_b32 s%d, s%d, 3" % (dst, S_HEAD))
    a("s_add_u32 s%d, s%d, s%d" % (dst, dst, S_I))
    a("s_lshl_b32 s%d, s%d, 7" % (dst, dst))
    a("s_add_u32 s%d, s%d, %d" % (dst, dst, base))
def wave0_flag(a, fn):
    sk = a.newlabel("nf")
    a("s_cmp_lg_u32 s66, 0")
    a("s_cbranch_scc1 %s" % sk)
    fn()
    a.label(sk)

def q_epilogue(a):
    a("s_nop 7")
    for qb in range(2):
        for sd in range(8):
            cb, sp = sd >> 1, sd & 1
            r = V_S[0] + 4 * (sd & 3)
            for d in range(4):
                j = 2 * sp + (d >> 1); e = 2 * (d & 1)
                a("v_cvt_pk_bf16_f32 v%d, v%d, v%d" % (r + d, Ot(4 * cb + e, qb) + j, Ot(4 * cb + e + 1, qb) + j))
            for d in range(4):
                a("v_accvgpr_write_b32 a%d, v%d" % (A_Q + 4 * (8 * qb + sd) + d, r + d))

def l_total(a):
    for qb in range(2): xlane_reduce(a, "v_add_f32", V_L + qb, V_T)

def normalize(a, dest, soff=None):
    for qb in range(2):
        a("v_rcp_f32 v%d, v%d" % (V_T + qb, V_L + qb))
    a("s_nop 0")
    n = 0
    for qb in range(2):
        for s in range(8):
            r = V_S[0] + 4 * (n & 7); n += 1
            for h in range(2):
                o = Ot(2 * s + h, qb)
                for j in range(4): a("v_mul_f32 v%d, v%d, v%d" % (o + j, o + j, V_T + qb))
            for h in range(2):
                o = Ot(2 * s + h, qb)
                a("v_cvt_pk_bf16_f32 v%d, v%d, v%d" % (r + 2 * h, o, o + 1))
                a("v_cvt_pk_bf16_f32 v%d, v%d, v%d" % (r + 2 * h + 1, o + 2, o + 3))
            if dest == "acc":
                for d in range(4): a("v_accvgpr_write_b32 a%d, v%d" % (A_CTX + 4 * (8 * qb + s) + d, r + d))
            else:
                f = 8 * qb + s
                if f % 4 == 0 and f: a("s_add_u32 s%d, s%d, 4096" % (soff, soff))
                a("buffer_store_dwordx4 %s, v1, s[12:15], s%d offen offset:%d sc1" % (vr(r), soff, (f % 4) * 1024))

def combine(a):
    al, be = V_T2, V_T2 + 2
    for qb in range(2):
        t = V_T
        a("v_min_f32 v%d, v%d, v%d" % (t, V_NEGM + qb, 96 + qb))
        a("v_sub_f32 v%d, v%d, v%d" % (t + 1, t, V_NEGM + qb))
        a("v_sub_f32 v%d, v%d, v%d" % (t + 2, t, 96 + qb))
        a("v_exp_f32 v%d, v%d" % (t + 1, t + 1))
        a("v_exp_f32 v%d, v%d" % (t + 2, t + 2))
        a("s_nop 0")
        a("v_mul_f32 v%d, v%d, v%d" % (t + 2, t + 2, 98 + qb))
        a("v_fma_f32 v%d, v%d, v%d, v%d" % (t, t + 1, V_L + qb, t + 2))
        a("v_rcp_f32 v%d, v%d" % (t, t))
        a("s_nop 0")
        a("v_mul_f32 v%d, v%d, v%d" % (al + qb, t + 1, t))
        a("v_mul_f32 v%d, v%d, v%d" % (be + qb, t + 2, t))
    for qb in range(2):
        for s in range(8):
            b = 32 + 4 * (8 * qb + s)
            for d in range(4):
                o = Ot(2 * s + (d >> 1), qb) + 2 * (d & 1)
                t = V_X + 2 * d
                a("v_lshlrev_b32 v%d, 16, v%d" % (t, b + d))
                a("v_and_b32 v%d, 0xffff0000, v%d" % (t + 1, b + d))
                a("v_mul_f32 v%d, v%d, v%d" % (o, o, al + qb))
                a("v_mul_f32 v%d, v%d, v%d" % (o + 1, o + 1, al + qb))
                a("v_fma_f32 v%d, v%d, v%d, v%d" % (o, t, be + qb, o))
                a("v_fma_f32 v%d, v%d, v%d, v%d" % (o + 1, t + 1, be + qb, o + 1))
                a("v_cvt_pk_bf16_f32 v%d, v%d, v%d" % (t, o, o + 1))
                a("v_accvgpr_write_b32 a%d, v%d" % (A_CTX + 4 * (8 * qb + s) + d, t))

def attention_script(a, st):
    a("s_cmp_eq_u32 s%d, 7" % S_I)
    a("s_cselect_b32 s39, 0, s%d" % S_ROLE)
    a("s_cmp_eq_u32 s39, 0")
    a("s_cbranch_scc1 AT_seg1_diag")
    pair_off(a, 25, QX, 16384)
    for f in range(16):
        if f % 4 == 0 and f: a("s_add_u32 s25, s25, 4096")
        a("buffer_store_dwordx4 %s, v1, s[12:15], s25 offen offset:%d sc1" % (ar(A_Q + 4 * f), (f % 4) * 1024))
    cinit(a, False, True)
    call(a, "qkfirst")
    a("s_add_u32 s%d, s%d, 1" % (S_END, S_G3))
    call(a, "full")
    wave0_flag(a, lambda: (pair_flag(a, 25, F_Q), set_flag(a, 25, V_T)))
    if st.on:
        a("s_add_u32 s%d, s%d, %d" % (S_END, S_G3, XA - 2 - 30))
        call(a, "full")
        st.cyc(a, "f0_c"); st.rt(a, "f0")
        a("s_add_u32 s%d, s%d, %d" % (S_END, S_G3, 30))
        call(a, "full")
        st.cyc(a, "f1_c"); st.rt(a, "f1")
    else:
        a("s_add_u32 s%d, s%d, %d" % (S_END, S_G3, XA - 2))
        call(a, "full")
    call(a, "pvlast")
    st.rt(a, "seg_done"); st.cyc(a, "seg_done_c")
    pair_flag(a, 25, F_O)
    poll(a, 25, 1, V_T, "fo")
    pair_off(a, 25, OPX, 17408)
    for f in range(17):
        if f % 4 == 0 and f: a("s_add_u32 s25, s25, 4096")
        a("buffer_load_dwordx4 %s, v1, s[12:15], s25 offen offset:%d sc1" % (vr(32 + 4 * f), (f % 4) * 1024))
    l_total(a)
    a("s_waitcnt vmcnt(0)")
    combine(a)
    a("s_branch AT_oproj_start")
    a.label("AT_seg1_diag")
    a("s_add_u32 s25, s%d, s66" % S_N1)
    a("s_sub_u32 s25, s25, 4")
    a("s_cmp_eq_u32 s25, 0")
    a("s_cbranch_scc1 AT_s1_single")
    cinit(a, False, True)
    call(a, "qkfirst")
    a("s_sub_u32 s25, s25, 1")
    run_n(a, "full", 25)
    cinit(a, True, False)
    a("s_add_u32 s%d, s%d, 1" % (S_END, S_G3))
    call(a, "full")
    a("s_branch AT_s1_last")
    a.label("AT_s1_single")
    cinit(a, True, True)
    call(a, "qkfirst")
    a.label("AT_s1_last")
    call(a, "pvlast")
    st.rt(a, "seg_done"); st.cyc(a, "seg_done_c")
    a("s_cmp_eq_u32 s%d, 0" % S_N2)
    a("s_cbranch_scc1 AT_s1_noq")
    pair_flag(a, 25, F_Q)
    poll(a, 25, 1, V_T, "fq")
    pair_off(a, 25, QX, 16384)
    for f in range(16):
        if f % 4 == 0 and f: a("s_add_u32 s25, s25, 4096")
        a("buffer_load_dwordx4 %s, v1, s[12:15], s25 offen offset:%d sc1" % (ar(A_Q + 4 * f), (f % 4) * 1024))
    a.label("AT_s1_noq")
    a("s_nop 7")
    l_total(a)
    normalize(a, "acc")
    a("s_waitcnt vmcnt(0)")
    a("s_sub_u32 s25, 3, s66")
    a("s_cmp_eq_u32 s%d, 0" % S_N2)
    a("s_cbranch_scc1 AT_s1_end")
    a("s_lshl_b32 s25, s25, 1")
    run_n(a, "idle", 25)
    cinit(a, True, True)
    call(a, "qkfirst")
    a("s_add_u32 s25, s%d, s66" % S_N2)
    a("s_sub_u32 s25, s25, 4")
    run_n(a, "full", 25)
    call(a, "pvlast")
    st.rt(a, "seg_done"); st.cyc(a, "seg_done_c")
    a("s_nop 7")
    l_total(a)
    pair_off(a, 25, OPX, 17408)
    normalize(a, "mem", 25)
    a("s_add_u32 s25, s25, 4096")
    a("buffer_store_dwordx4 %s, v1, s[12:15], s25 offen sc1" % vr(V_NEGM))
    a("s_mov_b32 s39, 2")
    a("s_branch AT_oproj_start")
    a.label("AT_s1_end")
    run_n(a, "idle", 25)
    a.label("AT_oproj_start")
    st.rt(a, "oproj_start")
    a("s_mul_i32 s38, s%d, %d" % (S_HEAD, 128 * 14336))
    a("s_lshl_b32 s3, s%d, 2" % S_QB)
    a("s_add_u32 s3, s3, s66")
    a("s_mul_i32 s3, s3, %d" % (2 * 14336))
    a("s_add_u32 s38, s38, s3")
    a("s_add_u32 s38, s38, %d" % PO)
    a("s_mov_b32 s%d, %d" % (S_ST, WSZ))
    a("v_mov_b32 v%d, v1" % V_T2)
    a("v_add_u32 v%d, 14336, v1" % (V_T2 + 1))
    a("s_add_u32 s%d, s%d, 2" % (S_END, S_G3))
    call(a, "oproj")
    a("s_cmp_eq_u32 s39, 2")
    a("s_cbranch_scc0 AT_nofo")
    wave0_flag(a, lambda: (pair_flag(a, 25, F_O), set_flag(a, 25, V_T)))
    a.label("AT_nofo")
    a("s_add_u32 s%d, s%d, 5" % (S_END, S_G3))
    call(a, "oproj")
    a("s_nop 7")
    a("s_bitcmp1_b32 s%d, 0" % S_G3)
    a("s_cbranch_scc0 AT_fl0")
    for s, c in op_flush_items(1): a(s)
    a("s_branch AT_fld")
    a.label("AT_fl0")
    for s, c in op_flush_items(0): a(s)
    a.label("AT_fld")

def k2(stamp=False):
    a = Asm()
    st = Stamps(stamp)
    common_prologue(a, "K2_end")
    st.rt(a, "start")
    roles(a)
    a("s_mov_b32 s%d, 3" % S_G3)
    ring_restart(a, 0)
    a("s_lshl_b32 s25, s%d, 2" % S_QB)
    a("s_add_u32 s25, s25, s66")
    a("s_mul_i32 s25, s25, %d" % (2 * 14336))
    a("s_add_u32 s25, s25, %d" % XN)
    for f in range(28):
        if f % 4 == 0 and f: a("s_add_u32 s25, s25, 4096")
        a("buffer_load_dwordx4 %s, v1, s[12:15], s25 offen offset:%d sc1" % (ar(4 * f), (f % 4) * 1024))
    a("s_waitcnt vmcnt(0)")
    a("s_barrier")
    ring_first_reads(a, 0)
    st.rt(a, "q_start")
    sgemm1(a, 0, lambda qb, s: ar(4 * (14 * qb + s)))
    st.rt(a, "q_end")
    q_epilogue(a)
    st.rt(a, "at_start")
    st.cyc(a, "at_start_c")
    attention_script(a, st)
    st.rt(a, "end")
    st.cyc(a, "end_c")
    a("s_waitcnt vmcnt(0)")
    st.rt(a, "drained")
    st.flush(a, STAMP)
    a.label("K2_end")
    a("s_endpgm")
    subroutines(a)
    k = dict(name="k2_kernel", body=a.text(), vgpr=512, sgpr=102, accum=256, grid=(256, 1, 1), block=(256, 1, 1), lds=131072)
    k["stamps"] = st.names
    return k

if __name__ == "__main__":
    from p0 import k0
    from k1 import K1
    import sys
    for e in sys.argv[1:]:
        EXP.clear(); EXP.update(e.split("+"))
        k = k2(stamp=True)
        open("k012_%s.names" % e, "w").write(" ".join(k["stamps"]))
        open("k012_%s.s" % e, "w").write(build_file([k0(), K1().gen(), k]))
    EXP.clear()
    k = k2(stamp=True)
    print(k["stamps"])
    open("k012.names", "w").write(" ".join(k["stamps"]))
    open("k012.s", "w").write(build_file([k0(), K1().gen(), k]))
```

```python
from asmlib import *

KV   = 0x0000000
XN   = 0x2000000
WQP  = 0x2200000
WOP  = 0x2600000
W13P = 0x2A00000
W2P  = 0x2E00000
QX   = 0x3000000
OPX  = 0x3800000
PO   = 0x4200000
HB   = 0x5E00000
HN   = 0x6000000
ACT  = 0x6200000
FLG  = 0x6A00000
STAMP = 0x0F000000
WSZ  = 0x10000000
WBLK = 229376

F_KV = FLG
F_Q  = FLG + 0x1000
F_O  = FLG + 0x6000
F_PO = FLG + 0xB000
F_H  = FLG + 0xC000
F_A  = FLG + 0xD000

S_PX, S_PC, S_PWQ, S_PWUK, S_PWUV, S_PWO, S_PBX, S_PW1, S_PW3, S_PW2, S_POUT, S_PDBG, S_PWS = range(40, 66, 2)
S_WAVE = 66
S_XCD = 67
S_J = 68
SRD0 = 4; SRD1 = 8; SRD_WS = 12; SRD_DBG = 16
V_LANE16 = 1
V_LANE = 2

def srd(n): return "s[%d:%d]" % (n, n + 3)
def vr(b, n=4): return "v[%d:%d]" % (b, b + n - 1)
def ar(b, n=4): return "a[%d:%d]" % (b, b + n - 1)

def common_prologue(a, endlabel, nwg=256):
    a("s_cmp_ge_u32 s2, %d" % nwg)
    a("s_cbranch_scc1 %s" % endlabel)
    a("""
    s_load_dwordx16 s[40:55], s[0:1], 0
    s_load_dwordx8 s[56:63], s[0:1], 64
    s_load_dwordx2 s[64:65], s[0:1], 96
    v_lshrrev_b32 v3, 6, v0
    v_and_b32 v2, 63, v0
    v_readfirstlane_b32 s66, v3
    v_lshlrev_b32 v1, 4, v2
    s_and_b32 s67, s2, 7
    s_lshr_b32 s68, s2, 3
    s_waitcnt lgkmcnt(0)
    s_mov_b32 s12, s64
    s_mov_b32 s13, s65
    s_mov_b32 s14, %d
    s_mov_b32 s15, 0x00020000
    s_mov_b32 s16, s62
    s_mov_b32 s17, s63
    s_mov_b32 s18, 256
    s_mov_b32 s19, 0x00020000
    """ % WSZ)

class Stamps:
    def __init__(self, on):
        self.on = on; self.n = 0; self.names = []
    def idx(self, name):
        if name not in self.names:
            self.names.append(name); self.n += 1
            assert self.n <= 16
        return 80 + self.names.index(name)
    def rt(self, a, name):
        if not self.on: return
        a("s_memrealtime s[100:101]")
        a("s_waitcnt lgkmcnt(0)")
        a("s_mov_b32 s%d, s100" % self.idx(name))
    def cyc(self, a, name):
        if not self.on: return
        a("s_memtime s[100:101]")
        a("s_waitcnt lgkmcnt(0)")
        a("s_mov_b32 s%d, s100" % self.idx(name))
    def flush(self, a, base):
        if not self.on: return
        a("s_waitcnt vmcnt(0)")
        for q in range(16): a("v_mov_b32 v%d, s%d" % (8 + q, 80 + q))
        a("s_lshl_b32 s3, s2, 2")
        a("s_add_u32 s3, s3, s66")
        a("s_lshl_b32 s3, s3, 6")
        a("s_add_u32 s3, s3, %d" % base)
        a("v_mov_b32 v4, s3")
        a("s_mov_b64 exec, 1")
        for q in range(4): a("buffer_store_dwordx4 %s, v4, s[12:15], 0 offen offset:%d" % (vr(8 + 4 * q), 16 * q))
        a("s_mov_b64 exec, -1")

def xlane_reduce(a, op, x, t):
    a("v_mov_b32 v%d, v%d" % (t, x))
    a("s_nop 1")
    a("v_permlane16_swap_b32 v%d, v%d" % (x, t))
    a("s_nop 1")
    a("%s v%d, v%d, v%d" % (op, x, x, t))
    a("v_mov_b32 v%d, v%d" % (t, x))
    a("s_nop 1")
    a("v_permlane32_swap_b32 v%d, v%d" % (x, t))
    a("s_nop 1")
    a("%s v%d, v%d, v%d" % (op, x, x, t))

def poll(a, addr_sgpr, nflags, vt, name, val=1):
    lp = a.newlabel(name + "_poll"); dn = a.newlabel(name + "_pdone")
    a("v_lshlrev_b32 v%d, 2, v2" % vt)
    a("v_add_u32 v%d, s%d, v%d" % (vt, addr_sgpr, vt))
    a("s_mov_b64 exec, %d" % ((1 << nflags) - 1) if nflags <= 6 else "s_mov_b64 exec, 0x%x" % ((1 << nflags) - 1))
    a("s_mov_b32 s3, 0x40000")
    a.label(lp)
    a("buffer_load_dword v%d, v%d, s[12:15], 0 offen sc1" % (vt + 1, vt))
    a("s_waitcnt vmcnt(0)")
    a("v_cmp_ne_u32 vcc, %d, v%d" % (val, vt + 1))
    a("s_sub_u32 s3, s3, 1")
    a("s_cbranch_scc1 %s" % dn)
    a("s_nop 1")
    a("s_cbranch_vccz %s" % dn)
    a("s_sleep 1")
    a("s_branch %s" % lp)
    a.label(dn)
    a("s_mov_b64 exec, -1")

def set_flag(a, addr_sgpr, vt, val=1):
    a("v_mov_b32 v%d, s%d" % (vt, addr_sgpr))
    a("v_mov_b32 v%d, %d" % (vt + 1, val))
    a("s_mov_b64 exec, 1")
    a("buffer_store_dword v%d, v%d, s[12:15], 0 offen sc1" % (vt + 1, vt))
    a("s_mov_b64 exec, -1")
```

```python
from asmlib import *

KV_OFF = 0
KV_BYTES = 16 * 64 * 32768

def interleave(a, mf, fill):
    for s in fill.get(-1, []): a(s)
    for i, m in enumerate(mf):
        a(m)
        for s in fill.get(i, []): a(s)

class K1:
    V_F = [0 + 32, 32 + 64]
    V_VA = 160
    V_VW = 168
    V_RW = 172
    V_RA = 180
    V_RAC = 182
    V_T = 184
    LDS_W = 0
    LDS_A = 65536
    def __init__(self, stamp=False, dma=True, rd_span=48):
        self.stamp = stamp; self.dma = dma; self.rd_span = rd_span

    def acc(self, i, j):
        b = 4 * (8 * i + j)
        return "a[%d:%d]" % (b, b + 3)
    def fa(self, buf, i):
        b = self.V_F[buf] + 4 * i
        return "v[%d:%d]" % (b, b + 3)
    def fw(self, buf, j):
        b = self.V_F[buf] + 32 + 4 * j
        return b

    def reads(self, t):
        buf = t & 1
        r = []
        wslot = (t & 3) * 16384
        for j in range(8):
            b = self.fw(buf, j)
            r.append("ds_read_b64_tr_b16 v[%d:%d], v%d offset:%d" % (b, b + 1, self.V_RW + j, wslot))
            r.append("ds_read_b64_tr_b16 v[%d:%d], v%d offset:%d" % (b + 2, b + 3, self.V_RW + j, wslot + 2048))
            r.append("ds_read_b128 %s, v%d offset:%d" % (self.fa(buf, j), self.V_RAC + (t & 1), 2048 * j))
        return r

    def dmaW(self, t):
        g = ["s_add_u32 m0, s24, %d" % (self.LDS_W + (t & 3) * 16384)]
        for j in range(4):
            g.append("buffer_load_dwordx4 v%d, s[8:11], s20 offen offset:%d lds" % (self.V_VW + j, j * 1024))
        g.append("s_add_u32 s20, s20, 262144")
        return g
    def dmaA(self, half):
        g = ["s_add_u32 m0, s22, %d" % (half * 4096)]
        for j in range(4):
            g.append("buffer_load_dwordx4 v%d, s[4:7], s21 offen offset:%d lds" % (self.V_VA + 4 * half + j, j * 1024))
        if half == 1:
            g.append("s_add_u32 s21, s21, 128")
            g.append("s_add_u32 s22, s22, 32768")
            g.append("s_cmp_ge_u32 s22, %d" % (self.LDS_A + 3 * 32768))
            g.append("s_cselect_b32 s23, %d, 0" % (3 * 32768))
            g.append("s_sub_u32 s22, s22, s23")
        return g

    def half_step(self, a, t, isK, vm, doW, doA, doR, first=False):
        buf = t & 1
        a("s_waitcnt vmcnt(%d) lgkmcnt(0)" % vm)
        a("s_barrier")
        mf = []
        for i in range(8):
            for j in range(8):
                w = self.fw(buf, j); ws = "v[%d:%d]" % (w, w + 3)
                c = self.acc(i, j)
                src = "0" if first else c
                if isK: mf.append("v_mfma_f32_16x16x32_bf16 %s, %s, %s, %s" % (c, ws, self.fa(buf, i), src))
                else:   mf.append("v_mfma_f32_16x16x32_bf16 %s, %s, %s, %s" % (c, self.fa(buf, i), ws, src))
        fill = {}
        def put(p, s): fill.setdefault(p, []).append(s)
        if doR:
            if (t + 1) & 1 == 0:
                put(0, "s_add_u32 s25, s25, 32768")
                put(0, "s_cmp_ge_u32 s25, %d" % (self.LDS_A + 3 * 32768))
                put(1, "s_cselect_b32 s23, %d, 0" % (3 * 32768))
                put(1, "s_sub_u32 s25, s25, s23")
                put(2, "v_add_u32 v%d, s25, v%d" % (self.V_RAC, self.V_RA))
                put(2, "v_add_u32 v%d, s25, v%d" % (self.V_RAC + 1, self.V_RA + 1))
            r = self.reads(t + 1)
            for n, s in enumerate(r):
                put(3 + (n * self.rd_span) // 24, s)
        d = []
        if self.dma:
            if doW: d.append(self.dmaW(t + 4))
            if doA: d.append(self.dmaA((t + 1) & 1))
        pos = 4
        for g in d:
            put(pos - 1, g[0])
            for n in range(4):
                put(pos + 7 * n, g[1 + n])
            for s in g[5:]: put(pos + 7 * 3 + 2, s)
            pos += 28
        interleave(a, mf, fill)

    def gen(self):
        a = Asm()
        T = self.V_T
        a("s_cmp_ge_u32 s2, 256")
        a("s_cbranch_scc1 K1_end")
        a("""
        s_load_dwordx2 s[4:5], s[0:1], 8
        s_load_dwordx4 s[16:19], s[0:1], 24
        s_load_dwordx2 s[12:13], s[0:1], 96
        s_load_dwordx2 s[32:33], s[0:1], 88
        s_and_b32 s26, s2, 7
        s_lshr_b32 s27, s2, 3
        s_and_b32 s28, s27, 1
        s_lshl_b32 s26, s26, 1
        s_add_u32 s26, s26, s28        ; head
        s_bfe_u32 s28, s27, 0x10001
        s_lshr_b32 s27, s27, 2         ; rb
        v_lshrrev_b32 v1, 6, v0
        v_and_b32 v2, 63, v0           ; lane
        v_readfirstlane_b32 s29, v1    ; wave
        """)
        if self.stamp:
            a("s_memrealtime s[40:41]")
            a("s_memtime s[42:43]")
        a("s_waitcnt lgkmcnt(0)")
        if self.stamp: a("s_memrealtime s[56:57]")
        a("""
        s_lshl_b32 s30, s27, 19        ; rb*256*2048
        s_add_u32 s4, s4, s30
        s_addc_u32 s5, s5, 0
        s_mov_b32 s6, 524288
        s_mov_b32 s7, 0x00020000
        s_cmp_eq_u32 s28, 0
        s_cselect_b32 s8, s16, s18
        s_cselect_b32 s9, s17, s19
        s_lshl_b32 s30, s26, 9
        s_add_u32 s8, s8, s30
        s_addc_u32 s9, s9, 0
        s_sub_u32 s10, 8388608, s30
        s_mov_b32 s11, 0x00020000
        s_mov_b32 s14, %d
        s_mov_b32 s15, 0x00020000
        """ % KV_BYTES)
        a("v_lshrrev_b32 v3, 3, v2")
        a("v_lshrrev_b32 v4, 4, v2")
        a("v_and_b32 v5, 7, v2")
        a("s_lshl_b32 s30, s29, 6")
        a("v_add_u32 v3, s30, v3")
        a("v_lshlrev_b32 v3, 11, v3")
        a("v_xor_b32 v6, v5, v4")
        a("v_xor_b32 v7, 4, v6")
        a("v_lshl_add_u32 v6, v6, 4, v3")
        a("v_lshl_add_u32 v7, v7, 4, v3")
        for j in range(8):
            a("v_add_u32 v%d, %d, v%d" % (self.V_VA + j, j * 8 * 2048 - (j & 3) * 1024, 6 + (j & 1)))
        a("v_lshrrev_b32 v3, 5, v2")
        a("v_and_b32 v5, 31, v2")
        a("s_and_b32 s30, s29, 1")
        a("s_lshl_b32 s30, s30, 3")
        a("s_lshl_b32 s31, s29, 3")
        for j in range(4):
            a("v_add_u32 v6, %d, v3" % (2 * j))
            a("v_and_b32 v7, 3, v6")
            a("v_lshlrev_b32 v7, 1, v7")
            a("v_or_b32 v7, s30, v7")
            a("v_xor_b32 v7, v7, v5")
            a("v_add_u32 v6, s31, v6")
            a("v_lshlrev_b32 v6, 13, v6")
            a("v_lshl_add_u32 v6, v7, 4, v6")
            a("v_subrev_u32 v%d, %d, v6" % (self.V_VW + j, j * 1024))
        a("s_mov_b32 s20, 0")
        a("s_mov_b32 s21, 0")
        a("s_lshl_b32 s22, s29, 13")
        a("s_add_u32 s22, s22, %d" % self.LDS_A)
        a("s_lshl_b32 s24, s29, 12")
        def emit(g):
            a(g[0]); a("s_nop 0")
            for s in g[1:]: a(s)
        emit(self.dmaA(0)); emit(self.dmaW(0)); emit(self.dmaA(1))
        emit(self.dmaW(1)); emit(self.dmaA(0)); emit(self.dmaW(2)); emit(self.dmaA(1)); emit(self.dmaW(3)); emit(self.dmaA(0))
        if self.stamp: a("s_memrealtime s[58:59]")
        a("v_and_b32 v5, 15, v2")
        a("v_lshrrev_b32 v6, 2, v5")
        a("v_and_b32 v7, 1, v4")
        a("v_lshl_or_b32 v7, v7, 2, v6")
        a("v_lshl_add_u32 v6, v4, 3, v6")
        a("v_lshlrev_b32 v6, 9, v6")
        a("v_and_b32 v8, 3, v5")
        a("v_lshl_add_u32 v6, v8, 3, v6")
        a("s_and_b32 s30, s29, 1")
        a("s_lshl_b32 s30, s30, 8")
        a("v_add_u32 v6, s30, v6")
        for nb in range(8):
            a("v_xor_b32 v8, %d, v7" % nb)
            a("v_lshl_add_u32 v%d, v8, 5, v6" % (self.V_RW + nb))
        a("v_lshrrev_b32 v6, 1, v5")
        a("v_xor_b32 v6, v6, v4")
        a("v_lshlrev_b32 v6, 4, v6")
        a("v_lshl_add_u32 v6, v5, 7, v6")
        a("s_lshr_b32 s30, s29, 1")
        a("s_lshl_b32 s30, s30, 14")
        a("v_add_u32 v%d, s30, v6" % self.V_RA)
        a("v_xor_b32 v%d, 64, v%d" % (self.V_RA + 1, self.V_RA))
        a("s_mov_b32 s25, %d" % self.LDS_A)
        a("v_add_u32 v%d, s25, v%d" % (self.V_RAC, self.V_RA))
        a("v_add_u32 v%d, s25, v%d" % (self.V_RAC + 1, self.V_RA + 1))
        a("s_lshl_b32 s30, s26, 21")
        a("s_lshl_b32 s31, s27, 18")
        a("s_add_u32 s30, s30, s31")
        a("s_lshr_b32 s31, s29, 1")
        a("s_lshl_b32 s31, s31, 17")
        a("s_add_u32 s30, s30, s31")
        a("s_lshl_b32 s31, s28, 14")
        a("s_add_u32 s34, s30, s31")
        for i in range(256): a("v_accvgpr_write_b32 a%d, 0" % i)
        if self.stamp: a("s_memrealtime s[60:61]")
        a("s_waitcnt vmcnt(24)")
        a("s_barrier")
        for s in self.reads(0): a(s)
        if self.stamp:
            a("s_memrealtime s[44:45]")
            a("s_memtime s[46:47]")
        a("s_cmp_eq_u32 s28, 0")
        a("s_cbranch_scc0 K1_V")
        for isK in (True, False):
            nm = "K1_K" if isK else "K1_V"
            a.label(nm)
            a("s_mov_b32 s35, 6")
            a(".p2align 4")
            a.label(nm + "_loop")
            for t in range(4):
                self.half_step(a, t, isK, 16, True, True, True)
            a("s_sub_u32 s35, s35, 1")
            a("s_cmp_lg_u32 s35, 0")
            a("s_cbranch_scc1 %s_loop" % nm)
            issued = {}
            for t in range(21, 32):
                issued[t] = (4 if t + 4 <= 31 else 0) + (4 if t <= 26 else 0)
            for t in range(24, 32):
                vm = issued[t - 1] + issued[t - 2]
                self.half_step(a, t, isK, vm, t + 4 <= 31, t <= 26, t < 31)
            if self.stamp:
                a("s_memrealtime s[48:49]")
                a("s_memtime s[50:51]")
            a("s_nop 7")
            a("v_lshlrev_b32 v1, 4, v2")
            a("s_and_b32 s30, s29, 1")
            if isK:
                a("s_lshl_b32 s30, s30, 12")
            else:
                a("s_lshl_b32 s30, s30, 13")
            a("s_add_u32 s34, s34, s30")
            n = 0
            for x in range(8):
                for y in range(4):
                    if isK:
                        i, jp = x, y
                        t0, t1 = 4 * (8 * i + 2 * jp), 4 * (8 * i + 2 * jp + 1)
                        off = (i >> 1) * 32768 + (i & 1) * 8192 + jp * 1024
                    else:
                        ip, j = x >> 1, (x & 1) * 4 + y
                        t0, t1 = 4 * (8 * (2 * ip) + j), 4 * (8 * (2 * ip + 1) + j)
                        off = ip * 32768 + j * 1024
                    r = 32 + 12 * (n % 8)
                    for q in range(4): a("v_accvgpr_read_b32 v%d, a%d" % (r + q, t0 + q))
                    for q in range(4): a("v_accvgpr_read_b32 v%d, a%d" % (r + 4 + q, t1 + q))
                    for q in range(4): a("v_cvt_pk_bf16_f32 v%d, v%d, v%d" % (r + 8 + q, r + 2 * q, r + 2 * q + 1))
                    if off & ~4095 != getattr(self, "_last", -1) or n == 0:
                        a("s_add_u32 s36, s34, %d" % (off & ~4095))
                        self._last = off & ~4095
                    a("buffer_store_dwordx4 v[%d:%d], v1, s[12:15], s36 offen offset:%d" % (r + 8, r + 11, off & 4095))
                    n += 1
            if isK: a("s_branch K1_fin")
        a.label("K1_fin")
        if self.stamp:
            a("s_memrealtime s[52:53]")
            a("s_waitcnt vmcnt(0)")
            a("s_memrealtime s[54:55]")
            a("s_waitcnt lgkmcnt(0)")
            a("s_cmp_lg_u32 s29, 0")
            a("s_cbranch_scc1 K1_end")
            a("s_mov_b32 s14, 0x10000000")
            for q, s in enumerate([40, 44, 48, 52, 54, 42, 46, 50, 56, 58, 60, 60]):
                a("v_mov_b32 v%d, s%d" % (8 + q, s))
            a("s_lshl_b32 s30, s2, 6")
            a("s_add_u32 s30, s30, 0x0F000000")
            a("v_mov_b32 v1, s30")
            a("s_mov_b64 exec, 1")
            a("buffer_store_dwordx4 v[8:11], v1, s[12:15], 0 offen")
            a("buffer_store_dwordx4 v[12:15], v1, s[12:15], 0 offen offset:16")
            a("buffer_store_dwordx4 v[16:19], v1, s[12:15], 0 offen offset:32")
        a.label("K1_end")
        a("s_endpgm")
        return dict(name="k1_kernel", body=a.text(), vgpr=512, sgpr=64, accum=256, grid=(256, 1, 1), block=(256, 1, 1), lds=163840)

if __name__ == "__main__":
    import sys
    open("k1.s", "w").write(build_file([K1(stamp=True).gen()]))
    open("k1_nodma.s", "w").write(build_file([K1(stamp=True, dma=False).gen()]))
```

```python
from common import *
import math, struct
def f2u(x): return struct.unpack("<I", struct.pack("<f", x))[0]
QSCALE = math.log2(math.e) / 16.0

def pack_decode(a, slot, sS, sD, sStride):
    L = lambda n: "P0_%s_%d" % (n, slot)
    a("s_lshl_b32 s20, s2, 2")
    a("s_add_u32 s20, s20, s66")
    a("s_add_u32 s20, s20, %d" % (1024 * slot))
    a("s_mov_b32 s39, 0")
    lo, hi = 1024 * slot, 1024 * slot + 1023
    cases = [("wq", 0, 896), ("wo", 896, 1792), ("w13", 1792, 2576), ("w2", 2576, 2968), ("none", 2968, 4096)]
    cases = [c for c in cases if c[2] > lo and c[1] <= hi]
    for n, (nm, b, e) in enumerate(cases):
        last = n == len(cases) - 1
        if not last:
            a("s_cmp_ge_u32 s20, %d" % e)
            a("s_cbranch_scc1 %s" % L("after_" + nm))
        a("s_sub_u32 s21, s20, %d" % b)
        if nm == "wq":
            a("s_mov_b32 s4, s%d\ns_mov_b32 s5, s%d\ns_mov_b32 s6, %d" % (S_PWQ, S_PWQ + 1, 448 * 8192))
            a("s_mov_b32 s%d, 8192" % sStride)
            a("s_lshr_b32 s22, s21, 6")
            a("s_and_b32 s23, s21, 63")
            a("s_lshl_b32 s24, s22, 18")
            a("s_lshl_b32 s25, s23, 7")
            a("s_add_u32 s%d, s24, s25" % sS)
            a("s_lshr_b32 s24, s23, 2")
            a("s_mul_i32 s24, s24, %d" % WBLK)
            a("s_lshl_b32 s25, s22, 14")
            a("s_add_u32 s24, s24, s25")
            a("s_and_b32 s25, s23, 3")
            a("s_lshl_b32 s25, s25, 12")
            a("s_add_u32 s24, s24, s25")
            a("s_add_u32 s%d, s24, %d" % (sD, WQP))
        elif nm in ("wo", "w2"):
            p = S_PWO if nm == "wo" else S_PW2
            a("s_mov_b32 s4, s%d\ns_mov_b32 s5, s%d\ns_mov_b32 s6, %d" % (p, p + 1, (4096 if nm == "wo" else 1792) * 896))
            a("s_mov_b32 s%d, 896" % sStride)
            a("s_mul_i32 s22, s21, 9363")
            a("s_lshr_b32 s22, s22, 16")
            a("s_mul_i32 s23, s22, 7")
            a("s_sub_u32 s23, s21, s23")
            a("s_mul_i32 s24, s22, %d" % (32 * 896))
            a("s_lshl_b32 s25, s23, 7")
            a("s_add_u32 s%d, s24, s25" % sS)
            if nm == "wo":
                a("s_lshr_b32 s24, s22, 3")
                a("s_mul_i32 s24, s24, %d" % WBLK)
                a("s_lshl_b32 s25, s23, 15")
                a("s_add_u32 s24, s24, s25")
                a("s_and_b32 s25, s22, 7")
                a("s_lshl_b32 s25, s25, 12")
                a("s_add_u32 s24, s24, s25")
                a("s_add_u32 s%d, s24, %d" % (sD, WOP))
            else:
                a("s_mul_i32 s24, s23, %d" % WBLK)
                a("s_lshl_b32 s25, s22, 12")
                a("s_add_u32 s24, s24, s25")
                a("s_add_u32 s%d, s24, %d" % (sD, W2P))
                a("s_mov_b32 s39, 1")
        elif nm == "w13":
            a("s_cmp_ge_u32 s21, 392")
            a("s_cselect_b32 s4, s%d, s%d" % (S_PW3, S_PW1))
            a("s_cselect_b32 s5, s%d, s%d" % (S_PW3 + 1, S_PW1 + 1))
            a("s_cselect_b32 s26, 392, 0")
            a("s_cselect_b32 s27, 8192, 0")
            a("s_mov_b32 s6, %d" % (448 * 3584))
            a("s_mov_b32 s%d, 3584" % sStride)
            a("s_sub_u32 s21, s21, s26")
            a("s_lshr_b32 s22, s21, 2")
            a("s_mul_i32 s22, s22, 9363")
            a("s_lshr_b32 s22, s22, 16")
            a("s_mul_i32 s23, s22, 28")
            a("s_sub_u32 s23, s21, s23")
            a("s_mul_i32 s24, s22, %d" % (32 * 3584))
            a("s_lshl_b32 s25, s23, 7")
            a("s_add_u32 s%d, s24, s25" % sS)
            a("s_lshr_b32 s24, s23, 1")
            a("s_mul_i32 s24, s24, %d" % WBLK)
            a("s_lshl_b32 s25, s22, 14")
            a("s_add_u32 s24, s24, s25")
            a("s_add_u32 s24, s24, s27")
            a("s_and_b32 s25, s23, 1")
            a("s_lshl_b32 s25, s25, 12")
            a("s_add_u32 s24, s24, s25")
            a("s_add_u32 s%d, s24, %d" % (sD, W13P))
        else:
            a("s_mov_b32 s4, s%d\ns_mov_b32 s5, s%d\ns_mov_b32 s6, 0" % (S_PW2, S_PW2 + 1))
            a("s_mov_b32 s%d, 896" % sStride)
            a("s_mov_b32 s%d, 0" % sS)
            a("s_mov_b32 s%d, %d" % (sD, WSZ))
        if not last:
            a("s_branch %s" % L("done"))
            a.label(L("after_" + nm))
    a.label(L("done"))
    a("s_mov_b32 s7, 0x00020000")

def pack_loads(a, slot, vL, sD, vt):
    pack_decode(a, slot, 36, sD, 37)
    a("v_lshrrev_b32 v%d, 4, v2" % vt)
    a("v_lshlrev_b32 v%d, 2, v%d" % (vt, vt))
    a("v_mul_lo_u32 v%d, v%d, s37" % (vt, vt))
    a("v_and_b32 v%d, 15, v2" % (vt + 1))
    a("v_lshlrev_b32 v%d, 3, v%d" % (vt + 2, vt + 1))
    a("v_and_b32 v%d, 3, v%d" % (vt + 3, vt + 1))
    a("v_lshlrev_b32 v%d, 5, v%d" % (vt + 3, vt + 3))
    a("v_lshrrev_b32 v%d, 2, v%d" % (vt + 1, vt + 1))
    a("v_lshl_add_u32 v%d, v%d, 3, v%d" % (vt + 1, vt + 1, vt + 3))
    a("s_cmp_eq_u32 s39, 1")
    a("s_cselect_b64 vcc, -1, 0")
    a("s_nop 1")
    a("v_cndmask_b32 v%d, v%d, v%d, vcc" % (vt + 1, vt + 1, vt + 2))
    a("v_add_u32 v%d, v%d, v%d" % (vt, vt, vt + 1))
    a("s_mul_i32 s38, s37, 13")
    for e in range(8):
        a("buffer_load_dwordx2 %s, v%d, s[4:7], s36 offen" % (vr(vL + 2 * e, 2), vt))
        if e == 3: a("s_add_u32 s36, s36, s38")
        elif e < 7: a("s_add_u32 s36, s36, s37")

def pack_finish(a, vL, vO, sD):
    for e in range(4):
        for d in range(4):
            a("v_perm_b32 v%d, v%d, v%d, s%d" % (vO + 4 * e + d, vL + 2 * (2 * d + 1) + (e >> 1), vL + 2 * (2 * d) + (e >> 1), 34 + (e & 1)))
        a("buffer_store_dwordx4 %s, v1, s[12:15], s%d offen offset:%d sc1" % (vr(vO + 4 * e), sD, e * 1024))

def ln_stats(a, vS, vQ, vt, lds_off):
    for x in (vS, vQ):
        a("s_nop 1")
        a("v_add_f32_dpp v%d, v%d, v%d row_ror:8 row_mask:0xf bank_mask:0xf" % (x, x, x))
        xlane_reduce(a, "v_add_f32", x, vt)
    a("v_and_b32 v%d, 7, v2" % vt)
    a("v_lshlrev_b32 v%d, 3, v%d" % (vt, vt))
    a("s_lshl_b32 s3, s66, 6")
    a("v_add_u32 v%d, s3, v%d" % (vt + 1, vt))
    assert vQ == vS + 1 and vS % 2 == 0
    a("ds_write_b64 v%d, %s offset:%d" % (vt + 1, vr(vS, 2), lds_off))
    a("s_waitcnt lgkmcnt(0)")
    a("s_barrier")
    for w in range(4):
        a("ds_read_b64 %s, v%d offset:%d" % (vr(vt + 2 + 2 * w, 2), vt, lds_off + 64 * w))
    a("s_waitcnt lgkmcnt(0)")
    for k, x in enumerate((vS, vQ)):
        a("v_add_f32 v%d, v%d, v%d" % (x, vt + 2 + k, vt + 4 + k))
        a("v_add_f32 v%d, v%d, v%d" % (vt + 6 + k, vt + 6 + k, vt + 8 + k))
        a("v_add_f32 v%d, v%d, v%d" % (x, x, vt + 6 + k))
    a("v_mul_f32 v%d, 0x%x, v%d" % (vS, f2u(1.0 / 448), vS))
    a("v_mul_f32 v%d, 0x%x, v%d" % (vQ, f2u(1.0 / 448), vQ))
    a("v_fma_f32 v%d, -v%d, v%d, v%d" % (vQ, vS, vS, vQ))
    a("v_max_f32 v%d, 0, v%d" % (vQ, vQ))
    a("v_add_f32 v%d, 0x%x, v%d" % (vQ, f2u(1e-5), vQ))
    a("v_rsq_f32 v%d, v%d" % (vQ, vQ))
    a("s_nop 0")

def x_loads(a, vX, vt, row8_sgpr):
    a("s_mov_b32 s8, s%d\ns_mov_b32 s9, s%d\ns_mov_b32 s10, %d\ns_mov_b32 s11, 0x00020000" % (S_PX, S_PX + 1, 2048 * 896))
    a("v_and_b32 v%d, 7, v0" % vt)
    a("v_mul_u32_u24 v%d, 896, v%d" % (vt, vt))
    a("v_lshrrev_b32 v%d, 5, v0" % (vt + 1))
    a("v_lshl_add_u32 v%d, v%d, 6, v%d" % (vt, vt + 1, vt))
    a("v_bfe_u32 v%d, v0, 3, 2" % (vt + 1))
    a("v_lshl_add_u32 v%d, v%d, 3, v%d" % (vt, vt + 1, vt))
    a("s_mul_i32 s3, s%d, %d" % (row8_sgpr, 8 * 896))
    a("buffer_load_dwordx2 %s, v%d, s[8:11], s3 offen" % (vr(vX, 2), vt))
    a("buffer_load_dwordx2 %s, v%d, s[8:11], s3 offen offset:32" % (vr(vX + 2, 2), vt))
    a("s_cmp_eq_u32 s66, 3")
    a("s_cselect_b32 s3, 1835008, s3")
    a("buffer_load_dwordx2 %s, v%d, s[8:11], s3 offen offset:512" % (vr(vX + 4, 2), vt))
    a("buffer_load_dwordx2 %s, v%d, s[8:11], s3 offen offset:544" % (vr(vX + 6, 2), vt))

def frag_store_off(a, vt, row8_sgpr, base, sD1, sD2):
    a("v_lshrrev_b32 v%d, 3, v0" % vt)
    a("v_lshlrev_b32 v%d, 8, v%d" % (vt, vt))
    a("v_and_b32 v%d, 7, v0" % (vt + 1))
    a("v_lshl_add_u32 v%d, v%d, 4, v%d" % (vt, vt + 1, vt))
    a("s_lshr_b32 s%d, s%d, 1" % (sD1, row8_sgpr))
    a("s_mul_i32 s%d, s%d, 14336" % (sD1, sD1))
    a("s_and_b32 s3, s%d, 1" % row8_sgpr)
    a("s_lshl_b32 s3, s3, 7")
    a("s_add_u32 s%d, s%d, s3" % (sD1, sD1))
    a("s_add_u32 s%d, s%d, %d" % (sD1, sD1, base))
    a("s_add_u32 s%d, s%d, 8192" % (sD2, sD1))
    a("s_cmp_eq_u32 s66, 3")
    a("s_cselect_b32 s%d, %d, s%d" % (sD2, WSZ, sD2))

def ln1_finish(a, vX, vt, lds_off):
    vS = vt; vQ = vt + 1; t = vt + 2
    a("v_mov_b32 v%d, 0x3f803f80" % t)
    a("v_mov_b32 v%d, 0" % vS)
    a("v_mov_b32 v%d, 0" % vQ)
    for d in range(8):
        a("v_dot2_f32_bf16 v%d, v%d, v%d, v%d" % (vS, vX + d, t, vS))
        a("v_dot2_f32_bf16 v%d, v%d, v%d, v%d" % (vQ, vX + d, vX + d, vQ))
    a("s_nop 2")
    ln_stats(a, vS, vQ, t, lds_off)
    a("v_mul_f32 v%d, 0x%x, v%d" % (vQ, f2u(QSCALE), vQ))
    a("v_mul_f32 v%d, v%d, v%d" % (vS, vS, vQ))
    for d in range(8):
        a("v_lshlrev_b32 v%d, 16, v%d" % (t, vX + d))
        a("v_and_b32 v%d, 0xffff0000, v%d" % (t + 1, vX + d))
        a("v_fma_f32 v%d, v%d, v%d, -v%d" % (t, t, vQ, vS))
        a("v_fma_f32 v%d, v%d, v%d, -v%d" % (t + 1, t + 1, vQ, vS))
        a("v_cvt_pk_bf16_f32 v%d, v%d, v%d" % (vX + d, t, t + 1))
    frag_store_off(a, t, 2, XN, 20, 21)
    a("buffer_store_dwordx4 %s, v%d, s[12:15], s20 offen sc1" % (vr(vX), t))
    a("buffer_store_dwordx4 %s, v%d, s[12:15], s21 offen sc1" % (vr(vX + 4), t))

def zero_flags(a, vt):
    lab = a.newlabel("zf")
    a("s_cmp_lg_u32 s66, 0")
    a("s_cbranch_scc1 %s" % lab)
    a("s_lshl_b32 s3, s2, 8")
    a("s_add_u32 s3, s3, %d" % FLG)
    a("v_lshlrev_b32 v%d, 2, v2" % vt)
    a("v_mov_b32 v%d, 0" % (vt + 1))
    a("buffer_store_dword v%d, v%d, s[12:15], s3 offen sc1" % (vt + 1, vt))
    a.label(lab)

def k0():
    a = Asm()
    common_prologue(a, "K0_end")
    zero_flags(a, 4)
    x_loads(a, 8, 4, 2)
    for sl in range(3):
        pack_loads(a, sl, 32 + 16 * sl, 30 + sl, 4)
    a("s_mov_b32 s34, 0x05040100")
    a("s_mov_b32 s35, 0x07060302")
    a("s_waitcnt vmcnt(24)")
    ln1_finish(a, 8, 16, 0)
    for sl in range(3):
        a("s_waitcnt vmcnt(%d)" % (2 + 8 * (2 - sl) + 4 * sl))
        pack_finish(a, 32 + 16 * sl, 80 + 16 * sl, 30 + sl)
    a.label("K0_end")
    a("s_endpgm")
    return dict(name="k0_kernel", body=a.text(), vgpr=128, sgpr=102, accum=128, grid=(256, 1, 1), block=(256, 1, 1), lds=1024)

if __name__ == "__main__":
    open("k0.s", "w").write(build_file([k0()]))
```

```python
from common import *
from p0 import f2u, x_loads, frag_store_off, ln_stats
import attn
from attn import *
import math

S_R, S_M = 78, 79

def tail_roles(a):
    a("s_and_b32 s3, s68, 1")
    a("s_lshl_b32 s%d, s67, 1" % S_R)
    a("s_add_u32 s%d, s%d, s3" % (S_R, S_R))
    a("s_lshr_b32 s%d, s68, 1" % S_M)

def grp_flag(a, dst, base, member=None):
    a("s_lshl_b32 s%d, s%d, 7" % (dst, S_R))
    a("s_add_u32 s%d, s%d, %d" % (dst, dst, base))
    if member is not None:
        a("s_lshl_b32 s3, s%d, 2" % member)
        a("s_add_u32 s%d, s%d, s3" % (dst, dst))

R1_X = 16
R1_ACC = 32
R1_L = 128
def r1_pre(a):
    a("s_lshl_b32 s25, s%d, 4" % S_R)
    a("s_add_u32 s25, s25, s%d" % S_M)
    x_loads(a, R1_X, 10, 25)
    frag_store_off(a, 9, 25, PO, 38, 39)

def r1_main(a, lds_off):
    a("s_cmp_eq_u32 s66, 3")
    a("s_cselect_b32 s36, 0, %d" % (2048 * 896))
    for h in range(16):
        a("buffer_load_dwordx4 %s, v9, s[12:15], s38 offen sc1" % vr(R1_L + 8 * h))
        a("buffer_load_dwordx4 %s, v9, s[12:15], s39 offen sc1" % vr(R1_L + 8 * h + 4))
        if h < 15:
            a("s_add_u32 s38, s38, %d" % (2048 * 896))
            a("s_add_u32 s39, s39, s36")
    a("s_waitcnt vmcnt(32)")
    for d in range(8):
        a("v_lshlrev_b32 v%d, 16, v%d" % (R1_ACC + 2 * d, R1_X + d))
        a("v_and_b32 v%d, 0xffff0000, v%d" % (R1_ACC + 2 * d + 1, R1_X + d))
    for h in range(16):
        a("s_waitcnt vmcnt(%d)" % (30 - 2 * h))
        for d in range(8):
            r = R1_L + 8 * h + d
            t = 48 + 2 * (d & 3)
            a("v_lshlrev_b32 v%d, 16, v%d" % (t, r))
            a("v_and_b32 v%d, 0xffff0000, v%d" % (t + 1, r))
            a("v_add_f32 v%d, v%d, v%d" % (R1_ACC + 2 * d, R1_ACC + 2 * d, t))
            a("v_add_f32 v%d, v%d, v%d" % (R1_ACC + 2 * d + 1, R1_ACC + 2 * d + 1, t + 1))
    vS, vQ, t = 56, 57, 58
    for d in range(8):
        a("v_cvt_pk_bf16_f32 v%d, v%d, v%d" % (R1_X + d, R1_ACC + 2 * d, R1_ACC + 2 * d + 1))
    frag_store_off(a, 9, 25, HB, 38, 39)
    a("buffer_store_dwordx4 %s, v9, s[12:15], s38 offen sc1" % vr(R1_X))
    a("buffer_store_dwordx4 %s, v9, s[12:15], s39 offen sc1" % vr(R1_X + 4))
    a("v_mov_b32 v%d, 0x3f803f80" % t)
    a("v_mov_b32 v%d, 0" % vS)
    a("v_mov_b32 v%d, 0" % vQ)
    for d in range(8):
        a("v_dot2_f32_bf16 v%d, v%d, v%d, v%d" % (vS, R1_X + d, t, vS))
        a("v_dot2_f32_bf16 v%d, v%d, v%d, v%d" % (vQ, R1_X + d, R1_X + d, vQ))
    a("s_nop 2")
    ln_stats(a, vS, vQ, t, lds_off)
    a("v_mul_f32 v%d, v%d, v%d" % (vS, vS, vQ))
    for d in range(8):
        a("v_lshlrev_b32 v%d, 16, v%d" % (t, R1_X + d))
        a("v_and_b32 v%d, 0xffff0000, v%d" % (t + 1, R1_X + d))
        a("v_fma_f32 v%d, v%d, v%d, -v%d" % (t, t, vQ, vS))
        a("v_fma_f32 v%d, v%d, v%d, -v%d" % (t + 1, t + 1, vQ, vS))
        a("v_cvt_pk_bf16_f32 v%d, v%d, v%d" % (24 + d, t, t + 1))
    a("s_add_u32 s38, s38, %d" % (HN - HB))
    a("s_cmp_eq_u32 s66, 3")
    a("s_cselect_b32 s36, 0, %d" % (HN - HB))
    a("s_add_u32 s39, s39, s36")
    a("buffer_store_dwordx4 %s, v9, s[12:15], s38 offen sc1" % vr(24))
    a("buffer_store_dwordx4 %s, v9, s[12:15], s39 offen sc1" % vr(28))

def p3_loads(a):
    a("s_lshl_b32 s25, s%d, 2" % S_R)
    a("s_add_u32 s25, s25, s66")
    a("s_mul_i32 s25, s25, %d" % (2 * 14336))
    a("s_add_u32 s25, s25, %d" % HN)
    for f in range(28):
        if f % 4 == 0 and f: a("s_add_u32 s25, s25, 4096")
        a("buffer_load_dwordx4 %s, v1, s[12:15], s25 offen offset:%d sc1" % (ar(4 * f), (f % 4) * 1024))

def p3_epilogue(a):
    a("s_lshl_b32 s25, s%d, 2" % S_R)
    a("s_add_u32 s25, s25, s66")
    a("s_mul_i32 s25, s25, %d" % (2 * 57344))
    a("s_lshl_b32 s3, s%d, 12" % S_M)
    a("s_add_u32 s25, s25, s3")
    a("s_add_u32 s25, s25, %d" % ACT)
    a("s_mov_b32 s36, 0x%x" % f2u(-math.log2(math.e)))
    a("s_nop 4")
    n = 0
    for qb in range(2):
        if qb: a("s_add_u32 s25, s25, 57344")
        for cb in range(2):
            for sp in range(2):
                r = 32 + 4 * (n & 3); t = 48 + 8 * (n & 1); n += 1
                el = [(Ot(4 * cb + e, qb) + 2 * sp + jj, Ot(8 + 4 * cb + e, qb) + 2 * sp + jj) for jj in range(2) for e in range(4)]
                for k, (g, u) in enumerate(el): a("v_mul_f32 v%d, s36, v%d" % (t + k, g))
                for k, (g, u) in enumerate(el): a("v_exp_f32 v%d, v%d" % (t + k, t + k))
                for k, (g, u) in enumerate(el): a("v_mul_f32 v%d, v%d, v%d" % (u, g, u))
                for k, (g, u) in enumerate(el): a("v_add_f32 v%d, 1.0, v%d" % (t + k, t + k))
                for k, (g, u) in enumerate(el): a("v_rcp_f32 v%d, v%d" % (t + k, t + k))
                a("s_nop 0")
                for k, (g, u) in enumerate(el): a("v_mul_f32 v%d, v%d, v%d" % (t + k, t + k, u))
                for d in range(4): a("v_cvt_pk_bf16_f32 v%d, v%d, v%d" % (r + d, t + 2 * d, t + 2 * d + 1))
                a("buffer_store_dwordx4 %s, v1, s[12:15], s25 offen offset:%d sc1" % (vr(r), (2 * cb + sp) * 1024))

P4_ACC = 192
def p4_act(s, rb):
    if s < 10: return vr(32 + 16 * s + 4 * rb)
    if s < 12: return ar(224 + 16 * (s - 10) + 4 * rb)
    return vr(32 + 16 * (s - 12) + 4 * rb)
def p4_wloads(a):
    a("s_lshr_b32 s25, s%d, 1" % S_M)
    a("s_mul_i32 s25, s25, %d" % WBLK)
    a("s_mul_i32 s3, s66, %d" % (14 * 4096))
    a("s_add_u32 s25, s25, s3")
    a("s_add_u32 s25, s25, %d" % W2P)
    for s in range(14):
        if s: a("s_add_u32 s25, s25, 4096")
        for e in range(4):
            a("buffer_load_dwordx4 %s, v1, s[12:15], s25 offen offset:%d sc1" % (ar(16 * s + 4 * e), e * 1024))
def p4_hloads(a):
    a("s_and_b32 s3, s%d, 1" % S_M)
    a("s_lshl_b32 s3, s3, 2")
    a("s_lshl_b32 s25, s%d, 3" % S_R)
    a("s_add_u32 s25, s25, s3")
    a("s_add_u32 s38, s25, s66")
    a("s_mul_i32 s39, s38, 14336")
    a("s_lshr_b32 s3, s%d, 1" % S_M)
    a("s_lshl_b32 s3, s3, 11")
    a("s_add_u32 s39, s39, s3")
    a("s_add_u32 s39, s39, %d" % HB)
    a("v_lshrrev_b32 v9, 5, v2")
    a("v_lshlrev_b32 v9, 10, v9")
    a("v_bfe_u32 v10, v2, 4, 1")
    a("v_lshl_add_u32 v9, v10, 3, v9")
    a("v_and_b32 v10, 15, v2")
    a("v_lshl_add_u32 v9, v10, 4, v9")
    for gp in range(4):
        a("buffer_load_dwordx2 %s, v9, s[12:15], s39 offen offset:%d sc1" % (vr(16 + 2 * gp, 2), gp * 256))
def p4_main(a, pre_out):
    a("s_mul_i32 s25, s25, 57344")
    a("s_mul_i32 s3, s66, %d" % (14 * 1024))
    a("s_add_u32 s25, s25, s3")
    a("s_add_u32 s25, s25, %d" % ACT)
    for rb in range(4):
        if rb == 0: a("v_mov_b32 v24, v1")
        else: a("v_add_u32 v%d, %d, v1" % (24 + rb, rb * 57344))
    def ld(s):
        if s % 4 == 0 and s: a("s_add_u32 s25, s25, 4096")
        for rb in range(4):
            a("buffer_load_dwordx4 %s, v%d, s[12:15], s25 offen offset:%d sc1" % (p4_act(s, rb), 24 + rb, (s % 4) * 1024))
    for s in range(12): ld(s)
    issued = 12
    for s in range(14):
        a("s_waitcnt vmcnt(%d)" % (4 * (issued - 1 - s)))
        for e in range(4):
            for rb in range(4):
                d = vr(P4_ACC + 4 * (4 * rb + e))
                a(MF(d, ar(16 * s + 4 * e), p4_act(s, rb), "0" if s == 0 else d))
        if s < 2:
            ld(12 + s); issued += 1
    a("s_lshl_b32 s3, s66, 14")
    a("v_add_u32 v9, s3, v1")
    a("s_nop 6")
    for rb in range(4):
        for e in range(4):
            a("ds_write_b128 v9, %s offset:%d" % (vr(P4_ACC + 4 * (4 * rb + e)), rb * 4096 + e * 1024))
    a("s_lshl_b32 s3, s66, 12")
    a("v_add_u32 v9, s3, v1")
    a("s_waitcnt lgkmcnt(0)")
    a("s_barrier")
    for w in range(4):
        for e in range(4):
            a("ds_read_b128 %s, v9 offset:%d" % (vr(32 + 16 * w + 4 * e), w * 16384 + e * 1024))
    a("s_mov_b32 s8, s%d\ns_mov_b32 s9, s%d\ns_mov_b32 s10, %d\ns_mov_b32 s11, 0x00020000" % (S_POUT, S_POUT + 1, 2048 * 896))
    a("s_mul_i32 s38, s38, %d" % (16 * 896))
    a("s_lshr_b32 s3, s%d, 1" % S_M)
    a("s_lshl_b32 s3, s3, 7")
    a("s_add_u32 s38, s38, s3")
    a("v_and_b32 v10, 15, v2")
    a("v_mul_u32_u24 v10, 896, v10")
    a("v_lshrrev_b32 v11, 4, v2")
    a("v_lshl_add_u32 v10, v11, 5, v10")
    for j in range(4):
        for e in range(4):
            src = 16 + 2 * j + (e >> 1)
            if e & 1: a("v_and_b32 v%d, 0xffff0000, v%d" % (96 + 4 * e + j, src))
            else: a("v_lshlrev_b32 v%d, 16, v%d" % (96 + 4 * e + j, src))
    for w in range(4):
        a("s_waitcnt lgkmcnt(%d)" % (12 - 4 * w))
        for k in range(16): a("v_add_f32 v%d, v%d, v%d" % (96 + k, 96 + k, 32 + 16 * w + k))
    for j in range(4):
        a("v_cvt_pk_bf16_f32 v%d, v%d, v%d" % (112 + 2 * j, 96 + j, 100 + j))
        a("v_cvt_pk_bf16_f32 v%d, v%d, v%d" % (113 + 2 * j, 104 + j, 108 + j))
    a("buffer_store_dwordx4 %s, v10, s[8:11], s38 offen" % vr(112))
    a("buffer_store_dwordx4 %s, v10, s[8:11], s38 offen offset:16" % vr(116))

def k3():
    a = Asm()
    common_prologue(a, "K3_end")
    tail_roles(a)
    r1_pre(a)
    r1_main(a, 0)
    a.label("K3_end")
    a("s_endpgm")
    return dict(name="k3_kernel", body=a.text(), vgpr=256, sgpr=102, accum=256, grid=(256, 1, 1), block=(256, 1, 1), lds=1024)
def k4():
    a = Asm()
    common_prologue(a, "K4_end")
    tail_roles(a)
    a("s_cmp_ge_u32 s%d, 14" % S_M)
    a("s_cbranch_scc1 K4_end")
    a("s_lshl_b32 s3, s66, 12")
    a("v_add_u32 v%d, s3, v1" % V_DMA)
    a("s_mul_i32 s25, s%d, %d" % (S_M, WBLK))
    a("s_add_u32 s25, s25, %d" % W13P)
    a("s_add_u32 s39, s25, 16384")
    tab_seg(a, "0", "s25", "s39", 32768, "6", 0, first=True)
    a("s_mov_b32 s%d, 3" % S_G3)
    ring_restart(a, 0)
    p3_loads(a)
    a("s_waitcnt vmcnt(0)")
    a("s_barrier")
    ring_first_reads(a, 0)
    sgemm1(a, 0, lambda qb, s: ar(4 * (14 * qb + s)))
    p3_epilogue(a)
    a("s_waitcnt vmcnt(0) lgkmcnt(0)")
    a.label("K4_end")
    a("s_endpgm")
    return dict(name="k4_kernel", body=a.text(), vgpr=512, sgpr=102, accum=256, grid=(256, 1, 1), block=(256, 1, 1), lds=131072)
def k5():
    a = Asm()
    common_prologue(a, "K5_end")
    tail_roles(a)
    a("s_cmp_ge_u32 s%d, 14" % S_M)
    a("s_cbranch_scc1 K5_end")
    p4_wloads(a)
    p4_hloads(a)
    a("s_waitcnt vmcnt(12)")
    p4_main(a, 0)
    a.label("K5_end")
    a("s_endpgm")
    return dict(name="k5_kernel", body=a.text(), vgpr=512, sgpr=102, accum=256, grid=(256, 1, 1), block=(256, 1, 1), lds=65536)

if __name__ == "__main__":
    from p0 import k0
    from k1 import K1
    hdr = "".join(l for l in open("cdna_kernels/" + NAME + ".s.ref").readlines()[:14])
    open("v1.s", "w").write(build_file([k0(), K1().gen(), k2(), k3(), k4(), k5()], hdr))
```

```python
from common import *
from gemm import S_HEAD, S_I, S_ROLE, S_QB, V_DMA, xn_reg, dmaQ, DMAFL

V_RDK, V_RDV, V_TABK, V_TABV = 5, 6, 7, 8
V_T = 9
V_NEGM, V_L, V_TS = 16, 18, 20
V_T2 = 22
V_S = [32, 48]; V_P = [64, 72]; V_E = 80; V_C = 96; V_X = 112
V_O = 128
A_CTX = 0; A_SP = 64; A_Q = 128; A_F = 192
S_G3, S_END, S_WQ, S_KO, S_VO = 20, 21, 22, 23, 27
S_RW = 26
S_RET, S_RET2 = 82, 84
S_MASK = 70
S_N1, S_N2, S_ST, S_THR = 34, 35, 36, 37
S_R, S_M = 78, 79
NEG = 0xff3fffff
XA = 35
EXP = set()

def St(buf, kb, qb): return V_S[buf] + 4 * (2 * kb + qb)
def Ct(kb, qb): return V_C + 4 * (2 * kb + qb)
def Ot(db, qb): return V_O + 4 * (2 * db + qb)
def Fr(n): return ar(A_F + 4 * (n % 16))
def Qf(qb, s): return ar(A_Q + 4 * (8 * qb + s))

def frag_reads(sc, rdK, rdV, rdN, bar):
    out = [0, 0, 0, 0, 1, 1, 1, 1]
    def wait_for(grp):
        if grp not in out: return None
        idx = max(i for i, x in enumerate(out) if x == grp)
        n = len(out) - 1 - idx
        del out[:idx + 1]
        return n
    for gam in range(8):
        need = (gam < 4 and rdK) or (gam >= 4 and rdV)
        n = wait_for(gam) if need else None
        if gam == 0 and not rdK:
            n = 0; del out[:]
        lg = "" if n is None else "lgkmcnt(%d)" % n
        if gam == 6 and bar is not None:
            if bar or lg: sc.at(47, ((bar if bar else "s_waitcnt") + " " + lg).strip(), last=True)
            sc.at(47, "s_barrier", last=True)
        elif n is not None:
            sc.at(8 * gam - 1, "s_waitcnt " + lg, last=True)
        t = gam + 2
        src = rdK if t < 4 else rdV if t < 8 else rdN
        if not src: continue
        for k in range(4):
            sc.at(8 * gam + 2 * k, "ds_read_b128 %s, v%d offset:%d" % (Fr(4 * t + k), src[0], src[1] + (4 * (t % 4) + k) * 1024))
            out.append(t if t < 8 else 100 + t)
    sc.free[63] -= 1

def ring_fixed(sc, p, useK=True, useV=True, vm=12, loop=None, dma=True, nxt=True):
    frag_reads(sc, (V_RDK, p * 16384) if useK else None, (V_RDV, p * 16384) if useV else None,
               (V_RDK, (1 - p) * 16384) if nxt else None, "s_waitcnt vmcnt(%d)" % vm)
    nomf0 = sc.mf[0] is None; nomf1 = sc.mf[63] is None
    if p == 1:
        sc.at(0, "s_xor_b32 s%d, s%d, 0x8000" % (S_WQ, S_WQ))
        sc.at(30, "v_xor_b32 v%d, 0x8000, v%d" % (V_RDK, V_RDK))
        sc.at(48, "v_xor_b32 v%d, 0x8000, v%d" % (V_RDV, V_RDV))
    if dma:
        sc.at(0 if p == 0 else 2, "v_readlane_b32 s%d, v%d, s%d" % (S_KO, V_TABK, S_G3))
        sc.at(20, "s_add_u32 m0, s%d, %d" % (S_WQ, (1 - p) * 16384))
        if nomf0: sc.at(20, "s_nop 3")
        for k, g in enumerate((21, 25, 27, 29)):
            sc.at(g, "buffer_load_dwordx4 v%d, s[12:15], s%d offen offset:%d lds%s" % (V_DMA, S_KO, k * 1024, DMAFL), 2)
        sc.at(36, "v_readlane_b32 s%d, v%d, s%d" % (S_VO, V_TABV, S_G3))
        sc.at(52, "s_add_u32 m0, s%d, %d" % (S_WQ, (1 - p) * 16384 + 65536))
        if nomf1: sc.at(52, "s_nop 3")
        for k, g in enumerate((53, 57, 59, 61)):
            sc.at(g, "buffer_load_dwordx4 v%d, s[12:15], s%d offen offset:%d lds%s" % (V_DMA, S_VO, k * 1024, DMAFL), 2)
    sc.at(60, "s_add_u32 s%d, s%d, 1" % (S_G3, S_G3))
    if loop:
        sc.at(62, "s_cmp_eq_u32 s%d, s%d" % (S_G3, S_END), last=True)
        sc.at(63, loop, last=True)

def ring_restart(a, slot0):
    q = (slot0 >> 1) & 1
    a("v_add_u32 v%d, %d, v1" % (V_RDK, q * 0x8000))
    a("v_add_u32 v%d, %d, v1" % (V_RDV, 0x10000 + q * 0x8000))
    for k in range(3):
        slot = (slot0 + k) & 3
        a("v_readlane_b32 s%d, v%d, %d" % (S_KO, V_TABK, k))
        a("v_readlane_b32 s%d, v%d, %d" % (S_VO, V_TABV, k))
        a("s_add_u32 m0, s24, %d" % (slot * 16384))
        a("s_nop 3")
        for j in range(4): a("buffer_load_dwordx4 v%d, s[12:15], s%d offen offset:%d lds%s" % (V_DMA, S_KO, j * 1024, DMAFL))
        a("s_add_u32 m0, s24, %d" % (slot * 16384 + 65536))
        a("s_nop 0")
        for j in range(4): a("buffer_load_dwordx4 v%d, s[12:15], s%d offen offset:%d lds%s" % (V_DMA, S_VO, j * 1024, DMAFL))
    a("s_add_u32 s%d, s24, %d" % (S_WQ, (1 - q) * 0x8000))
    a("s_mov_b32 s%d, 3" % S_G3)

def first_reads(a, vreg, imm):
    for n in range(8): a("ds_read_b128 %s, v%d offset:%d" % (Fr(n), vreg, imm + n * 1024))

def sm_ops(buf, kb):
    ex, pl = [], []
    for qb in range(2):
        s = St(buf, kb, qb); e = V_E + 8 * kb + 4 * qb; ts = V_TS + qb; P = V_P[buf] + 4 * qb + 2 * kb
        ex += ["v_exp_f32 v%d, v%d" % (e + j, s + j) for j in range(4)]
        b = 4 * qb
        if kb == 0: pl.append(("v_add_f32 v%d, v%d, v%d" % (ts, e, e + 1), b + 1))
        else: pl += [("v_add_f32 v%d, v%d, v%d" % (ts, ts, e), b), ("v_add_f32 v%d, v%d, v%d" % (ts, ts, e + 1), b + 1)]
        pl.append(("v_cvt_pk_bf16_f32 v%d, v%d, v%d" % (P, e, e + 1), b + 1))
        pl += [("v_add_f32 v%d, v%d, v%d" % (ts, ts, e + 2), b + 2), ("v_add_f32 v%d, v%d, v%d" % (ts, ts, e + 3), b + 3)]
        pl.append(("v_cvt_pk_bf16_f32 v%d, v%d, v%d" % (P + 1, e + 2, e + 3), b + 3))
    return ex, pl
def sm_serial(buf, kb):
    ex, pl = sm_ops(buf, kb)
    return ex + [s for s, _ in pl]
def place_sm(sc, buf, kb, exgaps, g0, g1, pre=(), post=()):
    ex, pl = sm_ops(buf, kb)
    for s, g in zip(ex, exgaps): sc.at(g, s, 2)
    g = g0
    for s in pre: g = sc.at(sc.first_free(g, 1, g1), s)
    for s, d in pl: g = sc.at(sc.first_free(max(g, exgaps[d] + 1), 1, g1), s)
    for s in post: g = sc.at(sc.first_free(g, 1, g1), s)

def qk_mfmas(buf):
    mf = []
    for kb in range(2):
        for s in range(8):
            for qb in range(2):
                d = vr(St(buf, kb, qb))
                mf.append(MF(d, Fr(8 * kb + s), Qf(qb, s), vr(Ct(kb, qb)) if s == 0 else d))
    return mf
def pv_mfmas(buf):
    return [MF(vr(Ot(db, qb)), Fr(16 + db), vr(V_P[buf] + 4 * qb), vr(Ot(db, qb))) for db in range(16) for qb in range(2)]
CHECK = ["v_max_f32 v%d, v%d, v%d" % (V_T, V_TS, V_TS + 1), "v_cmp_lt_f32 vcc, s%d, v%d" % (S_THR, V_T)]
LACC = ["v_add_f32 v%d, v%d, v%d" % (V_L + qb, V_L + qb, V_TS + qb) for qb in range(2)]

def body_full(a, p, loop, stubs):
    sc = Sched(qk_mfmas(p) + pv_mfmas(1 - p))
    ring_fixed(sc, p, loop=loop)
    back = "AT_full%d_back" % p
    sc.at(31, "s_cbranch_vccnz AT_full%d_stub\n%s:" % (p, back))
    stubs.append(("AT_full%d_stub" % p, p, back))
    place_sm(sc, 1 - p, 1, (1, 3, 5, 9, 11, 13, 17, 19), 0, 30, post=CHECK)
    place_sm(sc, p, 0, (33, 35, 37, 41, 43, 45, 49, 51), 32, 63, pre=LACC)
    sc.emit(a)
    return sc.overflow()

def body_pvlast(a, p, stubs):
    sc = Sched([None] * 32 + pv_mfmas(1 - p))
    ring_fixed(sc, p, useK=False)
    for g in range(16, 31):
        rd = [s for s in sc.items[g] if s.startswith("ds_read")]
        sc.items[g] = [s for s in sc.items[g] if not s.startswith("ds_read")]
        sc.tail[-1] += rd
    back = "AT_pv%d_back" % p
    for s in sm_serial(1 - p, 1) + CHECK: sc.at(10, s)
    sc.at(31, "s_cbranch_vccnz AT_pv%d_stub\n%s:" % (p, back))
    stubs.append(("AT_pv%d_stub" % p, p, back))
    for k, s in enumerate(LACC): sc.at(33, s)
    sc.emit(a)

def body_qkfirst(a, p):
    sc = Sched(qk_mfmas(p) + [None] * 32)
    ring_fixed(sc, p, useV=False)
    t = Asm()
    m = V_T
    for qb in range(2):
        s0 = St(p, 0, qb)
        sc.at(23, "v_max3_f32 v%d, v%d, v%d, v%d" % (m + qb, s0, s0 + 1, s0 + 2))
        sc.at(24, "v_mov_b32 v%d, 0" % (V_L + qb))
    t("s_nop 6")
    for qb in range(2):
        s0, s1 = St(p, 0, qb), St(p, 1, qb)
        t("v_max3_f32 v%d, v%d, v%d, v%d" % (m + qb, m + qb, s0 + 3, s1))
        t("v_max3_f32 v%d, v%d, v%d, v%d" % (m + qb, m + qb, s1 + 1, s1 + 2))
        t("v_max_f32 v%d, v%d, v%d" % (m + qb, m + qb, s1 + 3))
    xlane_reduce2(t, "v_max_f32", m, m + 1, m + 2)
    for qb in range(2):
        t("v_sub_f32 v%d, 0, v%d" % (V_NEGM + qb, m + qb))
        for j in range(4): t("v_sub_f32 v%d, v%d, v%d" % (St(p, 0, qb) + j, St(p, 0, qb) + j, m + qb))
    for l in t.lines: sc.at(37, l.strip())
    t = Asm()
    for s in sm_serial(p, 0): t(s)
    for qb in range(2):
        for j in range(4): t("v_sub_f32 v%d, v%d, v%d" % (St(p, 1, qb) + j, St(p, 1, qb) + j, m + qb))
        for kb in range(2):
            for j in range(4): t("v_mov_b32 v%d, v%d" % (Ct(kb, qb) + j, V_NEGM + qb))
    for l in t.lines: sc.at(63, l.strip())
    sc.emit(a)

def body_idle(a, p, loop):
    sc = Sched([None] * 64)
    ring_fixed(sc, p, useK=False, useV=False, loop=loop)
    sc.emit(a)

def rescale_sub(a, p):
    cur, nxt = 1 - p, p
    a.label("AT_rescale%d" % p)
    a("s_nop 7")
    for qb in range(2):
        m = V_T; f = V_T + 1
        s0, s1 = St(cur, 0, qb), St(cur, 1, qb)
        a("v_max3_f32 v%d, v%d, v%d, v%d" % (m, s0, s0 + 1, s0 + 2))
        a("v_max3_f32 v%d, v%d, v%d, v%d" % (m, m, s0 + 3, s1))
        a("v_max3_f32 v%d, v%d, v%d, v%d" % (m, m, s1 + 1, s1 + 2))
        a("v_max3_f32 v%d, v%d, v%d, 0" % (m, m, s1 + 3))
        xlane_reduce(a, "v_max_f32", m, V_T + 2)
        a("v_exp_f32 v%d, -v%d" % (f, m))
        a("v_sub_f32 v%d, v%d, v%d" % (V_NEGM + qb, V_NEGM + qb, m))
        a("v_mul_f32 v%d, v%d, v%d" % (V_L + qb, V_L + qb, f))
        for kb in range(2):
            for j in range(4):
                for r in (St(cur, kb, qb), St(nxt, kb, qb), Ct(kb, qb)):
                    a("v_sub_f32 v%d, v%d, v%d" % (r + j, r + j, m))
        for db in range(16):
            for j in range(4):
                a("v_mul_f32 v%d, v%d, v%d" % (Ot(db, qb) + j, Ot(db, qb) + j, f))
    for kb in range(2):
        for s in sm_serial(cur, kb): a(s)
    a("s_nop 1")
    a("s_setpc_b64 s[%d:%d]" % (S_RET2, S_RET2 + 1))

def op_acc(buf, e, qb): return V_O + 32 * buf + 4 * (2 * e + qb)
def op_flush_items(buf):
    it = []
    for qb in range(2):
        for sp in range(2):
            r = V_S[0] + 4 * (2 * qb + sp)
            for d in range(4):
                j = 2 * sp + (d >> 1); e = 2 * (d & 1)
                it.append(("v_cvt_pk_bf16_f32 v%d, v%d, v%d" % (r + d, op_acc(buf, e, qb) + j, op_acc(buf, e + 1, qb) + j), 1))
            it.append(("buffer_store_dwordx4 %s, v%d, s[12:15], s%d offen offset:%d sc1" % (vr(r), V_T2 + qb, S_ST, sp * 1024), 2))
    return it
def body_oproj(a, p, loop):
    mf = []
    for s in range(8):
        for e in range(4):
            for qb in range(2):
                d = vr(op_acc(p, e, qb))
                mf.append(MF(d, Fr(4 * s + e), ar(A_CTX + 4 * (8 * qb + s)), "0" if s == 0 else d))
    sc = Sched(mf)
    ring_fixed(sc, p, vm=16, loop=loop)
    sc.flow(op_flush_items(1 - p), 4, 40)
    sc.at(45, "s_mov_b32 s%d, s38" % S_ST)
    sc.at(45, "s_add_u32 s38, s38, 2048")
    sc.emit(a)

def subroutines(a):
    stubs = []
    ret = "s_setpc_b64 s[%d:%d]" % (S_RET, S_RET + 1)
    def looped(name, fn):
        a.label("AT_%s" % name)
        a("s_bitcmp1_b32 s%d, 0" % S_G3)
        a("s_cbranch_scc0 AT_%s_odd" % name)
        a(".p2align 4")
        a.label("AT_%s_even" % name)
        fn(0, "s_cbranch_scc1 AT_%s_ret" % name)
        a.label("AT_%s_odd" % name)
        fn(1, "s_cbranch_scc0 AT_%s_even" % name)
        a.label("AT_%s_ret" % name)
        a(ret)
    def single(name, fn):
        a.label("AT_%s" % name)
        a("s_bitcmp1_b32 s%d, 0" % S_G3)
        a("s_cbranch_scc0 AT_%s_odd" % name)
        fn(0); a(ret)
        a.label("AT_%s_odd" % name)
        fn(1); a(ret)
    single("qkfirst", lambda p: body_qkfirst(a, p))
    looped("full", lambda p, l: print("full overflow", body_full(a, p, l, stubs)))
    single("pvlast", lambda p: body_pvlast(a, p, stubs))
    looped("idle", lambda p, l: body_idle(a, p, l))
    looped("oproj", lambda p, l: body_oproj(a, p, l))
    for lab, p, back in stubs:
        a.label(lab)
        a("s_call_b64 s[%d:%d], AT_rescale%d" % (S_RET2, S_RET2 + 1, p))
        a("s_branch %s" % back)
    rescale_sub(a, 0); rescale_sub(a, 1)

def call(a, name): a("s_call_b64 s[%d:%d], AT_%s" % (S_RET, S_RET + 1, name))
def run_k(a, name, k):
    a("s_add_u32 s%d, s%d, %d" % (S_END, S_G3, k))
    call(a, name)
def run_n(a, name, cnt):
    sk = a.newlabel("skip")
    a("s_cmp_lt_i32 s%d, 1" % cnt)
    a("s_cbranch_scc1 %s" % sk)
    a("s_add_u32 s%d, s%d, s%d" % (S_END, S_G3, cnt))
    call(a, name)
    a.label(sk)

def cinit(a, masked, zero):
    if masked: a("v_mov_b32 v%d, 0x%x" % (V_T, NEG))
    for kb in range(2):
        for qb in range(2):
            base = "0" if zero else "v%d" % (V_NEGM + qb)
            for j in range(4):
                r = Ct(kb, qb) + j
                if masked and kb == qb: a("v_cndmask_b32 v%d, %s, v%d, s[%d:%d]" % (r, base, V_T, S_MASK + 2 * j, S_MASK + 2 * j + 1))
                elif masked and kb > qb: a("v_mov_b32 v%d, v%d" % (r, V_T))
                elif zero: a("v_mov_b32 v%d, 0" % r)
def zero_o(a):
    for k in range(64): a("v_mov_b64 %s, 0" % vr(V_O + 2 * k, 2))

def tab_seg(a, startK, startV, base, stride, cnt1, lag, first=False):
    t = V_T
    a("v_subrev_u32 v%d, %s, v2" % (t, startK))
    a("v_min_i32 v%d, %s, v%d" % (t + 1, cnt1, t))
    a("v_subrev_u32 v%d, %d, v%d" % (t + 2, lag, t))
    a("v_max_i32 v%d, 0, v%d" % (t + 2, t + 2))
    a("v_min_i32 v%d, %s, v%d" % (t + 2, cnt1, t + 2))
    a("v_mul_i32_i24 v%d, %d, v%d" % (t + 1, stride, t + 1))
    a("v_mul_i32_i24 v%d, %d, v%d" % (t + 2, stride, t + 2))
    a("v_add_u32 v%d, %s, v%d" % (t + 1, base, t + 1))
    a("v_add_u32 v%d, %s, v%d" % (t + 2, base, t + 2))
    a("v_add_u32 v%d, 0x4000, v%d" % (t + 2, t + 2))
    if first:
        a("v_mov_b32 v%d, v%d" % (V_TABK, t + 1))
        a("v_mov_b32 v%d, v%d" % (V_TABV, t + 2))
    else:
        a("v_cmp_le_i32 vcc, 0, v%d" % t)
        a("s_nop 1")
        a("v_cndmask_b32 v%d, v%d, v%d, vcc" % (V_TABK, V_TABK, t + 1))
        a("v_cmp_le_i32 vcc, %d, v%d" % (startV, t))
        a("s_nop 1")
        a("v_cndmask_b32 v%d, v%d, v%d, vcc" % (V_TABV, V_TABV, t + 2))

def tables(a):
    a("s_lshl_b32 s86, s%d, 2" % S_I)
    a("s_sub_u32 s%d, %d, s86" % (S_N1, 64 - XA))
    a("s_add_u32 s%d, s86, 4" % S_N2)
    a("s_cmp_eq_u32 s%d, 7\ns_cselect_b32 s%d, 0, s%d\ns_cselect_b32 s87, 36, %d" % (S_I, S_N1, S_N1, XA))
    a("s_cmp_eq_u32 s%d, 1\ns_cselect_b32 s%d, s87, s%d\ns_cselect_b32 s%d, 0, s%d\ns_cselect_b32 s87, 0, %d" % (S_ROLE, S_N1, S_N1, S_N2, S_N2, XA * 32768))
    a("s_mov_b32 s%d, 0x%x" % (S_THR, f2u(65536.0)))
    a("s_lshl_b32 s88, s%d, 21" % S_HEAD)
    if KV: a("s_add_u32 s88, s88, %d" % KV)
    a("s_add_u32 s25, s88, s87")
    a("s_sub_u32 s89, s%d, 1" % S_N1)
    tab_seg(a, "0", 0, "s25", 32768, "s89", 1, first=True)
    a("s_add_u32 s86, s86, 3")
    a("s_lshl_b32 s86, s86, 15")
    a("s_add_u32 s25, s88, s86")
    a("s_sub_u32 s89, s%d, 1" % S_N2)
    tab_seg(a, "s%d" % S_N1, 1, "s25", -32768, "s89", 1)
    a("s_add_u32 s69, s%d, s%d" % (S_N1, S_N2))
    a("s_add_u32 s69, s69, 1")
    a("s_mul_i32 s25, s%d, %d" % (S_HEAD, WBLK))
    a("s_add_u32 s25, s25, %d" % WOP)
    tab_seg(a, "s69", 0, "s25", 32768, "6", 0)
    a("s_and_b32 s86, s68, 1")
    a("s_lshl_b32 s%d, s67, 1" % S_R)
    a("s_add_u32 s%d, s%d, s86" % (S_R, S_R))
    a("s_lshr_b32 s%d, s68, 1" % S_M)
    a("s_add_u32 s69, s69, 8")
    a("s_and_b32 s69, s69, -2")
    a("s_min_u32 s25, s%d, 13" % S_M)
    a("s_mul_i32 s25, s25, %d" % WBLK)
    a("s_add_u32 s25, s25, %d" % W13P)
    tab_seg(a, "s69", 0, "s25", 32768, "6", 0)
    a("v_lshrrev_b32 v%d, 4, v2" % V_T)
    a("v_lshlrev_b32 v%d, 2, v%d" % (V_T, V_T))
    a("v_and_b32 v%d, 15, v2" % (V_T + 1))
    for j in range(4):
        a("v_add_u32 v%d, %d, v%d" % (V_T + 2, j, V_T))
        a("v_cmp_gt_u32 s[%d:%d], v%d, v%d" % (S_MASK + 2 * j, S_MASK + 2 * j + 1, V_T + 2, V_T + 1))

class Items:
    def __init__(self): self.it = []
    def __call__(self, s): self.it.append((s, min(2, 1 + s.count("\n"))))

def qproj(a, st, vm):
    a("v_mov_b32 v%d, v1" % V_RDK)
    a("v_add_u32 v%d, 0x10000, v1" % V_RDV)
    a("v_add_u32 v13, 0x20000, v1")
    a("s_lshl_b32 s29, s%d, 7" % S_HEAD)
    a("s_add_u32 s29, s29, %d" % F_KV)
    a("s_lshl_b32 s3, s28, 3")
    a("s_add_u32 s3, s3, s27")
    a("s_lshl_b32 s3, s3, 2")
    a("s_add_u32 s28, s29, s3")
    a("v_mov_b32 v14, 1")
    a(vm.see("WAITVM XN,Q0,Q1,Q2,Q3,Q4"))
    a("s_barrier")
    first_reads(a, V_RDK, 0)
    st.rt(a, "q_start")
    def src(c, h):
        if c > 6: return None
        if c == 4: return (13, h * 16384)
        return ((V_RDK, V_RDV)[h], (c if c < 4 else c - 5) * 16384)
    tb = Items(); tables(tb)
    for c in range(7):
        mf = []
        for h in range(2):
            s = 2 * c + h
            for n in range(16):
                for qb in range(2):
                    d = ar(4 * (2 * n + qb))
                    mf.append(MF(d, Fr(16 * h + n), xn_reg(qb, s), "0" if s == 0 else d))
        sc = Sched(mf)
        bar = {4: "WAITVM Q5", 5: "WAITVM Q6", 6: ""}.get(c)
        frag_reads(sc, src(c, 0), src(c, 1), src(c + 1, 0), bar)
        if c in (1, 2):
            sc.at(-1, "s_barrier", last=True)
            for h in range(2):
                p0, ld, _ = dmaQ(c + 4, h)
                g0 = 3 + 24 * h
                sc.at(g0 - 2, p0[0]); sc.at(g0 - 2, p0[1])
                for k in range(4): sc.at(g0 + (0, 6, 10, 16)[k], ld[k], 2)
        if c == 4: sc.at(49, "buffer_store_dword v14, v31, s[12:15], s28 offen sc1", 2)
        if c == 0: sc.flow(tb.it[:len(tb.it) // 2], 0, 62)
        if c == 3: sc.flow(tb.it[len(tb.it) // 2:], 0, 62)
        sc.emit(a, vm)

def gateup(a):
    for c in range(7):
        mf = []
        for h in range(2):
            s = 2 * c + h
            for n in range(16):
                for qb in range(2):
                    d = vr(Ot(n, qb))
                    mf.append(MF(d, Fr(16 * h + n), ar(4 * (14 * qb + s)), "0" if s == 0 else d))
        sc = Sched(mf)
        ring_fixed(sc, c & 1, vm={4: 8, 5: 0, 6: 0}.get(c, 12), dma=(c < 4), nxt=(c < 6))
        sc.emit(a)

def pair_off(a, dst, base, per_wave):
    a("s_lshl_b32 s%d, s%d, 3" % (dst, S_HEAD))
    a("s_add_u32 s%d, s%d, s%d" % (dst, dst, S_I))
    a("s_lshl_b32 s%d, s%d, 2" % (dst, dst))
    a("s_add_u32 s%d, s%d, s66" % (dst, dst))
    a("s_mul_i32 s%d, s%d, %d" % (dst, dst, per_wave))
    a("s_add_u32 s%d, s%d, %d" % (dst, dst, base))
def pair_flag(a, dst, base):
    a("s_lshl_b32 s%d, s%d, 3" % (dst, S_HEAD))
    a("s_add_u32 s%d, s%d, s%d" % (dst, dst, S_I))
    a("s_lshl_b32 s%d, s%d, 7" % (dst, dst))
    a("s_add_u32 s%d, s%d, %d" % (dst, dst, base))

def q_epilogue(a):
    n = 0
    for qb in range(2):
        for sd in range(8):
            cb, sp = sd >> 1, sd & 1
            r = 32 + 12 * (n % 4); n += 1
            for d in range(4):
                j = 2 * sp + (d >> 1); e = 2 * (d & 1)
                a("v_accvgpr_read_b32 v%d, a%d" % (r + 2 * d, 4 * (2 * (4 * cb + e) + qb) + j))
                a("v_accvgpr_read_b32 v%d, a%d" % (r + 2 * d + 1, 4 * (2 * (4 * cb + e + 1) + qb) + j))
            for d in range(4): a("v_cvt_pk_bf16_f32 v%d, v%d, v%d" % (r + 8 + d, r + 2 * d, r + 2 * d + 1))
            for d in range(4): a("v_accvgpr_write_b32 a%d, v%d" % (A_Q + 4 * (8 * qb + sd) + d, r + 8 + d))

def l_total(a): xlane_reduce2(a, "v_add_f32", V_L, V_L + 1, V_T)

def normalize(a, dest, soff=None, f0=0, f1=16):
    if f0 == 0:
        for qb in range(2): a("v_rcp_f32 v%d, v%d" % (V_T2 + qb, V_L + qb))
        a("s_nop 0")
    for f in range(f0, f1):
        qb, s = f >> 3, f & 7
        r = V_S[0] + 4 * (f & 7)
        for h in range(2):
            o = Ot(2 * s + h, qb)
            for j in range(4): a("v_mul_f32 v%d, v%d, v%d" % (o + j, o + j, V_T2 + qb))
        for h in range(2):
            o = Ot(2 * s + h, qb)
            a("v_cvt_pk_bf16_f32 v%d, v%d, v%d" % (r + 2 * h, o, o + 1))
            a("v_cvt_pk_bf16_f32 v%d, v%d, v%d" % (r + 2 * h + 1, o + 2, o + 3))
        if dest == "acc":
            for d in range(4): a("v_accvgpr_write_b32 a%d, v%d" % (A_CTX + 4 * f + d, r + d))
        else:
            if f % 4 == 0 and f: a("s_add_u32 s%d, s%d, 4096" % (soff, soff))
            a("buffer_store_dwordx4 %s, v1, s[12:15], s%d offen offset:%d sc1" % (vr(r), soff, (f % 4) * 1024))

def partner_loads(a):
    pair_off(a, 25, OPX, 17408)
    for f in range(17):
        if f % 4 == 0 and f: a("s_add_u32 s25, s25, 4096")
        a("buffer_load_dwordx4 %s, v1, s[12:15], s25 offen offset:%d sc1" % (ar(A_SP + 4 * f) if f < 16 else vr(V_X), (f % 4) * 1024))

def combine(a):
    al, be = V_T2, V_T2 + 2
    for qb in range(2):
        t = V_T
        a("v_min_f32 v%d, v%d, v%d" % (t, V_NEGM + qb, V_X + qb))
        a("v_sub_f32 v%d, v%d, v%d" % (t + 1, t, V_NEGM + qb))
        a("v_sub_f32 v%d, v%d, v%d" % (t + 2, t, V_X + qb))
        a("v_exp_f32 v%d, v%d" % (t + 1, t + 1))
        a("v_exp_f32 v%d, v%d" % (t + 2, t + 2))
        a("s_nop 0")
        a("v_mul_f32 v%d, v%d, v%d" % (t + 2, t + 2, V_X + 2 + qb))
        a("v_fma_f32 v%d, v%d, v%d, v%d" % (t, t + 1, V_L + qb, t + 2))
        a("v_rcp_f32 v%d, v%d" % (t, t))
        a("s_nop 0")
        a("v_mul_f32 v%d, v%d, v%d" % (al + qb, t + 1, t))
        a("v_mul_f32 v%d, v%d, v%d" % (be + qb, t + 2, t))
    for f in range(16):
        qb, s = f >> 3, f & 7
        for d in range(4):
            o = Ot(2 * s + (d >> 1), qb) + 2 * (d & 1)
            t = 32 + 4 * d
            a("v_accvgpr_read_b32 v%d, a%d" % (t + 2, A_SP + 4 * f + d))
            a("v_mul_f32 v%d, v%d, v%d" % (o, o, al + qb))
            a("v_mul_f32 v%d, v%d, v%d" % (o + 1, o + 1, al + qb))
            a("v_lshlrev_b32 v%d, 16, v%d" % (t, t + 2))
            a("v_and_b32 v%d, 0xffff0000, v%d" % (t + 1, t + 2))
            a("v_fma_f32 v%d, v%d, v%d, v%d" % (o, t, be + qb, o))
            a("v_fma_f32 v%d, v%d, v%d, v%d" % (o + 1, t + 1, be + qb, o + 1))
            a("v_cvt_pk_bf16_f32 v%d, v%d, v%d" % (t, o, o + 1))
            a("v_accvgpr_write_b32 a%d, v%d" % (A_CTX + 4 * f + d, t))

def attention(a, st):
    st.rt(a, "q_end")
    poll(a, 29, 16, V_T, "fkv")
    st.rt(a, "kv_ready")
    ring_restart(a, 2)
    q_epilogue(a)
    zero_o(a)
    a("s_cmp_eq_u32 s%d, 7" % S_I)
    a("s_cbranch_scc1 AT_i7")
    cinit(a, False, True)
    a("s_cmp_eq_u32 s%d, 0" % S_ROLE)
    a("s_cbranch_scc1 AT_B")
    pair_off(a, 25, QX, 16384)
    for f in range(16):
        if f % 4 == 0 and f: a("s_add_u32 s25, s25, 4096")
        a("buffer_store_dwordx4 %s, v1, s[12:15], s25 offen offset:%d sc1" % (ar(A_Q + 4 * f), (f % 4) * 1024))
    a("s_waitcnt vmcnt(32)")
    a("s_barrier")
    first_reads(a, V_RDK, 0)
    st.rt(a, "at_start")
    call(a, "qkfirst")
    pair_flag(a, 25, F_Q)
    a("v_mov_b32 v%d, 1" % V_T)
    a("s_waitcnt vmcnt(8)")
    a("s_barrier")
    a("buffer_store_dword v%d, v31, s[12:15], s25 offen sc1" % V_T)
    if st.on:
        run_k(a, "full", XA - 4 - 28)
        st.cyc(a, "f0_c"); st.rt(a, "f0")
        run_k(a, "full", 28)
        st.cyc(a, "f1_c"); st.rt(a, "f1")
    else:
        run_k(a, "full", XA - 4)
    pair_flag(a, 25, F_O)
    a("buffer_load_dword v%d, off, s[12:15], s25 sc1" % (V_X + 4))
    run_k(a, "full", 2)
    a("v_readfirstlane_b32 s39, v%d" % (V_X + 4))
    a("s_cmp_eq_u32 s39, 1")
    a("s_cbranch_scc0 AT_A_late")
    partner_loads(a)
    run_k(a, "full", 1)
    call(a, "pvlast")
    st.rt(a, "seg_done")
    a("s_branch AT_A_comb")
    a.label("AT_A_late")
    run_k(a, "full", 1)
    call(a, "pvlast")
    st.rt(a, "seg_done")
    pair_flag(a, 25, F_O)
    poll(a, 25, 1, V_T, "fo")
    partner_loads(a)
    a("s_waitcnt vmcnt(0)")
    a.label("AT_A_comb")
    l_total(a)
    a("s_waitcnt vmcnt(16)")
    combine(a)
    a("s_branch AT_oproj_start")
    a.label("AT_i7")
    a("s_waitcnt vmcnt(16)")
    a("s_barrier")
    first_reads(a, V_RDK, 0)
    st.rt(a, "at_start")
    a("s_cmp_eq_u32 s%d, 1" % S_ROLE)
    a("s_cbranch_scc1 AT_A7")
    run_n(a, "idle", 66)
    a("s_branch AT_seg2")
    a.label("AT_A7")
    cinit(a, False, True)
    a("s_branch AT_seg1")
    a.label("AT_B")
    for k in range(64): a("v_accvgpr_mov_b32 a%d, a%d" % (A_SP + k, A_Q + k))
    pair_flag(a, 25, F_Q)
    poll(a, 25, 1, V_T, "fq")
    pair_off(a, 25, QX, 16384)
    for f in range(16):
        if f % 4 == 0 and f: a("s_add_u32 s25, s25, 4096")
        a("buffer_load_dwordx4 %s, v1, s[12:15], s25 offen offset:%d sc1" % (ar(A_Q + 4 * f), (f % 4) * 1024))
    a("s_barrier")
    first_reads(a, V_RDK, 0)
    a("s_waitcnt vmcnt(0)")
    st.rt(a, "at_start")
    a.label("AT_seg1")
    assert XA <= 35
    call(a, "qkfirst")
    a("s_add_u32 s25, s%d, s66" % S_N1)
    a("s_sub_u32 s25, s25, 5")
    run_n(a, "full", 25)
    cinit(a, True, False)
    run_k(a, "full", 1)
    call(a, "pvlast")
    st.rt(a, "seg1_done")
    a("s_nop 3")
    l_total(a)
    a("s_cmp_eq_u32 s%d, 0" % S_ROLE)
    a("s_cbranch_scc1 AT_B_gap")
    st.rt(a, "seg_done")
    normalize(a, "acc")
    a("s_sub_u32 s25, 3, s66")
    run_n(a, "idle", 25)
    a("s_branch AT_oproj_start")
    a.label("AT_B_gap")
    pair_off(a, 25, OPX, 17408)
    normalize(a, "mem", 25, 0, 11)
    run_k(a, "idle", 1)
    normalize(a, "mem", 25, 11, 16)
    a("s_add_u32 s25, s25, 4096")
    a("buffer_store_dwordx4 %s, v1, s[12:15], s25 offen sc1" % vr(V_NEGM))
    for k in range(64): a("v_accvgpr_mov_b32 a%d, a%d" % (A_Q + k, A_SP + k))
    zero_o(a)
    run_k(a, "idle", 1)
    a.label("AT_seg2")
    cinit(a, True, True)
    call(a, "qkfirst")
    only_wave(a, 3, lambda: (pair_flag(a, 25, F_O), set_flag(a, 25, V_T)))
    a("s_sub_u32 s25, s%d, s66" % S_N2)
    a("s_sub_u32 s25, s25, 1")
    run_n(a, "full", 25)
    call(a, "pvlast")
    st.rt(a, "seg_done")
    a("s_nop 3")
    l_total(a)
    normalize(a, "acc")
    a.label("AT_oproj_start")
    st.rt(a, "oproj_start")
    a("s_mul_i32 s38, s%d, %d" % (S_HEAD, 128 * 14336))
    a("s_mul_i32 s3, s%d, %d" % (S_RW, 2 * 14336))
    a("s_add_u32 s38, s38, s3")
    a("s_add_u32 s38, s38, %d" % PO)
    a("s_mov_b32 s%d, %d" % (S_ST, WSZ))
    a("v_mov_b32 v%d, v1" % V_T2)
    a("v_add_u32 v%d, 14336, v1" % (V_T2 + 1))
    run_k(a, "oproj", 7)
    a("s_nop 5")
    a("s_bitcmp1_b32 s%d, 0" % S_G3)
    a("s_cbranch_scc0 AT_fl0")
    for s, c in op_flush_items(1): a(s)
    a("s_branch AT_fld")
    a.label("AT_fl0")
    for s, c in op_flush_items(0): a(s)
    run_k(a, "idle", 1)
    a.label("AT_fld")
    st.rt(a, "oproj_end")
```

```python
from asmlib import *
import struct, math
def f2u(x): return struct.unpack("<I", struct.pack("<f", x))[0]

KV   = 0x0000000
XN   = 0x2000000
WQP  = 0x2200000
WOP  = 0x2600000
W13P = 0x2A00000
W2P  = 0x2E00000
QX   = 0x3000000
OPX  = 0x3800000
PO   = 0x4200000
HB   = 0x5E00000
HN   = 0x6000000
ACT  = 0x6200000
FLG  = 0x6A00000
STAMP = 0x0F000000
WSZ  = 0x10000000
WBLK = 229376

F_KV = FLG
F_Q  = FLG + 0x1000
F_O  = FLG + 0x6000
F_PO = FLG + 0xB000
F_H  = FLG + 0xC000
F_A  = FLG + 0xD000

S_PX, S_PC, S_PWQ, S_PWUK, S_PWUV, S_PWO, S_PBX, S_PW1, S_PW3, S_PW2, S_POUT, S_PDBG, S_PWS = range(40, 66, 2)
def vr(b, n=4): return "v[%d:%d]" % (b, b + n - 1)
def ar(b, n=4): return "a[%d:%d]" % (b, b + n - 1)
def MF(d, a_, b_, c): return "v_mfma_f32_16x16x32_bf16 %s, %s, %s, %s" % (d, a_, b_, c)

class Stamps:
    def __init__(self, on):
        self.on = on; self.names = []
    def idx(self, name):
        if name not in self.names: self.names.append(name)
        assert len(self.names) <= 32
        return self.names.index(name)
    def rt(self, a, name, op="s_memrealtime"):
        if not self.on: return
        a("%s s[100:101]" % op)
        a("s_waitcnt lgkmcnt(0)")
        a("v_writelane_b32 v3, s100, %d" % self.idx(name))
    def cyc(self, a, name): self.rt(a, name, "s_memtime")
    def flush(self, a):
        if not self.on: return
        a("s_lshl_b32 s3, s2, 2")
        a("s_add_u32 s3, s3, s66")
        a("s_lshl_b32 s3, s3, 7")
        a("s_add_u32 s3, s3, %d" % STAMP)
        a("v_lshlrev_b32 v4, 2, v2")
        a("s_mov_b64 exec, 0xffffffff")
        a("buffer_store_dword v3, v4, s[12:15], s3 offen")
        a("s_mov_b64 exec, -1")

def xlane_reduce(a, op, x, t):
    a("v_mov_b32 v%d, v%d" % (t, x))
    a("s_nop 1")
    a("v_permlane16_swap_b32 v%d, v%d" % (x, t))
    a("s_nop 1")
    a("%s v%d, v%d, v%d" % (op, x, x, t))
    a("v_mov_b32 v%d, v%d" % (t, x))
    a("s_nop 1")
    a("v_permlane32_swap_b32 v%d, v%d" % (x, t))
    a("s_nop 1")
    a("%s v%d, v%d, v%d" % (op, x, x, t))

def xlane_reduce2(a, op, x, y, t):
    for pl in ("v_permlane16_swap_b32", "v_permlane32_swap_b32"):
        a("v_mov_b32 v%d, v%d" % (t, x))
        a("v_mov_b32 v%d, v%d" % (t + 1, y))
        a("s_nop 0")
        a("%s v%d, v%d" % (pl, x, t))
        a("%s v%d, v%d" % (pl, y, t + 1))
        a("s_nop 0")
        a("%s v%d, v%d, v%d" % (op, x, x, t))
        a("%s v%d, v%d, v%d" % (op, y, y, t + 1))

def poll(a, addr_sgpr, nflags, vt, name, val=1, srd="s[12:15]"):
    lp = a.newlabel(name + "_poll"); dn = a.newlabel(name + "_pdone")
    a("v_min_u32 v%d, %d, v2" % (vt, nflags - 1))
    a("v_lshlrev_b32 v%d, 2, v%d" % (vt, vt))
    a("s_mov_b32 s3, 0x20000")
    a.label(lp)
    a("buffer_load_dword v%d, v%d, %s, s%d offen sc1" % (vt + 1, vt, srd, addr_sgpr))
    a("s_waitcnt vmcnt(0)")
    a("v_cmp_ne_u32 vcc, %d, v%d" % (val, vt + 1))
    a("s_sub_u32 s3, s3, 1")
    a("s_cbranch_scc1 %s" % dn)
    a("s_nop 1")
    a("s_cbranch_vccnz %s" % lp)
    a.label(dn)

def set_flag(a, addr_sgpr, vt, val=1):
    a("v_mov_b32 v%d, s%d" % (vt, addr_sgpr))
    a("v_mov_b32 v%d, %d" % (vt + 1, val))
    a("s_mov_b64 exec, 1")
    a("buffer_store_dword v%d, v%d, s[12:15], 0 offen sc1" % (vt + 1, vt))
    a("s_mov_b64 exec, -1")

def only_wave(a, w, fn):
    sk = a.newlabel("ow")
    a("s_cmp_lg_u32 s66, %d" % w)
    a("s_cbranch_scc1 %s" % sk)
    fn()
    a.label(sk)

class Sched:
    def __init__(self, mf):
        self.mf = mf
        self.items = {g: [] for g in range(-1, 64)}
        self.tail = {g: [] for g in range(-1, 64)}
        self.free = {g: (2 if (g >= 0 and mf[g] is not None) else 99) for g in range(-1, 64)}
    def at(self, g, s, cost=1, last=False):
        (self.tail if last else self.items)[g].append(s)
        self.free[g] -= cost
        return g
    def first_free(self, g0, cost=1, g1=63):
        g = g0
        while g < g1 and self.free[g] < cost: g += 1
        return g
    def flow(self, stream, g0, g1):
        tot = float(sum(c for _, c in stream)); done = 0; pos = g0
        for s, c in stream:
            while pos < g1:
                if self.free[pos] >= c and (pos - g0) / float(g1 - g0 + 1) + 1e-9 >= done / tot - 0.06: break
                pos += 1
            self.at(pos, s, c)
            done += c
    def seq(self):
        out = []
        for g in range(-1, 64):
            if g >= 0 and self.mf[g] is not None: out.append(self.mf[g])
            out += self.items[g] + self.tail[g]
        return out
    def emit(self, a, vm=None):
        for s in self.seq():
            if vm is not None: s = vm.see(s)
            if s: a(s)
    def overflow(self):
        return sum(-f for f in self.free.values() if f < 0)

class VM:
    def __init__(self): self.ops = []
    def see(self, s):
        if s.startswith("WAITVM"):
            p = s.split(None, 2)
            tags = p[1].split(",")
            idx = [i for i, t in enumerate(self.ops) if t in tags]
            extra = " " + p[2] if len(p) > 2 else ""
            if not idx: return ("s_waitcnt" + extra) if extra else ""
            n = len(self.ops) - 1 - max(idx)
            assert n <= 63, n
            return "s_waitcnt vmcnt(%d)%s" % (n, extra)
        if s.startswith("buffer_") or s.startswith("global_"):
            tag = None
            if "@" in s:
                s, tag = s.split("@"); s = s.strip(); tag = tag.strip()
            self.ops.append(tag)
        return s
```

```python
from common import *
QSCALE = math.log2(math.e) / 16.0
S_HEAD, S_I, S_ROLE, S_QB = 30, 31, 32, 33
V_DMA = 4
V_F = [32, 96]
V_VA, V_VW, V_RW, V_RA, V_RAC = 232, 240, 244, 252, 254
LDS_A = 65536; LDS_END = 163840
U_SRD = [80, 84, 88]; U_SRC = [92, 93, 94]; U_DST = [95, 96, 97]; U_STR = [69, 98, 99]
U_VOFF = [25, 26, 27]; U_L = [196, 212, 160]
SRD_X = 72
DMAFL = ""

def xn_reg(qb, s):
    f = 14 * qb + s
    return vr(32 + 4 * f) if f < 16 else vr(160 + 4 * (f - 16))

def pack_decode(a, slot):
    R = U_SRD[slot]; sS = U_SRC[slot]; sD = U_DST[slot]; sStride = U_STR[slot]
    L = lambda n: "P0_%s_%d" % (n, slot)
    a("s_lshl_b32 s70, s2, 2")
    a("s_add_u32 s70, s70, s66")
    if slot: a("s_add_u32 s70, s70, %d" % (1024 * slot))
    a("s_mov_b64 vcc, 0")
    lo, hi = 1024 * slot, 1024 * slot + 1023
    cases = [("wq", 0, 896), ("wo", 896, 1792), ("w13", 1792, 2576), ("w2", 2576, 2968), ("none", 2968, 4096)]
    cases = [c for c in cases if c[2] > lo and c[1] <= hi]
    u, x, y, t0, t1 = 71, 36, 38, 39, 3
    for n, (nm, b, e) in enumerate(cases):
        last = n == len(cases) - 1
        if not last:
            a("s_cmp_ge_u32 s70, %d" % e)
            a("s_cbranch_scc1 %s" % L("after_" + nm))
        a("s_sub_u32 s%d, s70, %d" % (u, b))
        def base(p, size): a("s_mov_b32 s%d, s%d\ns_mov_b32 s%d, s%d\ns_mov_b32 s%d, %d" % (R, p, R + 1, p + 1, R + 2, size))
        if nm == "wq":
            base(S_PWQ, 448 * 8192)
            a("s_mov_b32 s%d, 8192" % sStride)
            a("s_lshr_b32 s%d, s%d, 6" % (x, u))
            a("s_and_b32 s%d, s%d, 63" % (y, u))
            a("s_lshl_b32 s%d, s%d, 18" % (t0, x))
            a("s_lshl_b32 s%d, s%d, 7" % (t1, y))
            a("s_add_u32 s%d, s%d, s%d" % (sS, t0, t1))
            a("s_lshr_b32 s%d, s%d, 2" % (t0, y))
            a("s_mul_i32 s%d, s%d, %d" % (t0, t0, WBLK))
            a("s_lshl_b32 s%d, s%d, 14" % (t1, x))
            a("s_add_u32 s%d, s%d, s%d" % (t0, t0, t1))
            a("s_and_b32 s%d, s%d, 3" % (t1, y))
            a("s_lshl_b32 s%d, s%d, 12" % (t1, t1))
            a("s_add_u32 s%d, s%d, s%d" % (t0, t0, t1))
            a("s_add_u32 s%d, s%d, %d" % (sD, t0, WQP))
        elif nm in ("wo", "w2"):
            base(S_PWO if nm == "wo" else S_PW2, (4096 if nm == "wo" else 1792) * 896)
            a("s_mov_b32 s%d, 896" % sStride)
            a("s_mul_i32 s%d, s%d, 9363" % (x, u))
            a("s_lshr_b32 s%d, s%d, 16" % (x, x))
            a("s_mul_i32 s%d, s%d, 7" % (y, x))
            a("s_sub_u32 s%d, s%d, s%d" % (y, u, y))
            a("s_mul_i32 s%d, s%d, %d" % (t0, x, 32 * 896))
            a("s_lshl_b32 s%d, s%d, 7" % (t1, y))
            a("s_add_u32 s%d, s%d, s%d" % (sS, t0, t1))
            if nm == "wo":
                a("s_lshr_b32 s%d, s%d, 3" % (t0, x))
                a("s_mul_i32 s%d, s%d, %d" % (t0, t0, WBLK))
                a("s_lshl_b32 s%d, s%d, 15" % (t1, y))
                a("s_add_u32 s%d, s%d, s%d" % (t0, t0, t1))
                a("s_and_b32 s%d, s%d, 7" % (t1, x))
                a("s_lshl_b32 s%d, s%d, 12" % (t1, t1))
                a("s_add_u32 s%d, s%d, s%d" % (t0, t0, t1))
                a("s_add_u32 s%d, s%d, %d" % (sD, t0, WOP))
            else:
                a("s_mul_i32 s%d, s%d, %d" % (t0, y, WBLK))
                a("s_lshl_b32 s%d, s%d, 12" % (t1, x))
                a("s_add_u32 s%d, s%d, s%d" % (t0, t0, t1))
                a("s_add_u32 s%d, s%d, %d" % (sD, t0, W2P))
                a("s_mov_b64 vcc, -1")
        elif nm == "w13":
            a("s_cmp_ge_u32 s%d, 392" % u)
            a("s_cselect_b32 s%d, s%d, s%d" % (R, S_PW3, S_PW1))
            a("s_cselect_b32 s%d, s%d, s%d" % (R + 1, S_PW3 + 1, S_PW1 + 1))
            a("s_cselect_b32 s%d, 392, 0" % t0)
            a("s_cselect_b32 s%d, %d, %d" % (sD, 8192, 0))
            a("s_mov_b32 s%d, %d" % (R + 2, 448 * 3584))
            a("s_mov_b32 s%d, 3584" % sStride)
            a("s_sub_u32 s%d, s%d, s%d" % (u, u, t0))
            a("s_lshr_b32 s%d, s%d, 2" % (x, u))
            a("s_mul_i32 s%d, s%d, 9363" % (x, x))
            a("s_lshr_b32 s%d, s%d, 16" % (x, x))
            a("s_mul_i32 s%d, s%d, 28" % (y, x))
            a("s_sub_u32 s%d, s%d, s%d" % (y, u, y))
            a("s_mul_i32 s%d, s%d, %d" % (t0, x, 32 * 3584))
            a("s_lshl_b32 s%d, s%d, 7" % (t1, y))
            a("s_add_u32 s%d, s%d, s%d" % (sS, t0, t1))
            a("s_lshr_b32 s%d, s%d, 1" % (t0, y))
            a("s_mul_i32 s%d, s%d, %d" % (t0, t0, WBLK))
            a("s_lshl_b32 s%d, s%d, 14" % (t1, x))
            a("s_add_u32 s%d, s%d, s%d" % (t0, t0, t1))
            a("s_and_b32 s%d, s%d, 1" % (t1, y))
            a("s_lshl_b32 s%d, s%d, 12" % (t1, t1))
            a("s_add_u32 s%d, s%d, s%d" % (t0, t0, t1))
            a("s_add_u32 s%d, s%d, s%d" % (sD, sD, t0))
            a("s_add_u32 s%d, s%d, %d" % (sD, sD, W13P))
        else:
            base(S_PW2, 0)
            a("s_mov_b32 s%d, 0" % sStride)
            a("s_mov_b32 s%d, 0" % sS)
            a("s_mov_b32 s%d, %d" % (sD, WSZ))
        if not last:
            a("s_branch %s" % L("done"))
            a.label(L("after_" + nm))
    a.label(L("done"))
    a("s_mov_b32 s%d, 0x00020000" % (R + 3))
    a("v_mul_lo_u32 v%d, v9, s%d" % (U_VOFF[slot], sStride))
    a("v_cndmask_b32 v12, v11, v10, vcc")
    a("v_add_u32 v%d, v%d, v12" % (U_VOFF[slot], U_VOFF[slot]))

def pack_load_items(slot):
    it = [("s_mul_i32 s38, s%d, 13" % U_STR[slot], 1)]
    for e in range(8):
        it.append(("buffer_load_dwordx2 %s, v%d, s[%d:%d], s%d offen @U%d" % (vr(U_L[slot] + 2 * e, 2), U_VOFF[slot], U_SRD[slot], U_SRD[slot] + 3, U_SRC[slot], slot), 2))
        if e == 3: it.append(("s_add_u32 s%d, s%d, s38" % (U_SRC[slot], U_SRC[slot]), 1))
        elif e < 7: it.append(("s_add_u32 s%d, s%d, s%d" % (U_SRC[slot], U_SRC[slot], U_STR[slot]), 1))
    return it
def pack_finish_items(slot):
    it = [("WAITVM U%d" % slot, 1)]
    vL = U_L[slot]; vO = 8
    for e in range(4):
        for d in range(4):
            it.append(("v_perm_b32 v%d, v%d, v%d, s%d" % (vO + 4 * e + d, vL + 2 * (2 * d + 1) + (e >> 1), vL + 4 * d + (e >> 1), 76 + (e & 1)), 1))
        it.append(("buffer_store_dwordx4 %s, v1, s[12:15], s%d offen offset:%d sc1" % (vr(vO + 4 * e), U_DST[slot], e * 1024), 2))
    return it

def x_own_off(a, vt, t):
    a("v_and_b32 v%d, 7, v0" % vt)
    a("v_mul_u32_u24 v%d, 896, v%d" % (vt, vt))
    a("v_lshrrev_b32 v%d, 5, v0" % t)
    a("v_lshl_add_u32 v%d, v%d, 6, v%d" % (vt, t, vt))
    a("v_bfe_u32 v%d, v0, 3, 2" % t)
    a("v_lshl_add_u32 v%d, v%d, 3, v%d" % (vt, t, vt))
def frag8_voff(a, vt, t):
    a("v_lshrrev_b32 v%d, 3, v0" % vt)
    a("v_lshlrev_b32 v%d, 8, v%d" % (vt, vt))
    a("v_and_b32 v%d, 7, v0" % t)
    a("v_lshl_add_u32 v%d, v%d, 4, v%d" % (vt, t, vt))
def frag8_soff(a, row8, base, sD1, sD2):
    a("s_lshr_b32 s%d, s%d, 1" % (sD1, row8))
    a("s_mul_i32 s%d, s%d, 14336" % (sD1, sD1))
    a("s_and_b32 s3, s%d, 1" % row8)
    a("s_lshl_b32 s3, s3, 7")
    a("s_add_u32 s%d, s%d, s3" % (sD1, sD1))
    a("s_add_u32 s%d, s%d, %d" % (sD1, sD1, base))
    a("s_add_u32 s%d, s%d, 8192" % (sD2, sD1))
    a("s_cmp_eq_u32 s66, 3")
    a("s_cselect_b32 s%d, %d, s%d" % (sD2, WSZ, sD2))

def x_load_items():
    it = []
    for k in range(7):
        it.append(("buffer_load_dwordx4 %s, v28, s[72:75], s78 offen offset:%d @X" % (vr(160 + 4 * k), 128 * k), 2))
    for k, (s, o) in enumerate(((78, 0), (78, 32), (79, 512), (79, 544))):
        it.append(("buffer_load_dwordx2 %s, v29, s[72:75], s%d offen offset:%d @X" % (vr(188 + 2 * k, 2), s, o), 2))
    return it
def ln1_items():
    a = Asm()
    vS, vQ, t = 10, 11, 12
    a("WAITVM X")
    a("v_mov_b32 v%d, 0x3f803f80" % t)
    a("v_mov_b32 v%d, 0" % vS)
    a("v_mov_b32 v%d, 0" % vQ)
    for d in range(28):
        a("v_dot2_f32_bf16 v%d, v%d, v%d, v%d" % (vS, 160 + d, t, vS))
        a("v_dot2_f32_bf16 v%d, v%d, v%d, v%d" % (vQ, 160 + d, 160 + d, vQ))
    a("s_nop 2")
    a("v_add_f32_dpp v%d, v%d, v%d row_ror:8 row_mask:0xf bank_mask:0xf" % (vS, vS, vS))
    a("v_add_f32_dpp v%d, v%d, v%d row_ror:8 row_mask:0xf bank_mask:0xf" % (vQ, vQ, vQ))
    xlane_reduce2(a, "v_add_f32", vS, vQ, t)
    a("v_mul_f32 v%d, 0x%x, v%d" % (vS, f2u(1.0 / 448), vS))
    a("v_mul_f32 v%d, 0x%x, v%d" % (vQ, f2u(1.0 / 448), vQ))
    a("v_fma_f32 v%d, -v%d, v%d, v%d" % (vQ, vS, vS, vQ))
    a("v_max_f32 v%d, 0, v%d" % (vQ, vQ))
    a("v_add_f32 v%d, 0x%x, v%d" % (vQ, f2u(1e-5), vQ))
    a("v_rsq_f32 v%d, v%d" % (vQ, vQ))
    a("s_nop 0")
    a("v_mul_f32 v%d, 0x%x, v%d" % (vQ, f2u(QSCALE), vQ))
    a("v_mul_f32 v%d, v%d, v%d" % (vS, vS, vQ))
    n1 = len(a.lines)
    for d in range(8):
        a("v_lshlrev_b32 v%d, 16, v%d" % (t, 188 + d))
        a("v_and_b32 v%d, 0xffff0000, v%d" % (t + 1, 188 + d))
        a("v_fma_f32 v%d, v%d, v%d, -v%d" % (t, t, vQ, vS))
        a("v_fma_f32 v%d, v%d, v%d, -v%d" % (t + 1, t + 1, vQ, vS))
        a("v_cvt_pk_bf16_f32 v%d, v%d, v%d" % (188 + d, t, t + 1))
    a("buffer_store_dwordx4 %s, v30, s[12:15], s70 offen sc1" % vr(188))
    a("buffer_store_dwordx4 %s, v30, s[12:15], s71 offen sc1" % vr(192))
    it = [(l.strip(), 1) for l in a.lines]
    return it[:62], it[62:]

def acc(i, j): return ar(4 * (8 * i + j))
def fa(buf, i): return vr(V_F[buf] + 4 * i)
def fw(buf, j): return V_F[buf] + 32 + 4 * j
def reads(t):
    buf = t & 1; r = []; ws = (t & 3) * 16384
    for j in range(8):
        b = fw(buf, j)
        r.append("ds_read_b64_tr_b16 v[%d:%d], v%d offset:%d" % (b, b + 1, V_RW + j, ws))
        r.append("ds_read_b64_tr_b16 v[%d:%d], v%d offset:%d" % (b + 2, b + 3, V_RW + j, ws + 2048))
        r.append("ds_read_b128 %s, v%d offset:%d" % (fa(buf, j), V_RAC + (t & 1), 2048 * j))
    return r
def dmaW(t):
    return (["s_add_u32 m0, s24, %d" % ((t & 3) * 16384)],
            ["buffer_load_dwordx4 v%d, s[8:11], s20 offen offset:%d lds @W%d" % (V_VW + j, j * 1024, t) for j in range(4)],
            ["s_add_u32 s20, s20, 262144"])
def dmaA(j, half):
    post = []
    if half == 1:
        post = ["s_add_u32 s21, s21, 128", "s_add_u32 s22, s22, 32768",
                "s_cmp_eq_u32 s22, %d\ns_cselect_b32 s22, %d, s22" % (LDS_END, LDS_A)]
    return (["s_add_u32 m0, s22, s%d" % (37 if half == 0 else 29)],
            ["buffer_load_dwordx4 v%d, s[4:7], s21 offen offset:%d lds @A%d" % (V_VA + 4 * half + k, k * 1024, j) for k in range(4)], post)
def dmaQ(c, half):
    lds = (c * 16384 + half * 65536) if c < 4 else 131072 + half * 16384 if c == 4 else ((c - 5) * 16384 + half * 65536)
    return (["s_add_u32 s39, s38, %d" % (c * 32768 + half * 16384), "s_add_u32 m0, s24, %d" % lds],
            ["buffer_load_dwordx4 v%d, s[12:15], s39 offen offset:%d lds%s @Q%d" % (V_DMA, k * 1024, DMAFL, c) for k in range(4)], [])
def xn_load_items(f0, f1):
    it = []
    for f in range(f0, f1):
        if f % 4 == 0 or f == f0: it.append(("s_add_u32 s35, s36, %d" % ((f // 4) * 4096), 1))
        it.append(("buffer_load_dwordx4 %s, v1, s[12:15], s35 offen offset:%d sc1 @XN" % (xn_reg(f // 14, f % 14), (f % 4) * 1024), 2))
    return it

def half_step(a, t, isK, vm, groups, doR=True, first=False, inject=(), wait=None, pre=()):
    buf = t & 1
    mf = []
    for i in range(8):
        for j in range(8):
            ws = vr(fw(buf, j)); c = acc(i, j); src = "0" if first else c
            mf.append(MF(c, ws, fa(buf, i), src) if isK else MF(c, fa(buf, i), ws, src))
    sc = Sched(mf)
    sc.at(-1, wait if wait else "WAITVM W%d,A%d lgkmcnt(0)" % (t + 1, (t + 1) // 2))
    sc.at(-1, "s_barrier")
    sc.free[63] -= 2
    for s, c in pre: sc.at(0, s, c)
    if doR:
        if (t + 1) & 1 == 0:
            sc.at(0, "s_add_u32 s25, s25, 32768")
            sc.at(1, "s_cmp_eq_u32 s25, %d\ns_cselect_b32 s25, %d, s25" % (LDS_END, LDS_A), 2)
            sc.at(2, "v_add_u32 v%d, s25, v%d" % (V_RAC, V_RA))
            sc.at(2, "v_add_u32 v%d, s25, v%d" % (V_RAC + 1, V_RA + 1))
        for n, s in enumerate(reads(t + 1)): sc.at(3 + 2 * n, s)
    ng = len(groups)
    if ng:
        span = 56 // ng
        step = (span // 4) & ~1
        for gi, (p0, ld, post) in enumerate(groups):
            pos = 4 + ((gi * span) & ~1)
            for s in p0: sc.at(pos - 1, s)
            for n in range(4): sc.at(pos + step * n, ld[n], 2)
            g = pos + step * 3 + 1
            for s in post:
                c = 1 + s.count("\n")
                g = sc.first_free(g, c); sc.at(g, s, c)
    if inject: sc.flow(list(inject), 3, 62)
    for s in sc.seq():
        s = vm.see(s)
        if s: a(s)
    return sc.overflow()

def std_groups(t):
    g = []
    if t + 4 <= 31: g.append(dmaW(t + 4))
    if t <= 26: g.append(dmaA((t + 5) // 2, (t + 1) & 1))
    return g

def emit_group(a, vm, g):
    for s in g[0]: a(s)
    a("s_nop 0")
    for s in g[1] + g[2]: a(vm.see(s))

def prologue(a, st, endlabel):
    a("s_cmp_ge_u32 s2, 256")
    a("s_cbranch_scc1 %s" % endlabel)
    a("""
    s_load_dwordx16 s[40:55], s[0:1], 0
    s_load_dwordx8 s[56:63], s[0:1], 64
    s_load_dwordx2 s[64:65], s[0:1], 96
    v_lshrrev_b32 v5, 6, v0
    v_and_b32 v2, 63, v0
    v_readfirstlane_b32 s66, v5
    v_lshlrev_b32 v1, 4, v2
    s_and_b32 s67, s2, 7
    s_lshr_b32 s68, s2, 3
    s_and_b32 s3, s68, 1
    s_lshl_b32 s30, s67, 1
    s_add_u32 s30, s30, s3
    s_bfe_u32 s28, s68, 0x10001
    s_lshr_b32 s27, s68, 2
    """)
    if st.on: a("v_mov_b32 v3, 0")
    a("v_lshrrev_b32 v9, 3, v2")
    a("v_lshrrev_b32 v10, 4, v2")
    a("v_and_b32 v11, 7, v2")
    a("s_lshl_b32 s3, s66, 6")
    a("v_add_u32 v9, s3, v9")
    a("v_lshlrev_b32 v9, 11, v9")
    a("v_xor_b32 v12, v11, v10")
    a("v_xor_b32 v13, 4, v12")
    a("v_lshl_add_u32 v12, v12, 4, v9")
    a("v_lshl_add_u32 v13, v13, 4, v9")
    for j in range(8):
        a("v_add_u32 v%d, %d, v%d" % (V_VA + j, j * 8 * 2048 - (j & 3) * 1024, 12 + (j & 1)))
    a("v_lshrrev_b32 v9, 5, v2")
    a("v_and_b32 v11, 31, v2")
    a("s_and_b32 s3, s66, 1")
    a("s_lshl_b32 s3, s3, 3")
    a("s_lshl_b32 s38, s66, 3")
    for j in range(4):
        a("v_add_u32 v12, %d, v9" % (2 * j))
        a("v_and_b32 v13, 3, v12")
        a("v_lshlrev_b32 v13, 1, v13")
        a("v_or_b32 v13, s3, v13")
        a("v_xor_b32 v13, v13, v11")
        a("v_add_u32 v12, s38, v12")
        a("v_lshlrev_b32 v12, 13, v12")
        a("v_lshl_add_u32 v12, v13, 4, v12")
        a("v_subrev_u32 v%d, %d, v12" % (V_VW + j, j * 1024))
    a("""
    s_mov_b32 s20, 0
    s_mov_b32 s21, 0
    s_mov_b32 s22, %d
    s_lshl_b32 s37, s66, 13
    s_add_u32 s29, s37, 4096
    s_lshl_b32 s24, s66, 12
    s_waitcnt lgkmcnt(0)
    s_lshl_b32 s3, s27, 19
    s_add_u32 s4, s42, s3
    s_addc_u32 s5, s43, 0
    s_mov_b32 s6, 524288
    s_mov_b32 s7, 0x00020000
    s_cmp_eq_u32 s28, 0
    s_cselect_b32 s8, s46, s48
    s_cselect_b32 s9, s47, s49
    s_lshl_b32 s3, s30, 9
    s_add_u32 s8, s8, s3
    s_addc_u32 s9, s9, 0
    s_sub_u32 s10, 8388608, s3
    s_mov_b32 s11, 0x00020000
    """ % LDS_A)
    st.rt(a, "start")
    vm = VM()
    for g in (dmaA(0, 0), dmaW(0), dmaA(0, 1), dmaW(1)): emit_group(a, vm, g)
    a("""
    s_mov_b32 s12, s64
    s_mov_b32 s13, s65
    s_mov_b32 s14, %d
    s_mov_b32 s15, 0x00020000
    s_mov_b32 s16, s62
    s_mov_b32 s17, s63
    s_mov_b32 s18, 256
    s_mov_b32 s19, 0x00020000
    s_mov_b32 s72, s40
    s_mov_b32 s73, s41
    s_mov_b32 s74, 1835008
    s_mov_b32 s75, 0x00020000
    s_mov_b32 s76, 0x05040100
    s_mov_b32 s77, 0x07060302
    """ % WSZ)
    a("v_add_u32 v%d, s24, v1" % V_DMA)
    a("v_and_b32 v11, 15, v2")
    a("v_lshrrev_b32 v12, 2, v11")
    a("v_and_b32 v13, 1, v10")
    a("v_lshl_or_b32 v13, v13, 2, v12")
    a("v_lshl_add_u32 v12, v10, 3, v12")
    a("v_lshlrev_b32 v12, 9, v12")
    a("v_and_b32 v14, 3, v11")
    a("v_lshl_add_u32 v12, v14, 3, v12")
    a("s_and_b32 s3, s66, 1")
    a("s_lshl_b32 s3, s3, 8")
    a("v_add_u32 v12, s3, v12")
    for nb in range(8):
        a("v_xor_b32 v14, %d, v13" % nb)
        a("v_lshl_add_u32 v%d, v14, 5, v12" % (V_RW + nb))
    a("v_lshrrev_b32 v12, 1, v11")
    a("v_xor_b32 v12, v12, v10")
    a("v_lshlrev_b32 v12, 4, v12")
    a("v_lshl_add_u32 v12, v11, 7, v12")
    a("s_lshr_b32 s3, s66, 1")
    a("s_lshl_b32 s3, s3, 14")
    a("v_add_u32 v%d, s3, v12" % V_RA)
    a("v_xor_b32 v%d, 64, v%d" % (V_RA + 1, V_RA))
    a("s_mov_b32 s25, %d" % LDS_A)
    a("v_add_u32 v%d, s25, v%d" % (V_RAC, V_RA))
    a("v_add_u32 v%d, s25, v%d" % (V_RAC + 1, V_RA + 1))
    for g in (dmaA(1, 0), dmaW(2)): emit_group(a, vm, g)
    a("s_lshl_b32 s3, s2, 8")
    a("s_add_u32 s3, s3, %d" % FLG)
    a("s_cmp_eq_u32 s66, 0")
    a("s_cselect_b32 s3, s3, %d" % WSZ)
    a("v_lshlrev_b32 v12, 2, v2")
    a("v_mov_b32 v13, 0")
    a(vm.see("buffer_store_dword v13, v12, s[12:15], s3 offen sc1"))
    a("v_lshlrev_b32 v9, 2, v10")
    a("v_lshlrev_b32 v10, 3, v11")
    a("v_and_b32 v12, 3, v11")
    a("v_lshlrev_b32 v12, 5, v12")
    a("v_lshrrev_b32 v11, 2, v11")
    a("v_lshl_add_u32 v11, v11, 3, v12")
    for sl in range(3): pack_decode(a, sl)
    for g in (dmaA(1, 1), dmaW(3), dmaA(2, 0)): emit_group(a, vm, g)
    a("v_and_b32 v28, 7, v2")
    a("v_mul_u32_u24 v28, 896, v28")
    a("v_lshrrev_b32 v12, 3, v2")
    a("v_lshl_add_u32 v28, v12, 4, v28")
    x_own_off(a, 29, 12)
    frag8_voff(a, 30, 12)
    a("s_mul_i32 s78, s2, %d" % (8 * 896))
    a("s_cmp_eq_u32 s66, 3")
    a("s_cselect_b32 s79, 1835008, s78")
    frag8_soff(a, 2, XN, 70, 71)
    a("s_bfe_u32 s%d, s68, 0x30001" % S_I)
    a("s_lshr_b32 s%d, s68, 4" % S_ROLE)
    a("s_sub_u32 s3, 15, s%d" % S_I)
    a("s_cmp_eq_u32 s%d, 1" % S_ROLE)
    a("s_cselect_b32 s%d, s3, s%d" % (S_QB, S_I))
    a("s_lshl_b32 s34, s30, 21")
    a("s_lshl_b32 s3, s27, 18")
    a("s_add_u32 s34, s34, s3")
    a("s_lshr_b32 s3, s66, 1")
    a("s_lshl_b32 s3, s3, 17")
    a("s_add_u32 s34, s34, s3")
    a("s_lshl_b32 s3, s28, 14")
    a("s_add_u32 s34, s34, s3")
    a("v_cmp_eq_u32 vcc, 0, v0")
    a("v_mov_b32 v31, %d" % WSZ)
    a("s_nop 0")
    a("v_cndmask_b32 v31, v31, 0, vcc")
    a(vm.see("WAITVM W0,A0"))
    a("s_barrier")
    for s in reads(0): a(s)
    st.rt(a, "gemm_start")
    return vm

def gemm(a, st, vm0, stubs):
    import copy
    a("s_cmp_eq_u32 s28, 0")
    a("s_cbranch_scc0 G_V")
    l1, l2 = ln1_items()
    inj = {0: x_load_items() + pack_load_items(0), 1: pack_load_items(1), 3: l1, 4: l2,
           5: pack_load_items(2) + pack_finish_items(0), 6: pack_finish_items(1)}
    vmq = None
    for isK in (True, False):
        nm = "G_K" if isK else "G_V"
        a.label(nm)
        vm = copy.deepcopy(vm0)
        ov = []
        for t in range(8):
            i_ = inj.get(t, [])
            if t == 7: i_ = [("s_nop 0", 0)] * 1 + pack_finish_items(2)
            ov.append(half_step(a, t, isK, vm, std_groups(t), first=(t == 0), inject=i_))
        a("s_mov_b32 s35, 4")
        a(".p2align 4")
        a.label(nm + "_loop")
        for t in range(8, 12):
            pre = []
            if t == 8: pre = [("s_cmp_eq_u32 s35, 3\ns_cbranch_scc1 %s_sig\n%s_sigback:" % (nm, nm), 2)]
            ov.append(half_step(a, t, isK, VM(), std_groups(t), wait="s_waitcnt vmcnt(16) lgkmcnt(0)", pre=pre))
        a("s_sub_u32 s35, s35, 1")
        a("s_cmp_lg_u32 s35, 0")
        a("s_cbranch_scc1 %s_loop" % nm)
        stubs.append("%s_sig:\nv_mov_b32 v9, 1\nbuffer_atomic_add v9, v31, s[16:19], 0 offen sc1\ns_branch %s_sigback" % (nm, nm))
        vm = VM()
        for t in range(21, 24):
            for g in std_groups(t):
                for s in g[1]: vm.see(s)
        sp = Asm(); sp.uid = 1000 + (0 if isK else 50)
        sp.label(nm + "_spin"); sp("s_mov_b32 s39, 0"); poll(sp, 39, 1, 9, nm + "cnt", val=256, srd="s[16:19]"); sp("s_branch %s_spinback" % nm)
        stubs.append(sp.text())
        setup = Asm()
        setup("s_mul_i32 s38, s%d, %d" % (S_HEAD, WBLK))
        setup("s_add_u32 s38, s38, %d" % WQP)
        setup("s_sub_u32 s36, 3, s66")
        setup("s_cmp_eq_u32 s%d, 1\ns_cselect_b32 s26, s66, s36" % S_ROLE)
        su = [(l.strip(), 1) for l in setup.lines[:3]] + [("s_cmp_eq_u32 s%d, 1\ns_cselect_b32 s26, s66, s36" % S_ROLE, 2),
              ("s_lshl_b32 s36, s%d, 2" % S_QB, 1), ("s_add_u32 s26, s26, s36", 1), ("s_mul_i32 s36, s26, %d" % (2 * 14336), 1),
              ("s_add_u32 s36, s36, %d" % XN, 1)]
        tinj = {25: [("buffer_load_dword v9, off, s[16:19], 0 sc1 @cnt", 2)] + su,
                27: [("WAITVM cnt", 1), ("v_cmp_ne_u32 vcc, 0x100, v9", 1), ("s_nop 0", 1), ("s_nop 0", 1),
                     ("s_cbranch_vccnz %s_spin\n%s_spinback:" % (nm, nm), 1)],
                28: xn_load_items(16, 22), 29: xn_load_items(22, 28), 31: xn_load_items(0, 16)}
        tq = {28: [dmaQ(0, 0), dmaQ(2, 1)], 29: [dmaQ(1, 0), dmaQ(3, 1)], 30: [dmaQ(2, 0), dmaQ(4, 0), dmaQ(4, 1)],
              31: [dmaQ(0, 1), dmaQ(1, 1), dmaQ(3, 0)]}
        for t in range(24, 32):
            ov.append(half_step(a, t, isK, vm, std_groups(t) + tq.get(t, []), doR=(t < 31), inject=tinj.get(t, [])))
        if isK: print("gemm overflow", ov)
        st.rt(a, "gemm_end")
        a("s_and_b32 s3, s66, 1")
        a("s_lshl_b32 s3, s3, %d" % (12 if isK else 13))
        a("s_add_u32 s34, s34, s3")
        a("s_nop 4")
        n = 0; last = None
        for x in range(8):
            for y in range(4):
                if isK:
                    t0, t1 = 4 * (8 * x + 2 * y), 4 * (8 * x + 2 * y + 1)
                    off = (x >> 1) * 32768 + (x & 1) * 8192 + y * 1024
                else:
                    ip, j = x >> 1, (x & 1) * 4 + y
                    t0, t1 = 4 * (8 * (2 * ip) + j), 4 * (8 * (2 * ip + 1) + j)
                    off = ip * 32768 + j * 1024
                r = 96 + 12 * (n % 5)
                for q in range(4): a("v_accvgpr_read_b32 v%d, a%d" % (r + q, t0 + q))
                for q in range(4): a("v_accvgpr_read_b32 v%d, a%d" % (r + 4 + q, t1 + q))
                for q in range(4): a("v_cvt_pk_bf16_f32 v%d, v%d, v%d" % (r + 8 + q, r + 2 * q, r + 2 * q + 1))
                if off & ~4095 != last:
                    last = off & ~4095
                    a("s_add_u32 s35, s34, %d" % last)
                a(vm.see("buffer_store_dwordx4 %s, v1, s[12:15], s35 offen offset:%d sc1 @KVST" % (vr(r + 8), off & 4095)))
                n += 1
        if isK: a("s_branch G_done")
        vmq = vm
    a.label("G_done")
    return vmq
```

```python
from common import *
from gemm import x_own_off, frag8_voff, frag8_soff
from attn import *

def grp_flag(a, dst, base, grp, member=None):
    a("s_lshl_b32 s%d, s%d, 7" % (dst, grp))
    a("s_add_u32 s%d, s%d, %d" % (dst, dst, base))
    if member is not None:
        a("s_lshl_b32 s3, s%d, 2" % member)
        a("s_add_u32 s%d, s%d, s3" % (dst, dst))
def publish(a, base, grp, member):
    grp_flag(a, 29, base, grp, member)
    a("v_mov_b32 v14, 1")
    a("s_waitcnt vmcnt(0)")
    a("s_barrier")
    a("buffer_store_dword v14, v31, s[12:15], s29 offen sc1")

R1_X = 16; R1_ACC = 32; R1_L = 128
def r1_pre(a):
    a("s_lshl_b32 s25, s%d, 4" % S_R)
    a("s_add_u32 s25, s25, s%d" % S_M)
    a("s_mov_b32 s8, s%d\ns_mov_b32 s9, s%d\ns_mov_b32 s10, %d\ns_mov_b32 s11, 0x00020000" % (S_PX, S_PX + 1, 2048 * 896))
    x_own_off(a, 10, 11)
    a("s_mul_i32 s3, s25, %d" % (8 * 896))
    a("buffer_load_dwordx2 %s, v10, s[8:11], s3 offen" % vr(R1_X, 2))
    a("buffer_load_dwordx2 %s, v10, s[8:11], s3 offen offset:32" % vr(R1_X + 2, 2))
    a("s_cmp_eq_u32 s66, 3")
    a("s_cselect_b32 s3, 1835008, s3")
    a("buffer_load_dwordx2 %s, v10, s[8:11], s3 offen offset:512" % vr(R1_X + 4, 2))
    a("buffer_load_dwordx2 %s, v10, s[8:11], s3 offen offset:544" % vr(R1_X + 6, 2))
    frag8_voff(a, 9, 11)
    frag8_soff(a, 25, PO, 38, 39)

def r1_main(a, lds_off):
    a("s_cmp_eq_u32 s66, 3")
    a("s_cselect_b32 s36, 0, %d" % (2048 * 896))
    for h in range(16):
        a("buffer_load_dwordx4 %s, v9, s[12:15], s38 offen sc1" % vr(R1_L + 8 * h))
        a("buffer_load_dwordx4 %s, v9, s[12:15], s39 offen sc1" % vr(R1_L + 8 * h + 4))
        if h < 15:
            a("s_add_u32 s38, s38, %d" % (2048 * 896))
            a("s_add_u32 s39, s39, s36")
    for d in range(8):
        a("v_lshlrev_b32 v%d, 16, v%d" % (R1_ACC + 2 * d, R1_X + d))
        a("v_and_b32 v%d, 0xffff0000, v%d" % (R1_ACC + 2 * d + 1, R1_X + d))
    frag8_soff(a, 25, HB, 38, 39)
    for h in range(16):
        a("s_waitcnt vmcnt(%d)" % (30 - 2 * h))
        for d in range(8):
            r = R1_L + 8 * h + d
            t = 48 + 2 * (d & 3)
            a("v_lshlrev_b32 v%d, 16, v%d" % (t, r))
            a("v_and_b32 v%d, 0xffff0000, v%d" % (t + 1, r))
            a("v_add_f32 v%d, v%d, v%d" % (R1_ACC + 2 * d, R1_ACC + 2 * d, t))
            a("v_add_f32 v%d, v%d, v%d" % (R1_ACC + 2 * d + 1, R1_ACC + 2 * d + 1, t + 1))
    vS, vQ, t = 56, 57, 58
    for d in range(8):
        a("v_cvt_pk_bf16_f32 v%d, v%d, v%d" % (R1_X + d, R1_ACC + 2 * d, R1_ACC + 2 * d + 1))
    a("buffer_store_dwordx4 %s, v9, s[12:15], s38 offen sc1" % vr(R1_X))
    a("buffer_store_dwordx4 %s, v9, s[12:15], s39 offen sc1" % vr(R1_X + 4))
    a("v_mov_b32 v%d, 0x3f803f80" % t)
    a("v_mov_b32 v%d, 0" % vS)
    a("v_mov_b32 v%d, 0" % vQ)
    for d in range(8):
        a("v_dot2_f32_bf16 v%d, v%d, v%d, v%d" % (vS, R1_X + d, t, vS))
        a("v_dot2_f32_bf16 v%d, v%d, v%d, v%d" % (vQ, R1_X + d, R1_X + d, vQ))
    a("v_and_b32 v10, 7, v2")
    a("v_lshlrev_b32 v10, 3, v10")
    a("s_lshl_b32 s3, s66, 6")
    a("v_add_u32 v10, %d, v10" % lds_off)
    a("v_add_u32 v11, s3, v10")
    a("v_add_f32_dpp v%d, v%d, v%d row_ror:8 row_mask:0xf bank_mask:0xf" % (vS, vS, vS))
    a("v_add_f32_dpp v%d, v%d, v%d row_ror:8 row_mask:0xf bank_mask:0xf" % (vQ, vQ, vQ))
    xlane_reduce2(a, "v_add_f32", vS, vQ, t)
    a("ds_write_b64 v11, %s" % vr(vS, 2))
    a("s_waitcnt lgkmcnt(0)")
    a("s_barrier")
    for w in range(4): a("ds_read_b64 %s, v10 offset:%d" % (vr(60 + 2 * w, 2), 64 * w))
    for d in range(8):
        a("v_lshlrev_b32 v%d, 16, v%d" % (R1_ACC + 2 * d, R1_X + d))
        a("v_and_b32 v%d, 0xffff0000, v%d" % (R1_ACC + 2 * d + 1, R1_X + d))
    a("s_add_u32 s38, s38, %d" % (HN - HB))
    a("s_cmp_eq_u32 s66, 3")
    a("s_cselect_b32 s36, 0, %d" % (HN - HB))
    a("s_add_u32 s39, s39, s36")
    a("s_waitcnt lgkmcnt(0)")
    for k, x in enumerate((vS, vQ)):
        a("v_add_f32 v%d, v%d, v%d" % (x, 60 + k, 62 + k))
        a("v_add_f32 v%d, v%d, v%d" % (64 + k, 64 + k, 66 + k))
        a("v_add_f32 v%d, v%d, v%d" % (x, x, 64 + k))
    a("v_mul_f32 v%d, 0x%x, v%d" % (vS, f2u(1.0 / 448), vS))
    a("v_mul_f32 v%d, 0x%x, v%d" % (vQ, f2u(1.0 / 448), vQ))
    a("v_fma_f32 v%d, -v%d, v%d, v%d" % (vQ, vS, vS, vQ))
    a("v_max_f32 v%d, 0, v%d" % (vQ, vQ))
    a("v_add_f32 v%d, 0x%x, v%d" % (vQ, f2u(1e-5), vQ))
    a("v_rsq_f32 v%d, v%d" % (vQ, vQ))
    a("s_nop 0")
    a("v_mul_f32 v%d, v%d, v%d" % (vS, vS, vQ))
    for d in range(8):
        a("v_fma_f32 v%d, v%d, v%d, -v%d" % (R1_ACC + 2 * d, R1_ACC + 2 * d, vQ, vS))
        a("v_fma_f32 v%d, v%d, v%d, -v%d" % (R1_ACC + 2 * d + 1, R1_ACC + 2 * d + 1, vQ, vS))
        a("v_cvt_pk_bf16_f32 v%d, v%d, v%d" % (72 + d, R1_ACC + 2 * d, R1_ACC + 2 * d + 1))
        if d == 3: a("buffer_store_dwordx4 %s, v9, s[12:15], s38 offen sc1" % vr(72))
    a("buffer_store_dwordx4 %s, v9, s[12:15], s39 offen sc1" % vr(76))

def p3_loads(a):
    a("s_lshl_b32 s25, s%d, 2" % S_R)
    a("s_add_u32 s25, s25, s66")
    a("s_mul_i32 s25, s25, %d" % (2 * 14336))
    a("s_add_u32 s25, s25, %d" % HN)
    for f in range(28):
        if f % 4 == 0 and f: a("s_add_u32 s25, s25, 4096")
        a("buffer_load_dwordx4 %s, v1, s[12:15], s25 offen offset:%d sc1" % (ar(4 * f), (f % 4) * 1024))

def p3_epilogue(a):
    a("s_lshl_b32 s25, s%d, 2" % S_R)
    a("s_add_u32 s25, s25, s66")
    a("s_mul_i32 s25, s25, %d" % (2 * 57344))
    a("s_lshl_b32 s3, s%d, 12" % S_M)
    a("s_add_u32 s25, s25, s3")
    a("s_add_u32 s25, s25, %d" % ACT)
    a("s_mov_b32 s36, 0x%x" % f2u(-math.log2(math.e)))
    n = 0
    for qb in range(2):
        if qb: a("s_add_u32 s25, s25, 57344")
        for cb in range(2):
            for sp in range(2):
                r = 32 + 4 * (n & 3); t = 48 + 8 * (n & 1); n += 1
                el = [(Ot(4 * cb + e, qb) + 2 * sp + jj, Ot(8 + 4 * cb + e, qb) + 2 * sp + jj) for jj in range(2) for e in range(4)]
                for k, (g, u) in enumerate(el): a("v_mul_f32 v%d, s36, v%d" % (t + k, g))
                for k, (g, u) in enumerate(el): a("v_exp_f32 v%d, v%d" % (t + k, t + k))
                for k, (g, u) in enumerate(el): a("v_mul_f32 v%d, v%d, v%d" % (u, g, u))
                for k, (g, u) in enumerate(el): a("v_add_f32 v%d, 1.0, v%d" % (t + k, t + k))
                for k, (g, u) in enumerate(el): a("v_rcp_f32 v%d, v%d" % (t + k, t + k))
                for k, (g, u) in enumerate(el): a("v_mul_f32 v%d, v%d, v%d" % (t + k, t + k, u))
                for d in range(4): a("v_cvt_pk_bf16_f32 v%d, v%d, v%d" % (r + d, t + 2 * d, t + 2 * d + 1))
                a("buffer_store_dwordx4 %s, v1, s[12:15], s25 offen offset:%d sc1" % (vr(r), (2 * cb + sp) * 1024))

P4_ACC = 192
def p4_act(s, rb):
    if s < 10: return vr(32 + 16 * s + 4 * rb)
    if s < 12: return ar(224 + 16 * (s - 10) + 4 * rb)
    return vr(32 + 16 * (s - 12) + 4 * rb)
def p4_w(s, e):
    if s < 5: return ar(112 + 16 * s + 4 * e)
    if s < 12: return ar(16 * (s - 5) + 4 * e)
    return ar(192 + 16 * (s - 12) + 4 * e)
def p4_wloads(a, s0, s1):
    a("s_lshr_b32 s86, s%d, 1" % S_M)
    a("s_mul_i32 s86, s86, %d" % WBLK)
    a("s_mul_i32 s3, s66, %d" % (14 * 4096))
    a("s_add_u32 s86, s86, s3")
    a("s_add_u32 s86, s86, %d" % (W2P + s0 * 4096))
    for s in range(s0, s1):
        if s > s0: a("s_add_u32 s86, s86, 4096")
        for e in range(4):
            a("buffer_load_dwordx4 %s, v1, s[12:15], s86 offen offset:%d sc1" % (p4_w(s, e), e * 1024))
def p4_hloads(a):
    a("s_and_b32 s3, s%d, 1" % S_M)
    a("s_lshl_b32 s3, s3, 2")
    a("s_lshl_b32 s87, s%d, 3" % S_R)
    a("s_add_u32 s87, s87, s3")
    a("s_add_u32 s88, s87, s66")
    a("s_mul_i32 s39, s88, 14336")
    a("s_lshr_b32 s3, s%d, 1" % S_M)
    a("s_lshl_b32 s3, s3, 11")
    a("s_add_u32 s39, s39, s3")
    a("s_add_u32 s39, s39, %d" % HB)
    a("v_lshrrev_b32 v9, 5, v2")
    a("v_lshlrev_b32 v9, 10, v9")
    a("v_bfe_u32 v10, v2, 4, 1")
    a("v_lshl_add_u32 v9, v10, 3, v9")
    a("v_and_b32 v10, 15, v2")
    a("v_lshl_add_u32 v9, v10, 4, v9")
    for gp in range(4):
        a("buffer_load_dwordx2 %s, v9, s[12:15], s39 offen offset:%d sc1" % (vr(16 + 2 * gp, 2), gp * 256))
def p4_pre(a):
    a("s_mul_i32 s25, s87, 57344")
    a("s_mul_i32 s3, s66, %d" % (14 * 1024))
    a("s_add_u32 s25, s25, s3")
    a("s_add_u32 s25, s25, %d" % ACT)
    for rb in range(4):
        if rb == 0: a("v_mov_b32 v24, v1")
        else: a("v_add_u32 v%d, %d, v1" % (24 + rb, rb * 57344))
    a("s_mov_b32 s8, s%d\ns_mov_b32 s9, s%d\ns_mov_b32 s10, %d\ns_mov_b32 s11, 0x00020000" % (S_POUT, S_POUT + 1, 2048 * 896))
    a("s_mul_i32 s38, s88, %d" % (16 * 896))
    a("s_lshr_b32 s3, s%d, 1" % S_M)
    a("s_lshl_b32 s3, s3, 7")
    a("s_add_u32 s38, s38, s3")
    a("v_and_b32 v28, 15, v2")
    a("v_mul_u32_u24 v28, 896, v28")
    a("v_lshrrev_b32 v11, 4, v2")
    a("v_lshl_add_u32 v28, v11, 5, v28")
    a("s_lshl_b32 s3, s66, 14")
    a("v_add_u32 v29, s3, v1")
def p4_main(a):
    def ld(s):
        if s % 4 == 0 and s: a("s_add_u32 s25, s25, 4096")
        for rb in range(4):
            a("buffer_load_dwordx4 %s, v%d, s[12:15], s25 offen offset:%d sc1" % (p4_act(s, rb), 24 + rb, (s % 4) * 1024))
    for s in range(12): ld(s)
    issued = 12
    for s in range(14):
        a("s_waitcnt vmcnt(%d)" % (4 * (issued - 1 - s)))
        order = [(e, rb) for e in range(4) for rb in range(4)] if s < 13 else [(e, rb) for rb in range(4) for e in range(4)]
        for e, rb in order:
            d = vr(P4_ACC + 4 * (4 * rb + e))
            a(MF(d, p4_w(s, e), p4_act(s, rb), "0" if s == 0 else d))
        if s < 2:
            ld(12 + s); issued += 1
    for rb in range(4):
        if rb == 2: a("s_nop 0")
        for e in range(4):
            a("ds_write_b128 v29, %s offset:%d" % (vr(P4_ACC + 4 * (4 * rb + e)), rb * 4096 + e * 1024))
    for j in range(4):
        for e in range(4):
            src = 16 + 2 * j + (e >> 1)
            if e & 1: a("v_and_b32 v%d, 0xffff0000, v%d" % (96 + 4 * e + j, src))
            else: a("v_lshlrev_b32 v%d, 16, v%d" % (96 + 4 * e + j, src))
    a("s_waitcnt lgkmcnt(0)")
    a("s_barrier")
    for w in range(4):
        for e in range(4):
            a("ds_read_b128 %s, v%d offset:%d" % (vr(32 + 16 * w + 4 * e), V_DMA, w * 16384 + e * 1024))
    for w in range(4):
        a("s_waitcnt lgkmcnt(%d)" % (12 - 4 * w))
        for k in range(16): a("v_add_f32 v%d, v%d, v%d" % (96 + k, 96 + k, 32 + 16 * w + k))
    for j in range(4):
        a("v_cvt_pk_bf16_f32 v%d, v%d, v%d" % (112 + 2 * j, 96 + j, 100 + j))
        a("v_cvt_pk_bf16_f32 v%d, v%d, v%d" % (113 + 2 * j, 104 + j, 108 + j))
    a("buffer_store_dwordx4 %s, v28, s[8:11], s38 offen" % vr(112))
    a("buffer_store_dwordx4 %s, v28, s[8:11], s38 offen offset:16" % vr(116))

def tail(a, st):
    r1_pre(a)
    publish(a, F_PO, S_QB, S_HEAD)
    st.rt(a, "po_pub")
    grp_flag(a, 29, F_PO, S_R)
    poll(a, 29, 16, 12, "fpo")
    st.rt(a, "po_ready")
    r1_main(a, 131072)
    st.rt(a, "r1_done")
    publish(a, F_H, S_R, S_M)
    a("s_cmp_ge_u32 s%d, 14" % S_M)
    a("s_cbranch_scc1 M_fin")
    p4_wloads(a, 0, 5)
    grp_flag(a, 29, F_H, S_R)
    poll(a, 29, 16, 12, "fh")
    st.rt(a, "h_ready")
    p3_loads(a)
    p4_hloads(a)
    a("s_waitcnt vmcnt(0)")
    st.rt(a, "p3_start")
    gateup(a)
    st.rt(a, "p3_end")
    p4_wloads(a, 5, 14)
    p3_epilogue(a)
    p4_pre(a)
    publish(a, F_A, S_R, S_M)
    st.rt(a, "act_pub")
    grp_flag(a, 29, F_A, S_R)
    poll(a, 29, 14, 12, "fa")
    st.rt(a, "act_ready")
    p4_main(a)
```

```python
import sys
from common import *
import gemm, attn, tail
def mega(stamp=False):
    a = Asm(); st = Stamps(stamp); stubs = []
    vm = gemm.prologue(a, st, "M_end")
    gemm.gemm(a, st, vm, stubs, attn.qproj)
    attn.attention(a, st)
    tail.tail(a, st)
    a.label("M_fin")
    a("s_waitcnt vmcnt(0) lgkmcnt(0)")
    st.rt(a, "end")
    st.flush(a)
    a.label("M_end")
    a("s_endpgm")
    for s in stubs: a(s)
    attn.subroutines(a)
    a.label("M_codeend")
    return a.text(), st.names
def write(path, stamp):
    body, names = mega(stamp)
    hdr = "".join(open("cdna_kernels/" + NAME + ".s.ref").readlines()[:14])
    kn = NAME + "_kernel"
    out = hdr + "; @launch grid=(256,1,1) block=(256,1,1) lds=163840\n.amdgcn_target \"amdgcn-amd-amdhsa--gfx950\"\n"
    out += kernel_header(kn) + body + kernel_desc(kn, 512, 102, 256)
    open(path, "w").write(out)
    if stamp: open(path.replace(".s", ".names"), "w").write(" ".join(names))
if __name__ == "__main__":
    tag = sys.argv[1] if len(sys.argv) > 1 else "m"
    write("exp/%s.s" % tag, False)
    write("exp/%s_st.s" % tag, True)
```

```python
from common import *
from gemm import S_HEAD, S_I, S_ROLE, S_QB, V_DMA, xn_reg, dmaQ, DMAFL, Items, kv_store, kv_frag_items

V_RDK, V_RDV, V_TABK, V_TABV = 5, 6, 7, 8
V_T = 9
V_NEGM, V_L, V_TS = 16, 18, 20
V_T2 = 22
V_S = [32, 48]; V_P = [64, 72]; V_E = 80; V_C = 96; V_X = 112
V_O = 128
V_CTX = 32; A_SP = 64; A_Q = 128; A_F = 192
S_G3, S_END, S_WQ, S_KO, S_VO = 20, 21, 22, 23, 27
S_RW = 26
S_RET, S_RET2 = 82, 84
S_MASK = 70
S_N1, S_N2, S_ST, S_THR = 34, 35, 36, 37
S_R, S_M = 78, 79
NEG = 0xff3fffff
XA = 35
EXP = set()

def St(buf, kb, qb): return V_S[buf] + 4 * (2 * kb + qb)
def Ct(kb, qb): return V_C + 4 * (2 * kb + qb)
def Ot(db, qb): return V_O + 4 * (2 * db + qb)
def Fr(n): return ar(A_F + 4 * (n % 16))
def Qf(qb, s): return ar(A_Q + 4 * (8 * qb + s))

def FrV(n): return vr(96 + 4 * (n % 16))
def frag_reads(sc, rdK, rdV, rdN, bar, Fr=Fr):
    out = [0, 0, 0, 0, 1, 1, 1, 1]
    def wait_for(grp):
        if grp not in out: return None
        idx = max(i for i, x in enumerate(out) if x == grp)
        n = len(out) - 1 - idx
        del out[:idx + 1]
        return n
    for gam in range(8):
        need = (gam < 4 and rdK) or (gam >= 4 and rdV)
        n = wait_for(gam) if need else None
        if gam == 0 and not rdK:
            n = 0; del out[:]
        lg = "" if n is None else "lgkmcnt(%d)" % n
        if gam == 6 and bar is not None:
            if bar or lg: sc.at(47, ((bar if bar else "s_waitcnt") + " " + lg).strip(), last=True)
            sc.at(47, "s_barrier", last=True)
        elif n is not None:
            sc.at(8 * gam - 1, "s_waitcnt " + lg, last=True)
        t = gam + 2
        src = rdK if t < 4 else rdV if t < 8 else rdN
        if not src: continue
        for k in range(4):
            sc.at(8 * gam + 2 * k, "ds_read_b128 %s, v%d offset:%d" % (Fr(4 * t + k), src[0], src[1] + (4 * (t % 4) + k) * 1024))
            out.append(t if t < 8 else 100 + t)
    sc.free[63] -= 1

def ring_fixed(sc, p, useK=True, useV=True, vm=12, loop=None, dma=True, nxt=True):
    frag_reads(sc, (V_RDK, p * 16384) if useK else None, (V_RDV, p * 16384) if useV else None,
               (V_RDK, (1 - p) * 16384) if nxt else None, "s_waitcnt vmcnt(%d)" % vm)
    nomf0 = sc.mf[0] is None; nomf1 = sc.mf[63] is None
    if p == 1:
        sc.at(0, "s_xor_b32 s%d, s%d, 0x8000" % (S_WQ, S_WQ))
        sc.at(30, "v_xor_b32 v%d, 0x8000, v%d" % (V_RDK, V_RDK))
        sc.at(48, "v_xor_b32 v%d, 0x8000, v%d" % (V_RDV, V_RDV))
    if dma:
        sc.at(0 if p == 0 else 2, "v_readlane_b32 s%d, v%d, s%d" % (S_KO, V_TABK, S_G3))
        sc.at(20, "s_add_u32 m0, s%d, %d" % (S_WQ, (1 - p) * 16384))
        if nomf0: sc.at(20, "s_nop 3")
        for k, g in enumerate((21, 25, 27, 29)):
            sc.at(g, "buffer_load_dwordx4 v%d, s[12:15], s%d offen offset:%d lds%s" % (V_DMA, S_KO, k * 1024, DMAFL), 2)
        sc.at(36, "v_readlane_b32 s%d, v%d, s%d" % (S_VO, V_TABV, S_G3))
        sc.at(52, "s_add_u32 m0, s%d, %d" % (S_WQ, (1 - p) * 16384 + 65536))
        if nomf1: sc.at(52, "s_nop 3")
        for k, g in enumerate((53, 57, 59, 61)):
            sc.at(g, "buffer_load_dwordx4 v%d, s[12:15], s%d offen offset:%d lds%s" % (V_DMA, S_VO, k * 1024, DMAFL), 2)
    sc.at(60, "s_add_u32 s%d, s%d, 1" % (S_G3, S_G3))
    if loop:
        sc.at(62, "s_cmp_eq_u32 s%d, s%d" % (S_G3, S_END), last=True)
        sc.at(63, loop, last=True)

def ring_restart(a, slot0):
    q = (slot0 >> 1) & 1
    a("v_add_u32 v%d, %d, v1" % (V_RDK, q * 0x8000))
    a("v_add_u32 v%d, %d, v1" % (V_RDV, 0x10000 + q * 0x8000))
    for k in range(3):
        slot = (slot0 + k) & 3
        a("v_readlane_b32 s%d, v%d, %d" % (S_KO, V_TABK, k))
        a("v_readlane_b32 s%d, v%d, %d" % (S_VO, V_TABV, k))
        a("s_add_u32 m0, s24, %d" % (slot * 16384))
        a("s_nop 3")
        for j in range(4): a("buffer_load_dwordx4 v%d, s[12:15], s%d offen offset:%d lds%s" % (V_DMA, S_KO, j * 1024, DMAFL))
        if k == 0: continue
        a("s_add_u32 m0, s24, %d" % (slot * 16384 + 65536))
        a("s_nop 0")
        for j in range(4): a("buffer_load_dwordx4 v%d, s[12:15], s%d offen offset:%d lds%s" % (V_DMA, S_VO, j * 1024, DMAFL))
    a("s_add_u32 s%d, s24, %d" % (S_WQ, (1 - q) * 0x8000))
    a("s_mov_b32 s%d, 3" % S_G3)

def first_reads(a, vreg, imm, Fr=Fr):
    for n in range(8): a("ds_read_b128 %s, v%d offset:%d" % (Fr(n), vreg, imm + n * 1024))

def sm_ops(buf, kb):
    ex, pl = [], []
    for qb in range(2):
        s = St(buf, kb, qb); e = V_E + 8 * kb + 4 * qb; ts = V_TS + qb; P = V_P[buf] + 4 * qb + 2 * kb
        ex += ["v_exp_f32 v%d, v%d" % (e + j, s + j) for j in range(4)]
        b = 4 * qb
        if kb == 0: pl.append(("v_add_f32 v%d, v%d, v%d" % (ts, e, e + 1), b + 1))
        else: pl += [("v_add_f32 v%d, v%d, v%d" % (ts, ts, e), b), ("v_add_f32 v%d, v%d, v%d" % (ts, ts, e + 1), b + 1)]
        pl.append(("v_cvt_pk_bf16_f32 v%d, v%d, v%d" % (P, e, e + 1), b + 1))
        pl += [("v_add_f32 v%d, v%d, v%d" % (ts, ts, e + 2), b + 2), ("v_add_f32 v%d, v%d, v%d" % (ts, ts, e + 3), b + 3)]
        pl.append(("v_cvt_pk_bf16_f32 v%d, v%d, v%d" % (P + 1, e + 2, e + 3), b + 3))
    return ex, pl
def sm_serial(buf, kb):
    ex, pl = sm_ops(buf, kb)
    return ex + [s for s, _ in pl]
def place_sm(sc, buf, kb, exgaps, g0, g1, pre=(), post=()):
    ex, pl = sm_ops(buf, kb)
    for s, g in zip(ex, exgaps): sc.at(g, s, 2)
    g = g0
    for s in pre: g = sc.at(sc.first_free(g, 1, g1), s)
    for s, d in pl: g = sc.at(sc.first_free(max(g, exgaps[d] + 1), 1, g1), s)
    for s in post: g = sc.at(sc.first_free(g, 1, g1), s)

def qk_mfmas(buf):
    mf = []
    for kb in range(2):
        for s in range(8):
            for qb in range(2):
                d = vr(St(buf, kb, qb))
                mf.append(MF(d, Fr(8 * kb + s), Qf(qb, s), vr(Ct(kb, qb)) if s == 0 else d))
    return mf
def pv_mfmas(buf):
    return [MF(vr(Ot(db, qb)), Fr(16 + db), vr(V_P[buf] + 4 * qb), vr(Ot(db, qb))) for db in range(16) for qb in range(2)]
CHECK = ["v_max_f32 v%d, v%d, v%d" % (V_T, V_TS, V_TS + 1), "v_cmp_lt_f32 vcc, s%d, v%d" % (S_THR, V_T)]
LACC = ["v_add_f32 v%d, v%d, v%d" % (V_L + qb, V_L + qb, V_TS + qb) for qb in range(2)]

def body_full(a, p, loop, stubs):
    sc = Sched(qk_mfmas(p) + pv_mfmas(1 - p))
    ring_fixed(sc, p, loop=loop)
    back = "AT_full%d_back" % p
    sc.at(31, "s_cbranch_vccnz AT_full%d_stub\n%s:" % (p, back))
    stubs.append(("AT_full%d_stub" % p, p, back))
    place_sm(sc, 1 - p, 1, (1, 3, 5, 9, 11, 13, 17, 19), 0, 30, post=CHECK)
    place_sm(sc, p, 0, (33, 35, 37, 41, 43, 45, 49, 51), 32, 63, pre=LACC)
    sc.emit(a)
    return sc.overflow()

def body_pvlast(a, p, stubs):
    sc = Sched([None] * 32 + pv_mfmas(1 - p))
    ring_fixed(sc, p, useK=False)
    for g in range(16, 31):
        rd = [s for s in sc.items[g] if s.startswith("ds_read")]
        sc.items[g] = [s for s in sc.items[g] if not s.startswith("ds_read")]
        sc.tail[-1] += rd
    back = "AT_pv%d_back" % p
    for s in sm_serial(1 - p, 1) + CHECK: sc.at(10, s)
    sc.at(31, "s_cbranch_vccnz AT_pv%d_stub\n%s:" % (p, back))
    stubs.append(("AT_pv%d_stub" % p, p, back))
    for k, s in enumerate(LACC): sc.at(33, s)
    sc.emit(a)

def body_qkfirst(a, p):
    sc = Sched(qk_mfmas(p) + [None] * 32)
    ring_fixed(sc, p, useV=False)
    t = Asm()
    m = V_T
    for qb in range(2):
        s0 = St(p, 0, qb)
        sc.at(23, "v_max3_f32 v%d, v%d, v%d, v%d" % (m + qb, s0, s0 + 1, s0 + 2))
        sc.at(24, "v_mov_b32 v%d, 0" % (V_L + qb))
    t("s_nop 6")
    for qb in range(2):
        s0, s1 = St(p, 0, qb), St(p, 1, qb)
        t("v_max3_f32 v%d, v%d, v%d, v%d" % (m + qb, m + qb, s0 + 3, s1))
        t("v_max3_f32 v%d, v%d, v%d, v%d" % (m + qb, m + qb, s1 + 1, s1 + 2))
        t("v_max_f32 v%d, v%d, v%d" % (m + qb, m + qb, s1 + 3))
    xlane_reduce2(t, "v_max_f32", m, m + 1, m + 2)
    for qb in range(2):
        t("v_sub_f32 v%d, 0, v%d" % (V_NEGM + qb, m + qb))
        for j in range(4): t("v_sub_f32 v%d, v%d, v%d" % (St(p, 0, qb) + j, St(p, 0, qb) + j, m + qb))
    for l in t.lines: sc.at(37, l.strip())
    t = Asm()
    for s in sm_serial(p, 0): t(s)
    for qb in range(2):
        for j in range(4): t("v_sub_f32 v%d, v%d, v%d" % (St(p, 1, qb) + j, St(p, 1, qb) + j, m + qb))
        for kb in range(2):
            for j in range(4): t("v_mov_b32 v%d, v%d" % (Ct(kb, qb) + j, V_NEGM + qb))
    for l in t.lines: sc.at(63, l.strip())
    sc.emit(a)

def body_idle(a, p, loop):
    sc = Sched([None] * 64)
    ring_fixed(sc, p, useK=False, useV=False, loop=loop)
    sc.emit(a)

def rescale_sub(a, p):
    cur, nxt = 1 - p, p
    a.label("AT_rescale%d" % p)
    a("s_nop 7")
    for qb in range(2):
        m = V_T; f = V_T + 1
        s0, s1 = St(cur, 0, qb), St(cur, 1, qb)
        a("v_max3_f32 v%d, v%d, v%d, v%d" % (m, s0, s0 + 1, s0 + 2))
        a("v_max3_f32 v%d, v%d, v%d, v%d" % (m, m, s0 + 3, s1))
        a("v_max3_f32 v%d, v%d, v%d, v%d" % (m, m, s1 + 1, s1 + 2))
        a("v_max3_f32 v%d, v%d, v%d, 0" % (m, m, s1 + 3))
        xlane_reduce(a, "v_max_f32", m, V_T + 2)
        a("v_exp_f32 v%d, -v%d" % (f, m))
        a("v_sub_f32 v%d, v%d, v%d" % (V_NEGM + qb, V_NEGM + qb, m))
        a("v_mul_f32 v%d, v%d, v%d" % (V_L + qb, V_L + qb, f))
        for kb in range(2):
            for j in range(4):
                for r in (St(cur, kb, qb), St(nxt, kb, qb), Ct(kb, qb)):
                    a("v_sub_f32 v%d, v%d, v%d" % (r + j, r + j, m))
        for db in range(16):
            for j in range(4):
                a("v_mul_f32 v%d, v%d, v%d" % (Ot(db, qb) + j, Ot(db, qb) + j, f))
    for kb in range(2):
        for s in sm_serial(cur, kb): a(s)
    a("s_nop 1")
    a("s_setpc_b64 s[%d:%d]" % (S_RET2, S_RET2 + 1))

def op_acc(buf, e, qb): return V_O + 32 * buf + 4 * (2 * e + qb)
def op_flush_items(buf):
    it = []
    for qb in range(2):
        for sp in range(2):
            r = V_C + 4 * (2 * qb + sp)
            for d in range(4):
                j = 2 * sp + (d >> 1); e = 2 * (d & 1)
                it.append(("v_cvt_pk_bf16_f32 v%d, v%d, v%d" % (r + d, op_acc(buf, e, qb) + j, op_acc(buf, e + 1, qb) + j), 1))
            it.append(("buffer_store_dwordx4 %s, v%d, s[12:15], s%d offen offset:%d sc1" % (vr(r), V_T2 + qb, S_ST, sp * 1024), 2))
    return it
def body_oproj(a, p, loop):
    mf = []
    for s in range(8):
        for e in range(4):
            for qb in range(2):
                d = vr(op_acc(p, e, qb))
                mf.append(MF(d, Fr(4 * s + e), vr(V_CTX + 4 * (8 * qb + s)), "0" if s == 0 else d))
    sc = Sched(mf)
    ring_fixed(sc, p, vm=16, loop=loop)
    sc.flow(op_flush_items(1 - p), 4, 40)
    sc.at(45, "s_mov_b32 s%d, s38" % S_ST)
    sc.at(45, "s_add_u32 s38, s38, 2048")
    sc.emit(a)

def subroutines(a):
    stubs = []
    ret = "s_setpc_b64 s[%d:%d]" % (S_RET, S_RET + 1)
    def looped(name, fn):
        a.label("AT_%s" % name)
        a("s_bitcmp1_b32 s%d, 0" % S_G3)
        a("s_cbranch_scc0 AT_%s_odd" % name)
        a(".p2align 4")
        a.label("AT_%s_even" % name)
        fn(0, "s_cbranch_scc1 AT_%s_ret" % name)
        a.label("AT_%s_odd" % name)
        fn(1, "s_cbranch_scc0 AT_%s_even" % name)
        a.label("AT_%s_ret" % name)
        a(ret)
    def single(name, fn):
        a.label("AT_%s" % name)
        a("s_bitcmp1_b32 s%d, 0" % S_G3)
        a("s_cbranch_scc0 AT_%s_odd" % name)
        fn(0); a(ret)
        a.label("AT_%s_odd" % name)
        fn(1); a(ret)
    single("qkfirst", lambda p: body_qkfirst(a, p))
    looped("full", lambda p, l: print("full overflow", body_full(a, p, l, stubs)))
    single("pvlast", lambda p: body_pvlast(a, p, stubs))
    looped("idle", lambda p, l: body_idle(a, p, l))
    looped("oproj", lambda p, l: body_oproj(a, p, l))
    for lab, p, back in stubs:
        a.label(lab)
        a("s_call_b64 s[%d:%d], AT_rescale%d" % (S_RET2, S_RET2 + 1, p))
        a("s_branch %s" % back)
    rescale_sub(a, 0); rescale_sub(a, 1)

def call(a, name): a("s_call_b64 s[%d:%d], AT_%s" % (S_RET, S_RET + 1, name))
def run_k(a, name, k):
    a("s_add_u32 s%d, s%d, %d" % (S_END, S_G3, k))
    call(a, name)
def run_n(a, name, cnt):
    sk = a.newlabel("skip")
    a("s_cmp_lt_i32 s%d, 1" % cnt)
    a("s_cbranch_scc1 %s" % sk)
    a("s_add_u32 s%d, s%d, s%d" % (S_END, S_G3, cnt))
    call(a, name)
    a.label(sk)

def cinit(a, masked, zero):
    if masked: a("v_mov_b32 v%d, 0x%x" % (V_T, NEG))
    for kb in range(2):
        for qb in range(2):
            base = "0" if zero else "v%d" % (V_NEGM + qb)
            for j in range(4):
                r = Ct(kb, qb) + j
                if masked and kb == qb: a("v_cndmask_b32 v%d, %s, v%d, s[%d:%d]" % (r, base, V_T, S_MASK + 2 * j, S_MASK + 2 * j + 1))
                elif masked and kb > qb: a("v_mov_b32 v%d, v%d" % (r, V_T))
                elif zero: a("v_mov_b32 v%d, 0" % r)
def zero_o(a):
    for k in range(64): a("v_mov_b64 %s, 0" % vr(V_O + 2 * k, 2))

def tab_seg(a, startK, startV, base, stride, cnt1, lag, first=False):
    t = V_T
    a("v_subrev_u32 v%d, %s, v2" % (t, startK))
    a("v_min_i32 v%d, %s, v%d" % (t + 1, cnt1, t))
    a("v_subrev_u32 v%d, %d, v%d" % (t + 2, lag, t))
    a("v_max_i32 v%d, 0, v%d" % (t + 2, t + 2))
    a("v_min_i32 v%d, %s, v%d" % (t + 2, cnt1, t + 2))
    a("v_mul_i32_i24 v%d, %d, v%d" % (t + 1, stride, t + 1))
    a("v_mul_i32_i24 v%d, %d, v%d" % (t + 2, stride, t + 2))
    a("v_add_u32 v%d, %s, v%d" % (t + 1, base, t + 1))
    a("v_add_u32 v%d, %s, v%d" % (t + 2, base, t + 2))
    a("v_add_u32 v%d, 0x4000, v%d" % (t + 2, t + 2))
    if first:
        a("v_mov_b32 v%d, v%d" % (V_TABK, t + 1))
        a("v_mov_b32 v%d, v%d" % (V_TABV, t + 2))
    else:
        a("v_cmp_le_i32 vcc, 0, v%d" % t)
        a("s_nop 1")
        a("v_cndmask_b32 v%d, v%d, v%d, vcc" % (V_TABK, V_TABK, t + 1))
        a("v_cmp_le_i32 vcc, %d, v%d" % (startV, t))
        a("s_nop 1")
        a("v_cndmask_b32 v%d, v%d, v%d, vcc" % (V_TABV, V_TABV, t + 2))

def tables(a):
    a("s_lshl_b32 s86, s%d, 2" % S_I)
    a("s_sub_u32 s%d, %d, s86" % (S_N1, 64 - XA))
    a("s_add_u32 s%d, s86, 4" % S_N2)
    a("s_cmp_eq_u32 s%d, 7\ns_cselect_b32 s%d, 0, s%d\ns_cselect_b32 s87, 36, %d" % (S_I, S_N1, S_N1, XA))
    a("s_cmp_eq_u32 s%d, 1\ns_cselect_b32 s%d, s87, s%d\ns_cselect_b32 s%d, 0, s%d\ns_cselect_b32 s87, 0, %d" % (S_ROLE, S_N1, S_N1, S_N2, S_N2, XA * 32768))
    a("s_mov_b32 s%d, 0x%x" % (S_THR, f2u(65536.0)))
    a("s_lshl_b32 s88, s%d, 21" % S_HEAD)
    if KV: a("s_add_u32 s88, s88, %d" % KV)
    a("s_add_u32 s25, s88, s87")
    a("s_sub_u32 s89, s%d, 1" % S_N1)
    tab_seg(a, "0", 0, "s25", 32768, "s89", 1, first=True)
    a("s_add_u32 s86, s86, 3")
    a("s_lshl_b32 s86, s86, 15")
    a("s_add_u32 s25, s88, s86")
    a("s_sub_u32 s89, s%d, 1" % S_N2)
    tab_seg(a, "s%d" % S_N1, 1, "s25", -32768, "s89", 1)
    a("s_add_u32 s69, s%d, s%d" % (S_N1, S_N2))
    a("s_add_u32 s69, s69, 1")
    a("s_mul_i32 s25, s%d, %d" % (S_HEAD, WBLK))
    a("s_add_u32 s25, s25, %d" % WOP)
    tab_seg(a, "s69", 0, "s25", 32768, "6", 0)
    a("s_and_b32 s86, s68, 1")
    a("s_lshl_b32 s%d, s67, 1" % S_R)
    a("s_add_u32 s%d, s%d, s86" % (S_R, S_R))
    a("s_lshr_b32 s%d, s68, 1" % S_M)
    a("s_add_u32 s69, s69, 8")
    a("s_and_b32 s69, s69, -2")
    a("s_min_u32 s25, s%d, 13" % S_M)
    a("s_mul_i32 s25, s25, %d" % WBLK)
    a("s_add_u32 s25, s25, %d" % W13P)
    tab_seg(a, "s69", 0, "s25", 32768, "6", 0)
    a("v_lshrrev_b32 v%d, 4, v2" % V_T)
    a("v_lshlrev_b32 v%d, 2, v%d" % (V_T, V_T))
    a("v_and_b32 v%d, 15, v2" % (V_T + 1))
    for j in range(4):
        a("v_add_u32 v%d, %d, v%d" % (V_T + 2, j, V_T))
        a("v_cmp_gt_u32 s[%d:%d], v%d, v%d" % (S_MASK + 2 * j, S_MASK + 2 * j + 1, V_T + 2, V_T + 1))

def qproj(a, st, vm, isK):
    a("v_mov_b32 v%d, v1" % V_RDK)
    a("v_add_u32 v%d, 0x10000, v1" % V_RDV)
    a("v_add_u32 v13, 0x20000, v1")
    a("s_lshl_b32 s29, s%d, 7" % S_HEAD)
    a("s_add_u32 s29, s29, %d" % F_KV)
    a("s_lshl_b32 s3, s28, 3")
    a("s_add_u32 s3, s3, s27")
    a("s_lshl_b32 s3, s3, 2")
    a("s_add_u32 s28, s29, s3")
    a("v_mov_b32 v14, 1")
    a("s_and_b32 s79, s68, 3")
    a(vm.see("WAITVM XN,Q0,Q1,Q2,Q3,Q4,PK"))
    a("s_barrier")
    first_reads(a, V_RDK, 0, FrV)
    st.rt(a, "q_start")
    def src(c, h):
        if c > 6: return None
        if c == 4: return (13, h * 16384)
        return ((V_RDK, V_RDV)[h], (c if c < 4 else c - 5) * 16384)
    tb = Items(); tables(tb)
    for c in range(7):
        mf = []
        for h in range(2):
            s = 2 * c + h
            for n in range(16):
                for qb in range(2):
                    d = ar(4 * (2 * n + qb))
                    mf.append(MF(d, FrV(16 * h + n), xn_reg(qb, s), "0" if s == 0 else d))
        sc = Sched(mf)
        bar = {4: "WAITVM Q5", 5: "WAITVM Q6,KVST", 6: ""}.get(c)
        frag_reads(sc, src(c, 0), src(c, 1), src(c + 1, 0), bar, FrV)
        if c in (1, 2):
            sc.at(-1, "s_barrier", last=True)
            for h in range(2):
                p0, ld, _ = dmaQ(c + 4, h)
                g0 = 3 + 16 * h
                sc.at(g0 - 2, p0[0]); sc.at(g0 - 2, p0[1])
                for k in range(4): sc.at(g0 + (0, 2, 6, 10)[k], ld[k], 2)
        if c == 5: sc.at(49, "buffer_store_dword v14, v31, s[12:15], s28 offen sc1", 2)
        if c < 4:
            sc.at(59, "s_cmp_eq_u32 s79, %d\ns_cselect_b32 s3, 0, 128" % c, 2)
            sc.at(61, "buffer_atomic_add v14, v31, s[16:19], s3 offen offset:128 sc1", 2)
        it = []
        if c == 0:
            for n in range(10, 16): it += kv_store(isK, n, 232 + 4 * (n - 10)) + tb.it[(n - 10) * 8:(n - 9) * 8]
        for n in {1: range(16, 20), 2: range(20, 24), 3: range(24, 29), 4: range(29, 32)}.get(c, ()):
            it += kv_frag_items(isK, n, 232 + 12 * (n & 1))
        if c == 5: it = tb.it[48:]
        if it: sc.flow(it, 0, 62 if c != 4 else 44)
        if isK: print("qproj overflow", c, sc.overflow())
        sc.emit(a, vm)

def gateup(a):
    for c in range(7):
        mf = []
        for h in range(2):
            s = 2 * c + h
            for n in range(16):
                for qb in range(2):
                    d = vr(Ot(n, qb))
                    mf.append(MF(d, Fr(16 * h + n), ar(4 * (14 * qb + s)), "0" if s == 0 else d))
        sc = Sched(mf)
        ring_fixed(sc, c & 1, vm={4: 8, 5: 0, 6: 0}.get(c, 12), dma=(c < 4), nxt=(c < 6))
        sc.emit(a)

def pair_off(a, dst, base, per_wave):
    a("s_lshl_b32 s%d, s%d, 3" % (dst, S_HEAD))
    a("s_add_u32 s%d, s%d, s%d" % (dst, dst, S_I))
    a("s_lshl_b32 s%d, s%d, 2" % (dst, dst))
    a("s_add_u32 s%d, s%d, s66" % (dst, dst))
    a("s_mul_i32 s%d, s%d, %d" % (dst, dst, per_wave))
    a("s_add_u32 s%d, s%d, %d" % (dst, dst, base))
def pair_flag(a, dst, base):
    a("s_lshl_b32 s%d, s%d, 3" % (dst, S_HEAD))
    a("s_add_u32 s%d, s%d, s%d" % (dst, dst, S_I))
    a("s_lshl_b32 s%d, s%d, 7" % (dst, dst))
    a("s_add_u32 s%d, s%d, %d" % (dst, dst, base))

def q_epilogue(a, qb, dst, store):
    for sd in range(8):
        cb, sp = sd >> 1, sd & 1
        r = 32 + 12 * (sd % 4)
        f = 8 * qb + sd
        for d in range(4):
            j = 2 * sp + (d >> 1); e = 2 * (d & 1)
            a("v_accvgpr_read_b32 v%d, a%d" % (r + 2 * d, 4 * (2 * (4 * cb + e) + qb) + j))
            a("v_accvgpr_read_b32 v%d, a%d" % (r + 2 * d + 1, 4 * (2 * (4 * cb + e + 1) + qb) + j))
        for d in range(4): a("v_cvt_pk_bf16_f32 v%d, v%d, v%d" % (r + 8 + d, r + 2 * d, r + 2 * d + 1))
        if store:
            if f % 4 == 0 and f: a("s_add_u32 s25, s25, s39")
            a("buffer_store_dwordx4 %s, v1, s[12:15], s25 offen offset:%d sc1" % (vr(r + 8), (f % 4) * 1024))
        for d in range(4): a("v_accvgpr_write_b32 a%d, v%d" % (dst + 4 * f + d, r + 8 + d))

def l_total(a): xlane_reduce2(a, "v_add_f32", V_L, V_L + 1, V_T)

def pkmul(a, d, x, sc):
    lo = sc & ~1; h = sc & 1
    a("v_pk_mul_f32 %s, %s, %s op_sel:[0,%d] op_sel_hi:[1,%d]" % (vr(d, 2), vr(x, 2), vr(lo, 2), h, h))
def pkfma(a, d, x, sc, c):
    lo = sc & ~1; h = sc & 1
    a("v_pk_fma_f32 %s, %s, %s, %s op_sel:[0,%d,0] op_sel_hi:[1,%d,1]" % (vr(d, 2), vr(x, 2), vr(lo, 2), vr(c, 2), h, h))

def normalize(a, soff=None, f0=0, f1=16):
    if f0 == 0:
        for qb in range(2): a("v_rcp_f32 v%d, v%d" % (V_T2 + qb, V_L + qb))
        a("s_nop 0")
    for f in range(f0, f1):
        qb, s = f >> 3, f & 7
        r = V_CTX + 4 * f
        for h in range(2):
            o = Ot(2 * s + h, qb)
            pkmul(a, o, o, V_T2 + qb); pkmul(a, o + 2, o + 2, V_T2 + qb)
        for h in range(2):
            o = Ot(2 * s + h, qb)
            a("v_cvt_pk_bf16_f32 v%d, v%d, v%d" % (r + 2 * h, o, o + 1))
            a("v_cvt_pk_bf16_f32 v%d, v%d, v%d" % (r + 2 * h + 1, o + 2, o + 3))
        if soff is not None:
            if f % 4 == 0 and f: a("s_add_u32 s%d, s%d, 4096" % (soff, soff))
            a("buffer_store_dwordx4 %s, v1, s[12:15], s%d offen offset:%d sc1" % (vr(r), soff, (f % 4) * 1024))

def partner_loads(a):
    pair_off(a, 25, OPX, 17408)
    for f in range(17):
        if f % 4 == 0 and f: a("s_add_u32 s25, s25, 4096")
        a("buffer_load_dwordx4 %s, v1, s[12:15], s25 offen offset:%d sc1" % (ar(A_SP + 4 * f) if f < 16 else vr(V_X), (f % 4) * 1024))

def combine(a):
    al, be = V_T2, V_T2 + 2
    for qb in range(2):
        t = V_T
        a("v_min_f32 v%d, v%d, v%d" % (t, V_NEGM + qb, V_X + qb))
        a("v_sub_f32 v%d, v%d, v%d" % (t + 1, t, V_NEGM + qb))
        a("v_sub_f32 v%d, v%d, v%d" % (t + 2, t, V_X + qb))
        a("v_exp_f32 v%d, v%d" % (t + 1, t + 1))
        a("v_exp_f32 v%d, v%d" % (t + 2, t + 2))
        a("s_nop 0")
        a("v_mul_f32 v%d, v%d, v%d" % (t + 2, t + 2, V_X + 2 + qb))
        a("v_fma_f32 v%d, v%d, v%d, v%d" % (t, t + 1, V_L + qb, t + 2))
        a("v_rcp_f32 v%d, v%d" % (t, t))
        a("s_nop 0")
        a("v_mul_f32 v%d, v%d, v%d" % (al + qb, t + 1, t))
        a("v_mul_f32 v%d, v%d, v%d" % (be + qb, t + 2, t))
    for f in range(16):
        qb, s = f >> 3, f & 7
        for d in range(4): a("v_accvgpr_read_b32 v%d, a%d" % (V_C + 2 * d + 1, A_SP + 4 * f + d))
        for d in range(4):
            o = Ot(2 * s + (d >> 1), qb) + 2 * (d & 1)
            pkmul(a, o, o, al + qb)
        for d in range(4):
            a("v_lshlrev_b32 v%d, 16, v%d" % (V_C + 2 * d, V_C + 2 * d + 1))
            a("v_and_b32 v%d, 0xffff0000, v%d" % (V_C + 2 * d + 1, V_C + 2 * d + 1))
        for d in range(4):
            o = Ot(2 * s + (d >> 1), qb) + 2 * (d & 1)
            pkfma(a, o, V_C + 2 * d, be + qb, o)
        for d in range(4):
            o = Ot(2 * s + (d >> 1), qb) + 2 * (d & 1)
            a("v_cvt_pk_bf16_f32 v%d, v%d, v%d" % (V_CTX + 4 * f + d, o, o + 1))

def attention(a, st):
    st.rt(a, "q_end")
    a("s_xor_b32 s87, s%d, 1" % S_ROLE)
    a("s_cmp_eq_u32 s%d, 7" % S_I)
    a("s_cselect_b32 s86, 0, s%d" % S_ROLE)
    a("s_cselect_b32 s87, 0, s87")
    pair_off(a, 25, QX, 16384)
    a("s_cmp_eq_u32 s86, 1")
    a("s_cselect_b32 s25, s25, %d" % WSZ)
    a("s_cselect_b32 s39, 4096, 0")
    a("v_min_u32 v%d, 15, v2" % V_T)
    a("v_lshlrev_b32 v%d, 2, v%d" % (V_T, V_T))
    q_epilogue(a, 0, A_Q, True)
    a("buffer_load_dword v%d, v%d, s[12:15], s29 offen sc1" % (V_T + 1, V_T))
    q_epilogue(a, 1, A_Q, True)
    a("s_waitcnt vmcnt(8)")
    a("v_cmp_ne_u32 vcc, 1, v%d" % (V_T + 1))
    a("s_nop 2")
    a("s_cbranch_vccz AT_kvok")
    poll(a, 29, 16, V_T, "fkv")
    a.label("AT_kvok")
    st.rt(a, "kv_ready")
    ring_restart(a, 2)
    a("s_cmp_eq_u32 s86, 1")
    a("s_cbranch_scc0 AT_notA")
    pair_flag(a, 25, F_Q)
    a("v_mov_b32 v%d, 1" % V_T)
    a("s_waitcnt vmcnt(20)")
    a("s_barrier")
    a("buffer_store_dword v%d, v31, s[12:15], s25 offen sc1" % V_T)
    zero_o(a)
    cinit(a, False, True)
    a("s_waitcnt vmcnt(17)")
    a("s_barrier")
    first_reads(a, V_RDK, 0)
    st.rt(a, "at_start")
    call(a, "qkfirst")
    if st.on:
        run_k(a, "full", XA - 4 - 28)
        st.cyc(a, "f0_c")
        run_k(a, "full", 28)
        st.cyc(a, "f1_c")
    else:
        run_k(a, "full", XA - 4)
    a(code_warm("v%d" % (V_X + 8)))
    pair_flag(a, 25, F_O)
    a("buffer_load_dword v%d, off, s[12:15], s25 sc1" % (V_X + 4))
    run_k(a, "full", 2)
    a("v_readfirstlane_b32 s39, v%d" % (V_X + 4))
    a("s_cmp_eq_u32 s39, 1")
    a("s_cbranch_scc0 AT_A_late")
    partner_loads(a)
    run_k(a, "full", 1)
    call(a, "pvlast")
    st.rt(a, "seg_done")
    a("s_branch AT_A_comb")
    a.label("AT_A_late")
    run_k(a, "full", 1)
    call(a, "pvlast")
    st.rt(a, "seg_done")
    pair_flag(a, 25, F_O)
    poll(a, 25, 1, V_T, "fo")
    partner_loads(a)
    a("s_waitcnt vmcnt(0)")
    a.label("AT_A_comb")
    l_total(a)
    a("s_waitcnt vmcnt(16)")
    combine(a)
    a("s_branch AT_oproj_start")
    a.label("AT_notA")
    zero_o(a)
    cinit(a, False, True)
    a("s_cmp_eq_u32 s87, 1")
    a("s_cbranch_scc1 AT_B")
    a("s_waitcnt vmcnt(16)")
    a("s_barrier")
    first_reads(a, V_RDK, 0)
    st.rt(a, "at_start")
    a("s_cmp_eq_u32 s%d, 1" % S_ROLE)
    a("s_cbranch_scc1 AT_seg1")
    run_n(a, "idle", 66)
    a("s_branch AT_seg2")
    a.label("AT_B")
    for k in range(64): a("v_accvgpr_mov_b32 a%d, a%d" % (A_SP + k, A_Q + k))
    pair_flag(a, 25, F_Q)
    poll(a, 25, 1, V_T, "fq")
    pair_off(a, 25, QX, 16384)
    for f in range(16):
        if f % 4 == 0 and f: a("s_add_u32 s25, s25, 4096")
        a("buffer_load_dwordx4 %s, v1, s[12:15], s25 offen offset:%d sc1" % (ar(A_Q + 4 * f), (f % 4) * 1024))
    a("s_barrier")
    first_reads(a, V_RDK, 0)
    a("s_waitcnt vmcnt(0)")
    st.rt(a, "at_start")
    a.label("AT_seg1")
    assert XA <= 35
    call(a, "qkfirst")
    a("s_add_u32 s25, s%d, s66" % S_N1)
    a("s_sub_u32 s25, s25, 5")
    run_n(a, "full", 25)
    cinit(a, True, False)
    run_k(a, "full", 1)
    call(a, "pvlast")
    st.rt(a, "seg1_done")
    a("s_nop 3")
    l_total(a)
    a("s_cmp_eq_u32 s%d, 0" % S_ROLE)
    a("s_cbranch_scc1 AT_B_gap")
    st.rt(a, "seg_done")
    a(code_warm("v%d" % (V_X + 8)))
    normalize(a)
    a("s_sub_u32 s25, 3, s66")
    run_n(a, "idle", 25)
    a("s_branch AT_oproj_start")
    a.label("AT_B_gap")
    pair_off(a, 25, OPX, 17408)
    normalize(a, 25)
    a("s_add_u32 s25, s25, 4096")
    a("buffer_store_dwordx4 %s, v1, s[12:15], s25 offen sc1" % vr(V_NEGM))
    run_k(a, "idle", 1)
    for k in range(64): a("v_accvgpr_mov_b32 a%d, a%d" % (A_Q + k, A_SP + k))
    zero_o(a)
    run_k(a, "idle", 1)
    only_wave(a, 3, lambda: (pair_flag(a, 25, F_O), set_flag(a, 25, V_T)))
    a.label("AT_seg2")
    cinit(a, True, True)
    call(a, "qkfirst")
    a("s_sub_u32 s25, s%d, s66" % S_N2)
    a("s_sub_u32 s25, s25, 1")
    run_n(a, "full", 25)
    a(code_warm("v%d" % (V_X + 8)))
    call(a, "pvlast")
    st.rt(a, "seg_done")
    a("s_nop 3")
    l_total(a)
    normalize(a)
    a.label("AT_oproj_start")
    st.rt(a, "oproj_start")
    a("s_movk_i32 s29, 128")
    a("buffer_load_dword v%d, off, s[16:19], s29 sc1" % (V_X + 4))
    a("s_mul_i32 s38, s%d, %d" % (S_HEAD, 128 * 14336))
    a("s_mul_i32 s3, s%d, %d" % (S_RW, 2 * 14336))
    a("s_add_u32 s38, s38, s3")
    a("s_add_u32 s38, s38, %d" % PO)
    a("s_mov_b32 s%d, %d" % (S_ST, WSZ))
    a("v_mov_b32 v%d, v1" % V_T2)
    a("v_add_u32 v%d, 14336, v1" % (V_T2 + 1))
    run_k(a, "oproj", 2)
    a("v_cmp_gt_u32 vcc, 0x100, v%d" % (V_X + 4))
    a("s_nop 2")
    a("s_cbranch_vccz AT_cntb_ok")
    poll(a, 29, 1, V_T, "cntb", val=256, srd="s[16:19]")
    a.label("AT_cntb_ok")
    run_k(a, "oproj", 5)
    a("s_nop 5")
    a("s_bitcmp1_b32 s%d, 0" % S_G3)
    a("s_cbranch_scc0 AT_fl0")
    for s, c in op_flush_items(1): a(s)
    a("s_branch AT_fld")
    a.label("AT_fl0")
    for s, c in op_flush_items(0): a(s)
    run_k(a, "idle", 1)
    a.label("AT_fld")
    st.rt(a, "oproj_end")
```

```python
from asmlib import *
import struct, math
def f2u(x): return struct.unpack("<I", struct.pack("<f", x))[0]

KV   = 0x0000000
XN   = 0x2000000
WQP  = 0x2200000
WOP  = 0x2600000
W13P = 0x2A00000
W2P  = 0x2E00000
QX   = 0x3000000
OPX  = 0x3800000
PO   = 0x4200000
HB   = 0x5E00000
HN   = 0x6000000
ACT  = 0x6200000
FLG  = 0x6A00000
STAMP = 0x0F000000
WSZ  = 0x10000000
WBLK = 229376

F_KV = FLG
F_Q  = FLG + 0x1000
F_O  = FLG + 0x6000
F_PO = FLG + 0xB000
F_H  = FLG + 0xC000
F_A  = FLG + 0xD000

S_PX, S_PC, S_PWQ, S_PWUK, S_PWUV, S_PWO, S_PBX, S_PW1, S_PW3, S_PW2, S_POUT, S_PDBG, S_PWS = range(40, 66, 2)
def vr(b, n=4): return "v[%d:%d]" % (b, b + n - 1)
def ar(b, n=4): return "a[%d:%d]" % (b, b + n - 1)
def MF(d, a_, b_, c): return "v_mfma_f32_16x16x32_bf16 %s, %s, %s, %s" % (d, a_, b_, c)

class Stamps:
    def __init__(self, on):
        self.on = on; self.names = []
    def idx(self, name):
        if name not in self.names: self.names.append(name)
        assert len(self.names) <= 32
        return self.names.index(name)
    def rt(self, a, name, op="s_memrealtime"):
        if not self.on: return
        a("%s s[100:101]" % op)
        a("s_waitcnt lgkmcnt(0)")
        a("v_writelane_b32 v3, s100, %d" % self.idx(name))
    def cyc(self, a, name): self.rt(a, name, "s_memtime")
    def flush(self, a):
        if not self.on: return
        a("s_lshl_b32 s3, s2, 2")
        a("s_add_u32 s3, s3, s66")
        a("s_lshl_b32 s3, s3, 7")
        a("s_add_u32 s3, s3, %d" % STAMP)
        a("v_lshlrev_b32 v4, 2, v2")
        a("s_mov_b32 exec_hi, 0")
        a("buffer_store_dword v3, v4, s[12:15], s3 offen")
        a("s_mov_b64 exec, -1")

def xlane_reduce(a, op, x, t):
    a("v_mov_b32 v%d, v%d" % (t, x))
    a("s_nop 1")
    a("v_permlane16_swap_b32 v%d, v%d" % (x, t))
    a("s_nop 1")
    a("%s v%d, v%d, v%d" % (op, x, x, t))
    a("v_mov_b32 v%d, v%d" % (t, x))
    a("s_nop 1")
    a("v_permlane32_swap_b32 v%d, v%d" % (x, t))
    a("s_nop 1")
    a("%s v%d, v%d, v%d" % (op, x, x, t))

def xlane_reduce2(a, op, x, y, t):
    for pl in ("v_permlane16_swap_b32", "v_permlane32_swap_b32"):
        a("v_mov_b32 v%d, v%d" % (t, x))
        a("v_mov_b32 v%d, v%d" % (t + 1, y))
        a("s_nop 0")
        a("%s v%d, v%d" % (pl, x, t))
        a("%s v%d, v%d" % (pl, y, t + 1))
        a("s_nop 0")
        a("%s v%d, v%d, v%d" % (op, x, x, t))
        a("%s v%d, v%d, v%d" % (op, y, y, t + 1))

def code_warm(dst):
    return "buffer_load_dword %s, v1, s[44:47], s48 offen" % dst
def code_srd(a, r, off, uid):
    a("s_getpc_b64 s[%d:%d]" % (r, r + 1))
    a.label("M_pc%d" % uid)
    a("s_sub_u32 s%d, s%d, M_pc%d-M_begin" % (r, r, uid))
    a("s_subb_u32 s%d, s%d, 0" % (r + 1, r + 1))
    a("s_mov_b32 s%d, M_codeend-M_begin" % (r + 2))
    a("s_mov_b32 s%d, 0x00020000" % (r + 3))
    a("s_lshl_b32 s%d, s68, 2" % off)
    a("s_add_u32 s%d, s%d, s66" % (off, off))
    a("s_lshl_b32 s%d, s%d, 10" % (off, off))

def poll(a, addr_sgpr, nflags, vt, name, val=1, srd="s[12:15]"):
    lp = a.newlabel(name + "_poll"); dn = a.newlabel(name + "_pdone")
    a("v_min_u32 v%d, %d, v2" % (vt, nflags - 1))
    a("v_lshlrev_b32 v%d, 2, v%d" % (vt, vt))
    a("s_mov_b32 s3, 0x20000")
    a.label(lp)
    a("buffer_load_dword v%d, v%d, %s, s%d offen sc1" % (vt + 1, vt, srd, addr_sgpr))
    a("s_waitcnt vmcnt(0)")
    a("%s vcc, %d, v%d" % ("v_cmp_ne_u32" if val == 1 else "v_cmp_gt_u32", val, vt + 1))
    a("s_sub_u32 s3, s3, 1")
    a("s_cbranch_scc1 %s" % dn)
    a("s_nop 1")
    a("s_cbranch_vccnz %s" % lp)
    a.label(dn)

def set_flag(a, addr_sgpr, vt, val=1):
    a("v_mov_b32 v%d, s%d" % (vt, addr_sgpr))
    a("v_mov_b32 v%d, %d" % (vt + 1, val))
    a("s_mov_b64 exec, 1")
    a("buffer_store_dword v%d, v%d, s[12:15], 0 offen sc1" % (vt + 1, vt))
    a("s_mov_b64 exec, -1")

def only_wave(a, w, fn):
    sk = a.newlabel("ow")
    a("s_cmp_lg_u32 s66, %d" % w)
    a("s_cbranch_scc1 %s" % sk)
    fn()
    a.label(sk)

class Sched:
    def __init__(self, mf):
        self.mf = mf
        self.items = {g: [] for g in range(-1, 64)}
        self.tail = {g: [] for g in range(-1, 64)}
        self.free = {g: (2 if (g >= 0 and mf[g] is not None) else 99) for g in range(-1, 64)}
    def at(self, g, s, cost=1, last=False):
        (self.tail if last else self.items)[g].append(s)
        self.free[g] -= cost
        return g
    def first_free(self, g0, cost=1, g1=63):
        g = g0
        while g < g1 and self.free[g] < cost: g += 1
        return g
    def flow(self, stream, g0, g1):
        tot = float(sum(c for _, c in stream)); done = 0; pos = g0
        for s, c in stream:
            while pos < g1:
                if self.free[pos] >= c and (pos - g0) / float(g1 - g0 + 1) + 1e-9 >= done / tot - 0.06: break
                pos += 1
            self.at(pos, s, c)
            done += c
    def seq(self):
        out = []
        for g in range(-1, 64):
            if g >= 0 and self.mf[g] is not None: out.append(self.mf[g])
            out += self.items[g] + self.tail[g]
        return out
    def emit(self, a, vm=None):
        for s in self.seq():
            if vm is not None: s = vm.see(s)
            if s: a(s)
    def overflow(self):
        return sum(-f for f in self.free.values() if f < 0)

class VM:
    def __init__(self): self.ops = []
    def see(self, s):
        if s.startswith("WAITVM"):
            p = s.split(None, 2)
            tags = p[1].split(",")
            idx = [i for i, t in enumerate(self.ops) if t in tags]
            extra = " " + p[2] if len(p) > 2 else ""
            if not idx: return ("s_waitcnt" + extra) if extra else ""
            n = len(self.ops) - 1 - max(idx)
            assert n <= 63, n
            return "s_waitcnt vmcnt(%d)%s" % (n, extra)
        if s.startswith("buffer_") or s.startswith("global_"):
            tag = None
            if "@" in s:
                s, tag = s.split("@"); s = s.strip(); tag = tag.strip()
            self.ops.append(tag)
        return s
```

```python
from common import *
import os
E = os.environ.get("EXP", "").split("+")
WFL = " nt"
AFL = " nt" if "nta" in E else ""
QSCALE = math.log2(math.e) / 16.0
S_HEAD, S_I, S_ROLE, S_QB = 30, 31, 32, 33
V_DMA = 4
V_F = [32, 96]
V_VA, V_VW, V_RW, V_RA, V_RAC = 232, 240, 244, 252, 254
LDS_A = 65536; LDS_END = 163840; LN_LDS = LDS_A + 32768
U_SRD = [80, 84, 88]; U_SRC = [92, 93, 94]; U_DST = [95, 96, 97]; U_STR = [69, 98, 99]
U_VOFF = [25, 26, 27]
def U_L(slot, e):
    if slot < 2: return 208 + 2 * e
    return 16 + 2 * e if e < 4 else 224 + 2 * (e - 4)
SRD_X = 72
DMAFL = ""
WARM = True
HEADST = True

def xn_reg(qb, s):
    f = 14 * qb + s
    return vr(32 + 4 * f) if f < 16 else vr(160 + 4 * (f - 16))

class Items:
    def __init__(self): self.it = []
    def __call__(self, s): self.it.append((s, min(2, 1 + s.count("\n"))))

def pack_decode(a, slot):
    R = U_SRD[slot]; sS = U_SRC[slot]; sD = U_DST[slot]; sT = U_STR[slot]
    u, x, y, t0, t1, t2 = 70, 71, 72, 73, 74, 75
    if slot == 0:
        a("s_lshr_b32 s%d, s49, 2" % x)
        a("s_and_b32 s%d, s49, 3" % y)
        a("s_lshl_b32 s%d, s%d, 18" % (sS, x))
        a("s_lshl_b32 s%d, s%d, 9" % (t0, S_HEAD))
        a("s_add_u32 s%d, s%d, s%d" % (sS, sS, t0))
        a("s_lshl_b32 s%d, s%d, 7" % (t0, y))
        a("s_add_u32 s%d, s%d, s%d" % (sS, sS, t0))
        a("s_mul_i32 s%d, s%d, %d" % (sD, S_HEAD, WBLK))
        a("s_lshl_b32 s%d, s49, 12" % t0)
        a("s_add_u32 s%d, s%d, s%d" % (sD, sD, t0))
        a("s_add_u32 s%d, s%d, %d" % (sD, sD, WQP))
        prim = (S_PWQ, 448 * 8192, 8192)
    elif slot == 1:
        a("s_and_b32 s%d, s49, 7" % x)
        a("s_lshr_b32 s%d, s49, 3" % y)
        a("s_mul_i32 s%d, s%d, %d" % (sD, S_HEAD, WBLK))
        a("s_mul_i32 s%d, s%d, %d" % (t0, x, 32 * 896))
        a("s_add_u32 s%d, s%d, s%d" % (sS, sD, t0))
        a("s_lshl_b32 s%d, s%d, 7" % (t0, y))
        a("s_add_u32 s%d, s%d, s%d" % (sS, sS, t0))
        a("s_lshl_b32 s%d, s49, 12" % t0)
        a("s_add_u32 s%d, s%d, s%d" % (sD, sD, t0))
        a("s_add_u32 s%d, s%d, %d" % (sD, sD, WOP))
        prim = (S_PWO, 4096 * 896, 896)
    else:
        a("s_lshl_b32 s%d, s%d, 6" % (t2, S_HEAD))
        a("s_add_u32 s%d, s%d, s49" % (t2, t2))
        a("s_cmp_ge_u32 s%d, 392\ns_cselect_b32 s%d, s%d, s%d\ns_cselect_b32 s%d, s%d, s%d\ns_cselect_b32 s%d, 392, 0\ns_cselect_b32 s%d, 8192, 0"
          % (t2, S_PW1, S_PW3, S_PW1, S_PW1 + 1, S_PW3 + 1, S_PW1 + 1, t0, sD))
        a("s_sub_u32 s%d, s%d, s%d" % (u, t2, t0))
        a("s_lshr_b32 s%d, s%d, 2" % (x, u))
        a("s_mul_i32 s%d, s%d, 9363" % (x, x))
        a("s_lshr_b32 s%d, s%d, 16" % (x, x))
        a("s_mul_i32 s%d, s%d, 28" % (y, x))
        a("s_sub_u32 s%d, s%d, s%d" % (y, u, y))
        a("s_mul_i32 s%d, s%d, %d" % (sS, x, 32 * 3584))
        a("s_lshl_b32 s%d, s%d, 7" % (t0, y))
        a("s_add_u32 s%d, s%d, s%d" % (sS, sS, t0))
        a("s_lshr_b32 s%d, s%d, 1" % (t0, y))
        a("s_mul_i32 s%d, s%d, %d" % (t0, t0, WBLK))
        a("s_add_u32 s%d, s%d, s%d" % (sD, sD, t0))
        a("s_lshl_b32 s%d, s%d, 14" % (t0, x))
        a("s_add_u32 s%d, s%d, s%d" % (sD, sD, t0))
        a("s_and_b32 s%d, s%d, 1" % (t0, y))
        a("s_lshl_b32 s%d, s%d, 12" % (t0, t0))
        a("s_add_u32 s%d, s%d, s%d" % (sD, sD, t0))
        a("s_add_u32 s%d, s%d, %d" % (sD, sD, W13P))
        prim = (S_PW1, 448 * 3584, 3584)
    if slot < 2:
        a("s_lshl_b32 s%d, s%d, 3" % (u, S_HEAD))
        a("s_add_u32 s%d, s%d, s49" % (u, u))
        a("s_add_u32 s%d, s%d, %d" % (u, u, (240, 368)[slot] - 56))
    else:
        a("s_sub_u32 s%d, s%d, 784" % (u, t2))
        a("s_max_i32 s%d, s%d, 0" % (u, u))
    a("s_mul_i32 s%d, s%d, 9363" % (x, u))
    a("s_lshr_b32 s%d, s%d, 16" % (x, x))
    a("s_mul_i32 s%d, s%d, 7" % (y, x))
    a("s_sub_u32 s%d, s%d, s%d" % (y, u, y))
    a("s_mul_i32 s%d, s%d, %d" % (t0, x, 32 * 896))
    a("s_lshl_b32 s%d, s%d, 7" % (t1, y))
    a("s_add_u32 s%d, s%d, s%d" % (t0, t0, t1))
    a("s_mul_i32 s%d, s%d, %d" % (t1, y, WBLK))
    a("s_lshl_b32 s%d, s%d, 12" % (x, x))
    a("s_add_u32 s%d, s%d, s%d" % (t1, t1, x))
    a("s_add_u32 s%d, s%d, %d" % (t1, t1, W2P))
    if slot == 1:
        a("s_cmp_ge_u32 s%d, 392\ns_cselect_b32 s%d, 0, s%d\ns_cselect_b32 s%d, %d, s%d" % (u, t0, t0, t1, WSZ, t1))
    a("s_mov_b32 s%d, %d" % (R + 2, prim[1]))
    a("s_mov_b32 s%d, %d" % (sT, prim[2]))
    c = "s_cmp_ge_u32 s49, 56" if slot < 2 else "s_cmp_ge_u32 s%d, 784" % t2
    a(c + "\ns_cselect_b32 s%d, s%d, s%d\ns_cselect_b32 s%d, s%d, s%d" % (R, S_PW2, prim[0], R + 1, S_PW2 + 1, prim[0] + 1))
    a(c + "\ns_cselect_b32 s%d, %d, s%d\ns_cselect_b32 s%d, 896, s%d" % (R + 2, 1792 * 896, R + 2, sT, sT))
    a(c + "\ns_cselect_b32 s%d, s%d, s%d\ns_cselect_b32 s%d, s%d, s%d\ns_cselect_b64 vcc, -1, 0" % (sS, t0, sS, sD, t1, sD))
    a("s_mov_b32 s%d, 0x00020000" % (R + 3))
    a("v_mul_lo_u32 v%d, v28, s%d" % (U_VOFF[slot], sT))
    a("v_cndmask_b32 v24, v30, v29, vcc")
    a("v_add_u32 v%d, v%d, v24" % (U_VOFF[slot], U_VOFF[slot]))

def unit_loads(slot):
    it = [("s_mul_i32 s70, s%d, 13" % U_STR[slot], 1)]
    for e in range(8):
        it.append(("buffer_load_dwordx2 %s, v%d, s[%d:%d], s%d offen nt @U%d" % (vr(U_L(slot, e), 2), U_VOFF[slot], U_SRD[slot], U_SRD[slot] + 3, U_SRC[slot], slot), 2))
        if e < 7: it.append(("s_add_u32 s%d, s%d, s%d" % (U_SRC[slot], U_SRC[slot], 70 if e == 3 else U_STR[slot]), 1))
    return it
def unit_finish(slot, e0=0, e1=4):
    it = [("WAITVM U%d" % slot, 1)] if e0 == 0 else []
    for e in range(e0, e1):
        o = 8 + 4 * (e & 1)
        for d in range(4):
            it.append(("v_perm_b32 v%d, v%d, v%d, s%d" % (o + d, U_L(slot, 2 * d + 1) + (e >> 1), U_L(slot, 2 * d) + (e >> 1), 76 + (e & 1)), 1))
        it.append(("buffer_store_dwordx4 %s, v1, s[12:15], s%d offen offset:%d sc1 @PK" % (vr(o), U_DST[slot], e * 1024), 2))
    return it

def x_own_off(a, vt, t):
    a("v_and_b32 v%d, 7, v0" % vt)
    a("v_mul_u32_u24 v%d, 896, v%d" % (vt, vt))
    a("v_lshrrev_b32 v%d, 5, v0" % t)
    a("v_lshl_add_u32 v%d, v%d, 6, v%d" % (vt, t, vt))
    a("v_bfe_u32 v%d, v0, 3, 2" % t)
    a("v_lshl_add_u32 v%d, v%d, 3, v%d" % (vt, t, vt))
def frag8_voff(a, vt, t):
    a("v_lshrrev_b32 v%d, 3, v0" % vt)
    a("v_lshlrev_b32 v%d, 8, v%d" % (vt, vt))
    a("v_and_b32 v%d, 7, v0" % t)
    a("v_lshl_add_u32 v%d, v%d, 4, v%d" % (vt, t, vt))
def frag8_soff(a, row8, base, sD1, sD2):
    a("s_lshr_b32 s%d, s%d, 1" % (sD1, row8))
    a("s_mul_i32 s%d, s%d, 14336" % (sD1, sD1))
    a("s_and_b32 s3, s%d, 1" % row8)
    a("s_lshl_b32 s3, s3, 7")
    a("s_add_u32 s%d, s%d, s3" % (sD1, sD1))
    a("s_add_u32 s%d, s%d, %d" % (sD1, sD1, base))
    a("s_add_u32 s%d, s%d, 8192" % (sD2, sD1))
    a("s_cmp_eq_u32 s66, 3")
    a("s_cselect_b32 s%d, %d, s%d" % (sD2, WSZ, sD2))

def ln1_items():
    a = Items()
    t = 12; S = [14, 15]; Q = [16, 17]
    a("v_mov_b32 v%d, 0x3f803f80" % t)
    for d in range(4):
        for r in range(2):
            x = 160 + 4 * r + d
            a("v_dot2_f32_bf16 v%d, v%d, v%d, %s" % (S[r], x, t, "v%d" % S[r] if d else "0"))
            a("v_dot2_f32_bf16 v%d, v%d, v%d, %s" % (Q[r], x, x, "v%d" % Q[r] if d else "0"))
    a("v_and_b32 v9, 3, v2")
    a("v_and_b32 v10, 60, v2")
    a("v_and_b32 v11, 1, v9")
    for sh in (1, 2, 4, 8):
        for x in S + Q: a("v_add_f32_dpp v%d, v%d, v%d row_ror:%d row_mask:0xf bank_mask:0xf" % (x, x, x, sh))
    n0 = len(a.it)
    xlane_reduce2(a, "v_add_f32", S[0], S[1], t)
    xlane_reduce2(a, "v_add_f32", Q[0], Q[1], t)
    for r in range(2):
        a("v_mul_f32 v%d, 0x%x, v%d" % (S[r], f2u(1.0 / 448), S[r]))
        a("v_mul_f32 v%d, 0x%x, v%d" % (Q[r], f2u(1.0 / 448), Q[r]))
        a("v_fma_f32 v%d, -v%d, v%d, v%d" % (Q[r], S[r], S[r], Q[r]))
        a("v_max_f32 v%d, 0, v%d" % (Q[r], Q[r]))
        a("v_add_f32 v%d, 0x%x, v%d" % (Q[r], f2u(1e-5), Q[r]))
        a("v_rsq_f32 v%d, v%d" % (Q[r], Q[r]))
    a("v_lshl_add_u32 v10, v11, 1, v10")
    for r in range(2):
        a("v_mul_f32 v%d, 0x%x, v%d" % (Q[r], f2u(QSCALE), Q[r]))
        a("v_mul_f32 v%d, v%d, v%d" % (S[r], S[r], Q[r]))
    n1 = len(a.it)
    a("v_lshrrev_b32 v9, 1, v9")
    a("v_mul_u32_u24 v11, 4682, v10")
    a("v_lshrrev_b32 v11, 16, v11")
    a("v_min_u32 v11, 3, v11")
    a("v_mul_u32_u24 v11, %d, v11" % (8192 - 14 * 128))
    a("v_lshl_add_u32 v18, v10, 7, v11")
    a("v_lshl_add_u32 v18, v9, 3, v18")
    a("s_lshl_b32 s3, s66, 5")
    a("s_add_u32 s3, s3, %d" % (LN_LDS + 4096))
    a("v_add_u32 v18, s3, v18")
    for r in range(2):
        for d in range(4):
            x = 160 + 4 * r + d
            a("v_lshlrev_b32 v%d, 16, v%d" % (t, x))
            a("v_and_b32 v%d, 0xffff0000, v%d" % (t + 1, x))
            a("v_fma_f32 v%d, v%d, v%d, -v%d" % (t, t, Q[r], S[r]))
            a("v_fma_f32 v%d, v%d, v%d, -v%d" % (t + 1, t + 1, Q[r], S[r]))
            a("v_cvt_pk_bf16_f32 v%d, v%d, v%d" % (x, t, t + 1))
        a("ds_write_b64 v18, %s offset:%d" % (vr(160 + 4 * r, 2), 16 * r))
        a("ds_write_b64 v18, %s offset:%d" % (vr(162 + 4 * r, 2), 16 * r + 128))
    a("v_add_u32 v11, s29, v1")
    a("v_add_u32 v11, %d, v11" % LN_LDS)
    return a.it[:n0], a.it[n0:n1], a.it[n1:]
def xn_store_items():
    a = Items()
    a("v_lshrrev_b32 v9, 3, v2")
    a("v_lshlrev_b32 v9, 8, v9")
    a("v_and_b32 v10, 7, v2")
    a("v_lshl_add_u32 v9, v10, 4, v9")
    a("v_cmp_gt_u32 vcc, 48, v2")
    a("v_mov_b32 v10, %d" % WSZ)
    a("s_lshr_b32 s70, s2, 1")
    a("s_mul_i32 s70, s70, 14336")
    a("v_cndmask_b32 v10, v10, v9, vcc")
    a("s_and_b32 s3, s2, 1")
    a("s_lshl_b32 s3, s3, 7")
    a("s_add_u32 s70, s70, s3")
    a("s_mul_i32 s3, s66, %d" % (14 * 256))
    a("s_add_u32 s70, s70, s3")
    a("s_add_u32 s70, s70, %d" % XN)
    a("buffer_store_dwordx4 v[160:163], v9, s[12:15], s70 offen sc1")
    a("buffer_store_dwordx4 v[164:167], v10, s[12:15], s70 offen offset:2048 sc1")
    a("s_lshl_b32 s3, s2, 8")
    a("s_add_u32 s3, s3, %d" % FLG)
    a("s_cmp_eq_u32 s66, 0\ns_cselect_b32 s3, s3, %d" % WSZ)
    a("v_lshlrev_b32 v12, 2, v2")
    a("v_mov_b32 v13, 0")
    a("buffer_store_dword v13, v12, s[12:15], s3 offen sc1")
    return a.it
def misc_items():
    a = Items()
    a("s_bfe_u32 s%d, s68, 0x30001" % S_I)
    a("s_lshr_b32 s%d, s68, 4" % S_ROLE)
    a("s_sub_u32 s3, 15, s%d" % S_I)
    a("s_cmp_eq_u32 s%d, 1\ns_cselect_b32 s%d, s3, s%d" % (S_ROLE, S_QB, S_I))
    a("s_lshl_b32 s34, s30, 21")
    a("s_lshl_b32 s3, s27, 18")
    a("s_add_u32 s34, s34, s3")
    a("s_lshr_b32 s3, s66, 1")
    a("s_lshl_b32 s3, s3, 17")
    a("s_add_u32 s34, s34, s3")
    a("s_lshl_b32 s3, s28, 14")
    a("s_add_u32 s34, s34, s3")
    a("v_cmp_eq_u32 vcc, 0, v0")
    a("v_mov_b32 v31, %d" % WSZ)
    a("s_and_b32 s79, s68, 7")
    a("v_cndmask_b32 v31, v31, 0, vcc")
    a("s_add_u32 s79, s79, 14")
    a("s_lshl_b32 s79, s79, 18")
    a("s_mov_b32 s16, s62")
    a("s_mov_b32 s17, s63")
    a("s_mov_b32 s18, 256")
    a("s_mov_b32 s19, 0x00020000")
    a("s_mov_b32 s76, 0x05040100")
    a("s_mov_b32 s77, 0x07060302")
    a("v_add_u32 v%d, s24, v1" % V_DMA)
    return a.it

def acc(i, j): return ar(4 * (8 * i + j))
def fa(buf, i): return vr(V_F[buf] + 4 * i)
def fw(buf, j): return V_F[buf] + 32 + 4 * j
def reads(t):
    buf = t & 1; r = []; ws = (t & 3) * 16384
    for j in range(8):
        b = fw(buf, j)
        r.append("ds_read_b64_tr_b16 v[%d:%d], v%d offset:%d" % (b, b + 1, V_RW + j, ws))
        r.append("ds_read_b64_tr_b16 v[%d:%d], v%d offset:%d" % (b + 2, b + 3, V_RW + j, ws + 2048))
        r.append("ds_read_b128 %s, v%d offset:%d" % (fa(buf, j), V_RAC + (t & 1), 2048 * j))
    return r
def dmaW(t):
    return (["s_add_u32 m0, s24, %d" % ((t & 3) * 16384)],
            ["buffer_load_dwordx4 v%d, s[8:11], s20 offen offset:%d%s lds @W%d" % (V_VW + j, j * 1024, WFL, t) for j in range(4)],
            ["s_add_u32 s20, s20, 262144"])
def dmaA(j, half):
    post = []
    if half == 1:
        post = ["s_add_u32 s21, s21, 128", "s_add_u32 s22, s22, 32768",
                "s_cmp_eq_u32 s22, %d\ns_cselect_b32 s22, %d, s22" % (LDS_END, LDS_A)]
    return (["s_add_u32 m0, s22, s%d" % (37 if half == 0 else 29)],
            ["buffer_load_dwordx4 v%d, s[4:7], s21 offen offset:%d%s lds @A%d" % (V_VA + 4 * half + k, k * 1024, AFL, j) for k in range(4)], post)
def dmaQ(c, half):
    lds = (c * 16384 + half * 65536) if c < 4 else 131072 + half * 16384 if c == 4 else ((c - 5) * 16384 + half * 65536)
    return (["s_add_u32 s39, s38, %d" % (c * 32768 + half * 16384), "s_add_u32 m0, s24, %d" % lds],
            ["buffer_load_dwordx4 v%d, s[12:15], s39 offen offset:%d lds%s @Q%d" % (V_DMA, k * 1024, DMAFL, c) for k in range(4)], [])
def xn_load_items(f0, f1):
    it = []
    for f in range(f0, f1):
        if f % 4 == 0 or f == f0: it.append(("s_add_u32 s35, s36, %d" % ((f // 4) * 4096), 1))
        it.append(("buffer_load_dwordx4 %s, v1, s[12:15], s35 offen offset:%d sc1 @XN" % (xn_reg(f // 14, f % 14), (f % 4) * 1024), 2))
    return it

def half_step(a, t, isK, vm, groups, doR=True, first=False, inject=(), wait=None, pre=(), fixed=()):
    buf = t & 1
    mf = []
    for i in range(8):
        for j in range(8):
            ws = vr(fw(buf, j)); c = acc(i, j); src = "0" if first else c
            mf.append(MF(c, ws, fa(buf, i), src) if isK else MF(c, fa(buf, i), ws, src))
    sc = Sched(mf)
    sc.at(-1, wait if wait else "WAITVM W%d,A%d lgkmcnt(0)" % (t + 1, (t + 1) // 2))
    sc.at(-1, "s_barrier")
    sc.free[63] -= 2
    for s, c in pre: sc.at(2, s, c)
    if doR:
        if (t + 1) & 1 == 0:
            sc.at(0, "s_add_u32 s25, s25, 32768")
            sc.at(1, "s_cmp_eq_u32 s25, %d\ns_cselect_b32 s25, %d, s25" % (LDS_END, LDS_A), 2)
            sc.at(5, "v_add_u32 v%d, s25, v%d" % (V_RAC, V_RA))
            sc.at(6, "v_add_u32 v%d, s25, v%d" % (V_RAC + 1, V_RA + 1))
        for n, s in enumerate(reads(t + 1)): sc.at(3 + 2 * n, s)
    ng = len(groups)
    if ng:
        span = 56 // ng
        step = (span // 4) & ~1
        for gi, (p0, ld, post) in enumerate(groups):
            pos = 4 + ((gi * span) & ~1)
            for s in p0: sc.at(pos - 1, s)
            for n in range(4): sc.at(pos + step * n, ld[n], 2)
            g = pos + step * 3 + 1
            for s in post:
                c = 1 + s.count("\n")
                g = sc.first_free(g, c); sc.at(g, s, c)
    for g, s, c in fixed: sc.at(g, s, c)
    if inject: sc.flow(list(inject), 3 if not fixed else max(g for g, _, _ in fixed) + 1, 62)
    for s in sc.seq():
        s = vm.see(s)
        if s: a(s)
    return sc.overflow()

def std_groups(t):
    g = []
    if t + 4 <= 31: g.append(dmaW(t + 4))
    if t <= 26: g.append(dmaA((t + 5) // 2, (t + 1) & 1))
    return g

def emit_group(a, vm, g):
    for s in g[0]: a(s)
    a("s_nop 0")
    for s in g[1] + g[2]: a(vm.see(s))

def prologue(a, st, endlabel):
    a.label("M_begin")
    a("s_cmp_ge_u32 s2, 256")
    a("s_cbranch_scc1 %s" % endlabel)
    a("""
    s_load_dwordx16 s[40:55], s[0:1], 0
    s_load_dwordx8 s[56:63], s[0:1], 64
    s_load_dwordx2 s[64:65], s[0:1], 96
    v_lshrrev_b32 v5, 6, v0
    v_and_b32 v2, 63, v0
    v_readfirstlane_b32 s66, v5
    v_lshlrev_b32 v1, 4, v2
    s_and_b32 s67, s2, 7
    s_lshr_b32 s68, s2, 3
    s_and_b32 s3, s68, 1
    s_lshl_b32 s30, s67, 1
    s_add_u32 s30, s30, s3
    s_bfe_u32 s28, s68, 0x10001
    s_lshr_b32 s27, s68, 2
    """)
    if st.on: a("v_mov_b32 v3, 0")
    if WARM:
        code_srd(a, 20, 24, 0)
        a("buffer_load_dword v8, v1, s[20:23], s24 offen")
    a("v_lshrrev_b32 v9, 3, v2")
    a("v_lshrrev_b32 v10, 4, v2")
    a("v_and_b32 v11, 7, v2")
    a("s_lshl_b32 s3, s66, 6")
    a("v_add_u32 v9, s3, v9")
    a("v_lshlrev_b32 v9, 11, v9")
    a("v_xor_b32 v12, v11, v10")
    a("v_xor_b32 v13, 4, v12")
    a("v_lshl_add_u32 v12, v12, 4, v9")
    a("v_lshl_add_u32 v13, v13, 4, v9")
    for j in range(8):
        a("v_add_u32 v%d, %d, v%d" % (V_VA + j, j * 8 * 2048 - (j & 3) * 1024, 12 + (j & 1)))
    a("v_lshrrev_b32 v9, 5, v2")
    a("v_and_b32 v11, 31, v2")
    a("s_and_b32 s3, s66, 1")
    a("s_lshl_b32 s3, s3, 3")
    a("s_lshl_b32 s38, s66, 3")
    for j in range(4):
        a("v_add_u32 v12, %d, v9" % (2 * j))
        a("v_and_b32 v13, 3, v12")
        a("v_lshlrev_b32 v13, 1, v13")
        a("v_or_b32 v13, s3, v13")
        a("v_xor_b32 v13, v13, v11")
        a("v_add_u32 v12, s38, v12")
        a("v_lshlrev_b32 v12, 13, v12")
        a("v_lshl_add_u32 v12, v13, 4, v12")
        a("v_subrev_u32 v%d, %d, v12" % (V_VW + j, j * 1024))
    a("""
    s_mov_b32 s20, 0
    s_mov_b32 s21, 0
    s_mov_b32 s22, %d
    s_lshl_b32 s37, s66, 13
    s_add_u32 s29, s37, 4096
    s_lshl_b32 s24, s66, 12
    s_waitcnt lgkmcnt(0)
    s_lshl_b32 s3, s27, 19
    s_add_u32 s4, s42, s3
    s_addc_u32 s5, s43, 0
    s_mov_b32 s6, 524288
    s_mov_b32 s7, 0x00020000
    s_cmp_eq_u32 s28, 0
    s_cselect_b32 s8, s46, s48
    s_cselect_b32 s9, s47, s49
    s_lshl_b32 s3, s30, 9
    s_add_u32 s8, s8, s3
    s_addc_u32 s9, s9, 0
    s_sub_u32 s10, 8388608, s3
    s_mov_b32 s11, 0x00020000
    """ % LDS_A)
    st.rt(a, "start")
    vm = VM()
    a("s_mov_b32 s72, s40\ns_mov_b32 s73, s41\ns_mov_b32 s74, 1835008\ns_mov_b32 s75, 0x00020000")
    a("s_lshl_b32 s3, s2, 2")
    a("s_add_u32 s3, s3, s66")
    a("s_mul_i32 s3, s3, %d" % (2 * 896))
    a("v_cmp_gt_u32 vcc, 56, v2")
    a("v_mov_b32 v12, 0x7fffffff")
    a("s_nop 0")
    a("v_cndmask_b32 v12, v12, v1, vcc")
    a(vm.see("buffer_load_dwordx4 v[160:163], v12, s[72:75], s3 offen @X"))
    a(vm.see("buffer_load_dwordx4 v[164:167], v12, s[72:75], s3 offen offset:896 @X"))
    for g in (dmaA(0, 0), dmaW(0), dmaA(0, 1), dmaW(1)): emit_group(a, vm, g)
    a("s_mov_b32 s12, s64\ns_mov_b32 s13, s65\ns_mov_b32 s14, %d\ns_mov_b32 s15, 0x00020000" % WSZ)
    a("v_and_b32 v11, 15, v2")
    a("v_lshrrev_b32 v12, 2, v11")
    a("v_and_b32 v13, 1, v10")
    a("v_lshl_or_b32 v13, v13, 2, v12")
    a("v_lshl_add_u32 v12, v10, 3, v12")
    a("v_lshlrev_b32 v12, 9, v12")
    a("v_and_b32 v14, 3, v11")
    a("v_lshl_add_u32 v12, v14, 3, v12")
    a("s_and_b32 s3, s66, 1")
    a("s_lshl_b32 s3, s3, 8")
    a("v_add_u32 v12, s3, v12")
    for nb in range(8):
        a("v_xor_b32 v14, %d, v13" % nb)
        a("v_lshl_add_u32 v%d, v14, 5, v12" % (V_RW + nb))
    a("v_lshrrev_b32 v12, 1, v11")
    a("v_xor_b32 v12, v12, v10")
    a("v_lshlrev_b32 v12, 4, v12")
    a("v_lshl_add_u32 v12, v11, 7, v12")
    a("s_lshr_b32 s3, s66, 1")
    a("s_lshl_b32 s3, s3, 14")
    a("v_add_u32 v%d, s3, v12" % V_RA)
    a("v_xor_b32 v%d, 64, v%d" % (V_RA + 1, V_RA))
    a("s_mov_b32 s25, %d" % LDS_A)
    a("v_add_u32 v%d, s25, v%d" % (V_RAC, V_RA))
    a("v_add_u32 v%d, s25, v%d" % (V_RAC + 1, V_RA + 1))
    for g in (dmaA(1, 0), dmaW(2), dmaA(1, 1)): emit_group(a, vm, g)
    a("v_lshlrev_b32 v28, 2, v10")
    a("v_lshlrev_b32 v29, 3, v11")
    a("v_and_b32 v12, 3, v11")
    a("v_lshlrev_b32 v12, 5, v12")
    a("v_lshrrev_b32 v11, 2, v11")
    a("v_lshl_add_u32 v30, v11, 3, v12")
    a("s_lshr_b32 s49, s68, 1")
    a("s_lshl_b32 s49, s49, 2")
    a("s_add_u32 s49, s49, s66")
    pack_decode(a, 0)
    code_srd(a, 44, 48, 1)
    for g in (dmaW(3), dmaA(2, 0)): emit_group(a, vm, g)
    a(vm.see("WAITVM W0,A0"))
    a("s_barrier")
    for s in reads(0): a(s)
    st.rt(a, "gemm_start")
    return vm

def kv_off(isK, n):
    x, y = n >> 2, n & 3
    if isK: return 4 * (8 * x + 2 * y), 4 * (8 * x + 2 * y + 1), (x >> 1) * 32768 + (x & 1) * 8192 + y * 1024
    ip, j = x >> 1, (x & 1) * 4 + y
    return 4 * (8 * (2 * ip) + j), 4 * (8 * (2 * ip + 1) + j), ip * 32768 + j * 1024
def kv_store(isK, n, r):
    off = kv_off(isK, n)[2]
    it = [("s_add_u32 s90, s91, %d" % (off & ~4095), 1)] if (n & 3) == 0 else []
    return it + [("buffer_store_dwordx4 %s, v1, s[12:15], s90 offen offset:%d sc1 @KVST" % (vr(r), off & 4095), 2)]
def kv_frag_items(isK, n, r, hold=None):
    t0, t1, off = kv_off(isK, n)
    it = [("v_accvgpr_read_b32 v%d, a%d" % (r + q, t0 + q), 1) for q in range(4)]
    it += [("v_accvgpr_read_b32 v%d, a%d" % (r + 4 + q, t1 + q), 1) for q in range(4)]
    o = hold if hold is not None else r + 8
    it += [("v_cvt_pk_bf16_f32 v%d, v%d, v%d" % (o + q, r + 2 * q, r + 2 * q + 1), 1) for q in range(4)]
    if hold is None: it += kv_store(isK, n, o)
    return it

def gemm(a, st, vm0, stubs, qproj):
    import copy
    a("s_cmp_eq_u32 s28, 0")
    a("s_cbranch_scc0 G_V")
    l0, l1, l2 = ln1_items()
    vmq = None
    for isK in (True, False):
        nm = "G_K" if isK else "G_V"
        a.label(nm)
        ov = []
        vm = copy.deepcopy(vm0)
        hinj = {0: unit_loads(0) + l0, 1: misc_items(), 2: l1, 3: l2, 4: xn_store_items(), 5: unit_finish(0)}
        for t in range(0, 6):
            fx = [(0, "ds_read_b128 v[160:163], v11", 1), (0, "ds_read_b128 v[164:167], v11 offset:1024", 1), (12, "s_waitcnt lgkmcnt(5)", 1)] if t == 4 else []
            ov.append(half_step(a, t, isK, vm, std_groups(t), first=(t == 0), inject=hinj[t], fixed=fx))
        if HEADST: st.rt(a, "t6")
        a("s_mov_b32 s35, 5")
        a("s_branch %s_mid" % nm)
        a(".p2align 4")
        a.label(nm + "_loop")
        vm = VM()
        for t in range(20, 24):
            h = t & 3
            if h == 2: a.label(nm + "_mid")
            pre = [("s_cmp_eq_u32 s20, s79\ns_cbranch_scc1 %s_sig%d\n%s_sigback%d:" % (nm, h, nm, h), 2)]
            stubs.append("%s_sig%d:\nv_mov_b32 v24, 1\nbuffer_atomic_add v24, v31, s[16:19], 0 offen sc1\ns_branch %s_sigback%d" % (nm, h, nm, h))
            ov.append(half_step(a, t, isK, vm, std_groups(t), wait="s_waitcnt vmcnt(16) lgkmcnt(0)", pre=pre))
        if st.on and "itst" in E:
            for k in range(1, 7): st.idx("it%d" % k)
            a("s_memrealtime s[100:101]")
            a("s_sub_u32 s3, %d, s35" % (st.idx("it1") + 6))
            a("s_waitcnt lgkmcnt(0)")
            a("s_mov_b32 m0, s3")
            a("v_writelane_b32 v3, s100, m0")
        a("s_sub_u32 s35, s35, 1")
        a("s_cmp_lg_u32 s35, 0")
        a("s_cbranch_scc1 %s_loop" % nm)
        st.rt(a, "t24")
        sp = Asm(); sp.uid = 1000 + (0 if isK else 50)
        sp.label(nm + "_spin"); sp("s_mov_b32 s39, 0"); poll(sp, 39, 1, 9, nm + "cnt", val=256, srd="s[16:19]"); sp("s_branch %s_spinback" % nm)
        stubs.append(sp.text())
        setup = Asm()
        setup("s_mul_i32 s38, s%d, %d" % (S_HEAD, WBLK))
        setup("s_add_u32 s38, s38, %d" % WQP)
        setup("s_sub_u32 s36, 3, s66")
        setup("s_cmp_eq_u32 s%d, 1\ns_cselect_b32 s26, s66, s36" % S_ROLE)
        su = [(l.strip(), 1) for l in setup.lines[:3]] + [("s_cmp_eq_u32 s%d, 1\ns_cselect_b32 s26, s66, s36" % S_ROLE, 2),
              ("s_lshl_b32 s36, s%d, 2" % S_QB, 1), ("s_add_u32 s26, s26, s36", 1), ("s_mul_i32 s36, s26, %d" % (2 * 14336), 1),
              ("s_add_u32 s36, s36, %d" % XN, 1)]
        d1 = Items(); pack_decode(d1, 1)
        d2 = Items(); pack_decode(d2, 2)
        tinj = {24: [(code_warm("v8"), 2)] + d1.it + unit_loads(1),
                25: [("buffer_load_dword v9, off, s[16:19], 0 sc1 @cnt", 2)] + su + d2.it,
                26: unit_loads(2),
                27: [("WAITVM cnt", 1), ("v_cmp_gt_u32 vcc, 0x100, v9", 1), ("s_nop 0", 1), ("s_nop 0", 1),
                     ("s_cbranch_vccnz %s_spin\n%s_spinback:" % (nm, nm), 1)],
                28: xn_load_items(16, 28), 29: unit_finish(1), 30: unit_finish(2), 31: xn_load_items(0, 16)}
        tq = {28: [dmaQ(0, 0), dmaQ(2, 1)], 29: [dmaQ(1, 0), dmaQ(3, 1)], 30: [dmaQ(2, 0), dmaQ(4, 0), dmaQ(4, 1)],
              31: [dmaQ(0, 1), dmaQ(1, 1), dmaQ(3, 0)]}
        for t in range(24, 32):
            ov.append(half_step(a, t, isK, vm, std_groups(t) + tq.get(t, []), doR=(t < 31), inject=tinj.get(t, [])))
        if isK: print("gemm overflow", ov)
        st.rt(a, "gemm_end")
        a("s_and_b32 s3, s66, 1")
        a("s_lshl_b32 s3, s3, %d" % (12 if isK else 13))
        a("s_add_u32 s91, s34, s3")
        a("s_nop 4")
        for n in range(16):
            for s_, c_ in kv_frag_items(isK, n, 96 + 12 * (n % 5), (232 + 4 * (n - 10)) if n >= 10 else None): a(vm.see(s_))
        st.rt(a, "epi_end")
        qproj(a, st, vm, isK)
        if isK: a("s_branch G_done")
        vmq = vm
    a.label("G_done")
    return vmq
```

```python
from common import *
from gemm import E, S_HEAD, S_I, S_ROLE, S_QB, V_DMA, xn_reg, QUNIT, dmaQ, DMAFL, Items, kv_store, kv_conv, xn_load

V_RDK, V_RDV, V_TABK, V_TABV = 5, 6, 7, 8
V_T = 9
V_NEGM, V_L, V_TS = 16, 18, 20
V_T2 = 22
V_S = [32, 48]; V_P = [64, 72]; V_E = 80; V_C = 96; V_X = 112
V_O = 128
V_CTX = 32; A_SP = 64; A_Q = 128; A_F = 192
S_G3, S_END, S_WQ, S_KO, S_VO = 20, 21, 22, 23, 27
S_RW = 26
S_RET, S_RET2 = 82, 84
S_MASK = 70
S_N1, S_N2, S_ST, S_THR = 34, 35, 36, 37
S_R, S_M = 78, 79
NEG = 0xff3fffff
XA = 36
EXP = set()

def St(buf, kb, qb): return V_S[buf] + 4 * (2 * kb + qb)
def Ct(kb, qb): return V_C + 4 * (2 * kb + qb)
def Ot(db, qb): return V_O + 4 * (2 * db + qb)
def Fr(n): return ar(A_F + 4 * (n % 16))
def Qf(qb, s): return ar(A_Q + 4 * (8 * qb + s))

def FrV(n): return vr(96 + 4 * (n % 16))
def frag_reads(sc, rdK, rdV, rdN, bar, Fr=Fr, paired=False):
    out = [0, 0, 0, 0, 1, 1, 1, 1]
    def wait_for(grp):
        if grp not in out: return None
        idx = max(i for i, x in enumerate(out) if x == grp)
        n = len(out) - 1 - idx
        del out[:idx + 1]
        return n
    for gam in range(8):
        need = (gam < 4 and rdK) or (gam >= 4 and rdV)
        n = wait_for(gam) if need else None
        if gam == 0 and not rdK:
            n = 0; del out[:]
        lg = "" if n is None else "lgkmcnt(%d)" % n
        if gam == 6 and bar is not None:
            if bar or lg: sc.at(47, ((bar if bar else "s_waitcnt") + " " + lg).strip(), last=True)
            sc.at(47, "s_barrier", last=True)
        elif n is not None:
            sc.at(8 * gam - 1, "s_waitcnt " + lg, last=True)
        t = gam + 2
        src = rdK if t < 4 else rdV if t < 8 else rdN
        if not src: continue
        for k in range(4):
            sc.at(8 * gam + (4 * (k >> 1) if paired else 2 * k), "ds_read_b128 %s, v%d offset:%d" % (Fr(4 * t + k), src[0], src[1] + (4 * (t % 4) + k) * 1024))
            out.append(t if t < 8 else 100 + t)
    sc.free[63] -= 1

def ring_fixed(sc, p, useK=True, useV=True, vm=12, loop=None, dma=True, nxt=True, tag="", paired=False, kpos=(21, 25, 27, 29), vpos=(53, 57, 59, 61)):
    frag_reads(sc, (V_RDK, p * 16384) if useK else None, (V_RDV, p * 16384) if useV else None,
               (V_RDK, (1 - p) * 16384) if nxt else None, vm if isinstance(vm, str) else "s_waitcnt vmcnt(%d)" % vm, paired=paired)
    nomf0 = sc.mf[0] is None; nomf1 = sc.mf[63] is None
    if p == 1:
        if dma or not paired: sc.at(0, "s_xor_b32 s%d, s%d, 0x8000" % (S_WQ, S_WQ))
        sc.at(31 if paired else 30, "v_xor_b32 v%d, 0x8000, v%d" % (V_RDK, V_RDK))
        sc.at(55 if paired else 48, "v_xor_b32 v%d, 0x8000, v%d" % (V_RDV, V_RDV))
    if dma:
        sc.at(0 if p == 0 else 2, "v_readlane_b32 s%d, v%d, s%d" % (S_KO, V_TABK, S_G3))
        sc.at(kpos[0] - 1, "s_add_u32 m0, s%d, %d" % (S_WQ, (1 - p) * 16384))
        if nomf0: sc.at(kpos[0] - 1, "s_nop 3")
        for k, g in enumerate(kpos):
            sc.at(g, "buffer_load_dwordx4 v%d, s[12:15], s%d offen offset:%d lds%s" % (V_DMA, S_KO, k * 1024, DMAFL + tag), 2)
        sc.at(36, "v_readlane_b32 s%d, v%d, s%d" % (S_VO, V_TABV, S_G3))
        sc.at(vpos[0] - 1 if vpos[0] > 49 else 46, "s_add_u32 m0, s%d, %d" % (S_WQ, (1 - p) * 16384 + 65536))
        if nomf1: sc.at(vpos[0] - 1, "s_nop 3")
        for k, g in enumerate(vpos):
            sc.at(g, "buffer_load_dwordx4 v%d, s[12:15], s%d offen offset:%d lds%s" % (V_DMA, S_VO, k * 1024, DMAFL + tag), 2)
    if not paired: sc.at(60, "s_add_u32 s%d, s%d, 1" % (S_G3, S_G3))
    if loop:
        sc.at(62, "s_cmp_eq_u32 s%d, s%d" % (S_G3, S_END), last=True)
        sc.at(63, loop, last=True)

def ring_restart(a):
    a("v_readlane_b32 s%d, v%d, 2" % (S_KO, V_TABK))
    a("v_readlane_b32 s%d, v%d, 2" % (S_VO, V_TABV))
    a("s_mov_b32 m0, s24")
    a("v_add_u32 v%d, 0x8000, v1" % V_RDK)
    a("v_add_u32 v%d, 0x18000, v1" % V_RDV)
    a("s_mov_b32 s%d, s24" % S_WQ)
    a("s_mov_b32 s%d, 3" % S_G3)
    for j in range(4): a("buffer_load_dwordx4 v%d, s[12:15], s%d offen offset:%d lds%s" % (V_DMA, S_KO, j * 1024, DMAFL))
    a("s_add_u32 m0, s24, 65536")
    a("s_nop 0")
    for j in range(4): a("buffer_load_dwordx4 v%d, s[12:15], s%d offen offset:%d lds%s" % (V_DMA, S_VO, j * 1024, DMAFL))

def first_reads(a, vreg, imm, Fr=Fr):
    for n in range(8): a("ds_read_b128 %s, v%d offset:%d" % (Fr(n), vreg, imm + n * 1024))

def sm_ops(buf, kb):
    ex, pl = [], []
    for qb in range(2):
        s = St(buf, kb, qb); e = V_E + 8 * kb + 4 * qb; ts = V_TS + qb; P = V_P[buf] + 4 * qb + 2 * kb
        ex += ["v_exp_f32 v%d, v%d" % (e + j, s + j) for j in range(4)]
        b = 4 * qb
        if kb == 0: pl.append(("v_add_f32 v%d, v%d, v%d" % (ts, e, e + 1), b + 1))
        else: pl += [("v_add_f32 v%d, v%d, v%d" % (ts, ts, e), b), ("v_add_f32 v%d, v%d, v%d" % (ts, ts, e + 1), b + 1)]
        pl.append(("v_cvt_pk_bf16_f32 v%d, v%d, v%d" % (P, e, e + 1), b + 1))
        pl += [("v_add_f32 v%d, v%d, v%d" % (ts, ts, e + 2), b + 2), ("v_add_f32 v%d, v%d, v%d" % (ts, ts, e + 3), b + 3)]
        pl.append(("v_cvt_pk_bf16_f32 v%d, v%d, v%d" % (P + 1, e + 2, e + 3), b + 3))
    return ex, pl
def sm_serial(buf, kb):
    ex, pl = sm_ops(buf, kb)
    return ex + [s for s, _ in pl]
def place_sm(sc, buf, kb, exgaps, g0, g1, pre=(), post=()):
    ex, pl = sm_ops(buf, kb)
    for s, g in zip(ex, exgaps):
        if g is not None: sc.at(g, s, 2)
    exgaps = [-1 if g is None else g for g in exgaps]
    g = g0
    for s in pre: g = sc.at(sc.first_free(g, 1, g1), s)
    for s, d in pl: g = sc.at(sc.first_free(max(g, exgaps[d] + 1), 1, g1), s)
    for s in post: g = sc.at(sc.first_free(g, 1, g1), s)

def qk_mfmas(buf):
    mf = []
    for kb in range(2):
        order = [(s, 0) for s in range(4)] + [(s, 1) for s in range(8)] + [(s, 0) for s in range(4, 8)]
        if "nochain" in E: order = [(s, qb) for s in range(8) for qb in range(2)]
        for s, qb in order:
            d = vr(St(buf, kb, qb))
            mf.append(MF(d, Fr(8 * kb + s), Qf(qb, s), vr(Ct(kb, qb)) if s == 0 else d))
    return mf
def pv_mfmas(buf):
    return [MF(vr(Ot(db, qb)), Fr(16 + db), vr(V_P[buf] + 4 * qb), vr(Ot(db, qb))) for db in range(16) for qb in ((0, 1) if db & 1 == 0 or "nochain" in E else (1, 0))]
CHECK = ["v_max_f32 v%d, v%d, v%d" % (V_T, V_TS, V_TS + 1), "v_cmp_lt_f32 vcc, s%d, v%d" % (S_THR, V_T)]
LACC = ["v_add_f32 v%d, v%d, v%d" % (V_L + qb, V_L + qb, V_TS + qb) for qb in range(2)]

def body_full(a, p, loop, stubs):
    sc = Sched(qk_mfmas(p) + pv_mfmas(1 - p))
    sp4 = "sp4" in E
    ring_fixed(sc, p, loop=loop, kpos=(17, 21, 25, 29) if sp4 else (21, 25, 27, 29), vpos=(49, 53, 57, 61) if sp4 else (53, 57, 59, 61))
    back = "AT_full%d_back" % p
    sc.at(31, "s_cbranch_vccnz AT_full%d_stub\n%s:" % (p, back))
    stubs.append(("AT_full%d_stub" % p, p, back))
    if sp4:
        place_sm(sc, 1 - p, 1, (None, 1, 3, 5, 9, 11, 13, 19), 0, 30, post=CHECK)
        place_sm(sc, p, 0, (27, 33, 35, 37, 41, 43, 45, 51), 32, 63, pre=LACC)
        sc.at(59, sm_ops(p, 1)[0][0], 2)
    else:
        place_sm(sc, 1 - p, 1, (1, 3, 5, 9, 11, 13, 17, 19), 0, 30, post=CHECK)
        place_sm(sc, p, 0, (33, 35, 37, 41, 43, 45, 49, 51), 32, 63, pre=LACC)
    sc.emit(a)
    return sc.overflow()

def body_pvlast(a, p, stubs):
    sc = Sched([None] * 32 + pv_mfmas(1 - p))
    ring_fixed(sc, p, useK=False)
    for g in range(16, 31):
        rd = [s for s in sc.items[g] if s.startswith("ds_read")]
        sc.items[g] = [s for s in sc.items[g] if not s.startswith("ds_read")]
        sc.tail[-1] += rd
    back = "AT_pv%d_back" % p
    for s in sm_serial(1 - p, 1) + CHECK: sc.at(10, s)
    sc.at(31, "s_cbranch_vccnz AT_pv%d_stub\n%s:" % (p, back))
    stubs.append(("AT_pv%d_stub" % p, p, back))
    for k, s in enumerate(LACC): sc.at(33, s)
    sc.emit(a)

def body_qkfirst(a, p):
    sc = Sched(qk_mfmas(p) + [None] * 32)
    ring_fixed(sc, p, useV=False)
    t = Asm()
    m = V_T
    for qb in range(2):
        s0 = St(p, 0, qb)
        sc.at(23, "v_max3_f32 v%d, v%d, v%d, v%d" % (m + qb, s0, s0 + 1, s0 + 2))
        sc.at(24, "v_mov_b32 v%d, 0" % (V_L + qb))
    t("s_nop 6")
    for qb in range(2):
        s0, s1 = St(p, 0, qb), St(p, 1, qb)
        t("v_max3_f32 v%d, v%d, v%d, v%d" % (m + qb, m + qb, s0 + 3, s1))
        t("v_max3_f32 v%d, v%d, v%d, v%d" % (m + qb, m + qb, s1 + 1, s1 + 2))
        t("v_max_f32 v%d, v%d, v%d" % (m + qb, m + qb, s1 + 3))
    xlane_reduce2(t, "v_max_f32", m, m + 1, m + 2)
    for qb in range(2):
        t("v_sub_f32 v%d, 0, v%d" % (V_NEGM + qb, m + qb))
        for j in range(4): t("v_sub_f32 v%d, v%d, v%d" % (St(p, 0, qb) + j, St(p, 0, qb) + j, m + qb))
    for l in t.lines: sc.at(37, l.strip())
    t = Asm()
    for s in sm_serial(p, 0): t(s)
    for qb in range(2):
        for j in range(4): t("v_sub_f32 v%d, v%d, v%d" % (St(p, 1, qb) + j, St(p, 1, qb) + j, m + qb))
        for kb in range(2):
            for j in range(4): t("v_mov_b32 v%d, v%d" % (Ct(kb, qb) + j, V_NEGM + qb))
    t(sm_ops(p, 1)[0][0])
    for l in t.lines: sc.at(63, l.strip())
    sc.emit(a)

def body_idle(a, p, loop):
    sc = Sched([None] * 64)
    ring_fixed(sc, p, useK=False, useV=False, loop=loop)
    sc.emit(a)

def rescale_sub(a, p):
    cur, nxt = 1 - p, p
    a.label("AT_rescale%d" % p)
    a("s_nop 7")
    for qb in range(2):
        m = V_T; f = V_T + 1
        s0, s1 = St(cur, 0, qb), St(cur, 1, qb)
        a("v_max3_f32 v%d, v%d, v%d, v%d" % (m, s0, s0 + 1, s0 + 2))
        a("v_max3_f32 v%d, v%d, v%d, v%d" % (m, m, s0 + 3, s1))
        a("v_max3_f32 v%d, v%d, v%d, v%d" % (m, m, s1 + 1, s1 + 2))
        a("v_max3_f32 v%d, v%d, v%d, 0" % (m, m, s1 + 3))
        xlane_reduce(a, "v_max_f32", m, V_T + 2)
        a("v_exp_f32 v%d, -v%d" % (f, m))
        a("v_sub_f32 v%d, v%d, v%d" % (V_NEGM + qb, V_NEGM + qb, m))
        a("v_mul_f32 v%d, v%d, v%d" % (V_L + qb, V_L + qb, f))
        for kb in range(2):
            for j in range(4):
                for r in (St(cur, kb, qb), St(nxt, kb, qb), Ct(kb, qb)):
                    a("v_sub_f32 v%d, v%d, v%d" % (r + j, r + j, m))
        for db in range(16):
            for j in range(4):
                a("v_mul_f32 v%d, v%d, v%d" % (Ot(db, qb) + j, Ot(db, qb) + j, f))
    for kb in range(2):
        for s in sm_serial(cur, kb): a(s)
    a(sm_ops(nxt, 0)[0][0])
    a("s_nop 1")
    a("s_setpc_b64 s[%d:%d]" % (S_RET2, S_RET2 + 1))

def op_acc(buf, e, qb): return V_O + 32 * buf + 4 * (2 * e + qb)
def op_flush_items(buf, k):
    it = [("s_add_u32 s%d, s%d, 2048" % (S_ST, S_ST), 1)] if k else []
    for qb in range(2):
        for sp in range(2):
            r = V_C + 4 * (2 * qb + sp)
            for d in range(4):
                j = 2 * sp + (d >> 1); e = 2 * (d & 1)
                it.append(("v_cvt_pk_bf16_f32 v%d, v%d, v%d" % (r + d, op_acc(buf, e, qb) + j, op_acc(buf, e + 1, qb) + j), 1))
            it.append(("buffer_store_dwordx4 %s, v%d, s[12:15], s%d offen offset:%d sc1 @S%d" % (vr(r), V_T2 if qb else 1, S_ST, sp * 1024, k), 2))
    if "nopo" in E: it = [x for x in it if not x[0].startswith("buffer_store")]
    if "plainpo" in E: it = [(x.replace(" sc1", ""), c) for x, c in it]
    return it

def subroutines(a):
    stubs = []
    ret = "s_setpc_b64 s[%d:%d]" % (S_RET, S_RET + 1)
    def looped(name, fn):
        a.label("AT_%s" % name)
        a("s_bitcmp1_b32 s%d, 0" % S_G3)
        a("s_cbranch_scc0 AT_%s_odd" % name)
        a(".p2align 4")
        a.label("AT_%s_even" % name)
        fn(0, "s_cbranch_scc1 AT_%s_ret" % name)
        a.label("AT_%s_odd" % name)
        fn(1, "s_cbranch_scc0 AT_%s_even" % name)
        a.label("AT_%s_ret" % name)
        a(ret)
    def single(name, fn):
        a.label("AT_%s" % name)
        a("s_bitcmp1_b32 s%d, 0" % S_G3)
        a("s_cbranch_scc0 AT_%s_odd" % name)
        fn(0); a(ret)
        a.label("AT_%s_odd" % name)
        fn(1); a(ret)
    single("qkfirst", lambda p: body_qkfirst(a, p))
    looped("full", lambda p, l: print("full overflow", body_full(a, p, l, stubs)))
    single("pvlast", lambda p: body_pvlast(a, p, stubs))
    looped("idle", lambda p, l: body_idle(a, p, l))
    for lab, p, back in stubs:
        a.label(lab)
        a("s_call_b64 s[%d:%d], AT_rescale%d" % (S_RET2, S_RET2 + 1, p))
        a("s_branch %s" % back)
    rescale_sub(a, 0); rescale_sub(a, 1)

def call(a, name):
    if name == "pvlast":
        a("s_mov_b32 s3, %d" % PKA)
        a("buffer_load_dwordx4 v[124:127], v1, s[12:15], s3 offen sc1")
    a("s_call_b64 s[%d:%d], AT_%s" % (S_RET, S_RET + 1, name))
def run_k(a, name, k):
    a("s_add_u32 s%d, s%d, %d" % (S_END, S_G3, k))
    call(a, name)
def run_n(a, name, cnt):
    sk = a.newlabel("skip")
    a("s_cmp_lt_i32 s%d, 1" % cnt)
    a("s_cbranch_scc1 %s" % sk)
    a("s_add_u32 s%d, s%d, s%d" % (S_END, S_G3, cnt))
    call(a, name)
    a.label(sk)

def cinit(a, masked, zero):
    if masked: a("v_mov_b32 v%d, 0x%x" % (V_T, NEG))
    for kb in range(2):
        for qb in range(2):
            base = "0" if zero else "v%d" % (V_NEGM + qb)
            for j in range(4):
                r = Ct(kb, qb) + j
                if masked and kb == qb: a("v_cndmask_b32 v%d, %s, v%d, s[%d:%d]" % (r, base, V_T, S_MASK + 2 * j, S_MASK + 2 * j + 1))
                elif masked and kb > qb: a("v_mov_b32 v%d, v%d" % (r, V_T))
                elif zero: a("v_mov_b32 v%d, 0" % r)
def zero_o(a):
    for k in range(64): a("v_mov_b64 %s, 0" % vr(V_O + 2 * k, 2))

def tab_seg(a, startK, startV, base, stride, cnt1, lag, first=False):
    t = V_T
    a("v_subrev_u32 v%d, %s, v2" % (t, startK))
    a("v_min_i32 v%d, %s, v%d" % (t + 1, cnt1, t))
    a("v_subrev_u32 v%d, %d, v%d" % (t + 2, lag, t))
    a("v_max_i32 v%d, 0, v%d" % (t + 2, t + 2))
    a("v_min_i32 v%d, %s, v%d" % (t + 2, cnt1, t + 2))
    a("v_mul_i32_i24 v%d, %d, v%d" % (t + 1, stride, t + 1))
    a("v_mul_i32_i24 v%d, %d, v%d" % (t + 2, stride, t + 2))
    a("v_add_u32 v%d, %s, v%d" % (t + 1, base, t + 1))
    a("v_add_u32 v%d, %s, v%d" % (t + 2, base, t + 2))
    a("v_add_u32 v%d, 0x4000, v%d" % (t + 2, t + 2))
    if first:
        a("v_mov_b32 v%d, v%d" % (V_TABK, t + 1))
        a("v_mov_b32 v%d, v%d" % (V_TABV, t + 2))
    else:
        a("v_cmp_le_i32 vcc, 0, v%d" % t)
        a("s_nop 1")
        a("v_cndmask_b32 v%d, v%d, v%d, vcc" % (V_TABK, V_TABK, t + 1))
        a("v_cmp_le_i32 vcc, %d, v%d" % (startV, t))
        a("s_nop 1")
        a("v_cndmask_b32 v%d, v%d, v%d, vcc" % (V_TABV, V_TABV, t + 2))

def tables(a):
    a("s_lshl_b32 s86, s%d, 2" % S_I)
    a("s_sub_u32 s%d, %d, s86" % (S_N1, 64 - XA))
    a("s_add_u32 s%d, s86, 4" % S_N2)
    a("s_cmp_eq_u32 s%d, 1\ns_cselect_b32 s87, %d, 32" % (S_ROLE, XA))
    a("s_cmp_lt_u32 s68, 14\ns_cselect_b32 s%d, s%d, s87\ns_cselect_b32 s%d, s%d, 0\ns_cselect_b32 s87, %d, 0" % (S_N1, S_N1, S_N2, S_N2, XA * KTS))
    a("s_mov_b32 s%d, 0x%x" % (S_THR, f2u(65536.0)))
    a("s_mul_i32 s88, s%d, %d" % (S_HEAD, KHS))
    if KV: a("s_add_u32 s88, s88, %d" % KV)
    a("s_add_u32 s25, s88, s87")
    a("s_sub_u32 s89, s%d, 1" % S_N1)
    tab_seg(a, "0", 0, "s25", KTS, "s89", 1, first=True)
    a("s_add_u32 s86, s86, 3")
    a("s_mul_i32 s86, s86, %d" % KTS)
    a("s_add_u32 s25, s88, s86")
    a("s_sub_u32 s89, s%d, 1" % S_N2)
    tab_seg(a, "s%d" % S_N1, 1, "s25", -KTS, "s89", 1)
    a("s_add_u32 s69, s%d, s%d" % (S_N1, S_N2))
    a("s_add_u32 s69, s69, 1")
    a("s_mul_i32 s25, s%d, %d" % (S_HEAD, WBLK))
    a("s_add_u32 s25, s25, %d" % WOP)
    tab_seg(a, "s69", 0, "s25", 32768, "6", 0)
    a("s_and_b32 s86, s68, 1")
    a("s_lshl_b32 s%d, s67, 1" % S_R)
    a("s_add_u32 s%d, s%d, s86" % (S_R, S_R))
    a("s_lshr_b32 s%d, s68, 1" % S_M)
    a("s_add_u32 s69, s69, 7")
    a("s_min_u32 s25, s%d, 13" % S_M)
    a("s_mul_i32 s25, s25, %d" % WBLK)
    a("s_add_u32 s25, s25, %d" % W13P)
    tab_seg(a, "s69", 0, "s25", 32768, "6", 0)
    a("v_lshrrev_b32 v%d, 4, v2" % V_T)
    a("v_lshlrev_b32 v%d, 2, v%d" % (V_T, V_T))
    a("v_and_b32 v%d, 15, v2" % (V_T + 1))
    for j in range(4):
        a("v_add_u32 v%d, %d, v%d" % (V_T + 2, j, V_T))
        a("v_cmp_gt_u32 s[%d:%d], v%d, v%d" % (S_MASK + 2 * j, S_MASK + 2 * j + 1, V_T + 2, V_T + 1))

def qproj(a, st, vm, isK, stubs):
    a("v_add_u32 v%d, 0x10000, v1" % V_RDV)
    a("v_add_u32 v13, 0x20000, v1")
    a("v_mov_b32 v14, 1")
    a("s_cmp_lt_u32 s68, 14")
    a("s_cselect_b32 s3, %d, 0" % (2 * (XA >> 3)))
    a("v_min_u32 v15, 1, v2")
    a("v_add_u32 v15, s3, v15")
    a("v_mul_u32_u24 v15, %d, v15" % (16 * FB))
    def src(c, h):
        if c > 6: return None
        u = QUNIT[2 * c + h]
        return ((1, V_RDV, 13)[u >> 6], (u & 63) * 1024)
    a(vm.see("WAITVM X18,Q6"))
    a("s_barrier")
    first_reads(a, src(0, 0)[0], src(0, 0)[1], FrV)
    st.rt(a, "q_start")
    nm = "QK" if isK else "QV"
    def place_group(sc, g, g0, offs=(0, 2, 6, 10)):
        p0, ld, _ = g
        for x in p0: sc.at(g0 - 2, x)
        for k in range(4): sc.at(g0 + offs[k], ld[k], 2)
    def kv_group(entry, isV, slot):
        so = S_VO if isV else S_KO
        return (["v_readlane_b32 s%d, v%d, %d" % (so, V_TABV if isV else V_TABK, entry), "s_add_u32 m0, s24, %d" % (slot * 16384 + (65536 if isV else 0))],
                ["buffer_load_dwordx4 v%d, s[12:15], s%d offen offset:%d lds%s" % (V_DMA, so, j * 1024, DMAFL) for j in range(4)], [])
    tb = Items(); tables(tb)
    for c in range(7):
        mf = []
        for h in range(2):
            s = 2 * c + h
            for n in range(16):
                for qb in range(2):
                    d = ar(4 * (2 * n + qb))
                    mf.append(MF(d, FrV(16 * h + n), xn_reg(qb, s), "0" if s == 0 else d))
        sc = Sched(mf)
        bar = {4: "WAITVM Q11,KV1", 5: "WAITVM Q13", 6: "WAITVM KV2,F1"}.get(c)
        frag_reads(sc, src(c, 0), src(c, 1), src(c + 1, 0), bar, FrV)
        if c == 0:
            place_group(sc, dmaQ(9), 3, (0, 8, 16, 24))
            for k in range(8): sc.at(5 + 8 * k - (2 if k == 7 else 0), xn_load(20 + k)[0], 2)
        if c in (2, 3):
            sc.at(-1, "WAITVM X19,Q8" if c == 2 else "WAITVM X27,Q9", last=True)
            sc.at(-1, "s_barrier", last=True)
            for h in range(2): place_group(sc, dmaQ(2 * c + 6 + h), 3 + 32 * h, (0, 8, 16, 24))
        if c == 4:
            for k in range(2): sc.at(49 + 2 * k, sig(O_KV1)[k], 2)
        if c == 6:
            sc.at(29, flag_load("v15", "s%d" % S_GRPF, O_KV1, 12) + " @F1", 2)
            for k in range(2): sc.at(48 + 2 * k, sig(O_KV2)[k], 2)
            sc.at(49, "v_cmp_ne_u32 vcc, 1, v12")
            sc.at(51, "s_cbranch_vccnz %s_spin\n%s_spinback:" % (nm, nm))
            sp = Asm(); sp.label(nm + "_spin"); poll(sp, "v15", "s%d" % S_GRPF, O_KV1, 12, nm + "f1"); sp("s_branch %s_spinback" % nm)
            stubs.append(sp.text())
            g = kv_group(0, False, 2)
            sc.at(45, g[0][0]); sc.at(45, g[0][1])
            for k in range(4): sc.at(52 + k, g[1][k], 2)
            g = kv_group(1, True, 3)
            sc.at(43, g[0][0]); sc.at(56, g[0][1])
            sc.at(56, kv_group(1, False, 3)[0][0])
            for k in range(4): sc.at(57 + k, g[1][k], 2)
            g = kv_group(1, False, 3)
            sc.at(61, g[0][1])
            for k in range(4): sc.at(62 + min(k, 1), g[1][k], 2)
        it = []
        ntb = {0: (0, 24), 1: (24, 84), 6: (84, 999)}.get(c, (0, 0))
        tbi = tb.it[ntb[0]:ntb[1]]
        ns = list({0: range(5, 9), 1: range(9, 14), 2: range(14, 18), 3: range(18, 23), 4: range(23, 27), 5: range(27, 32)}.get(c, ()))
        for k, n in enumerate(ns):
            if n >= 16: it += kv_conv(isK, n, 16)
            elif c == 2: it += [("", 1)] * 12
            it += kv_store(isK, n) + tbi[k * len(tbi) // len(ns):(k + 1) * len(tbi) // len(ns)]
        if c == 6: it = tbi
        if it: sc.flow(it, 0, {6: 40}.get(c, 62))
        if isK: print("qproj overflow", c, sc.overflow())
        sc.emit(a, vm)
        if "qst" in E and c < 6: st.rt(a, "q%d" % (c + 1))

def pair_off(a, dst, base, per_wave):
    a("s_lshl_b32 s%d, s%d, 3" % (dst, S_HEAD))
    a("s_add_u32 s%d, s%d, s%d" % (dst, dst, S_I))
    a("s_lshl_b32 s%d, s%d, 2" % (dst, dst))
    a("s_add_u32 s%d, s%d, s66" % (dst, dst))
    a("s_mul_i32 s%d, s%d, %d" % (dst, dst, per_wave))
    a("s_add_u32 s%d, s%d, %d" % (dst, dst, base))
def partner_flags(a, dst):
    a("s_xor_b32 s%d, s2, 128" % dst)
    a("s_mul_i32 s%d, s%d, %d" % (dst, dst, FB))
    a("s_add_u32 s%d, s%d, %d" % (dst, dst, FLG))

def q_epilogue(a, qb, dst, store):
    for sd in range(8):
        cb, sp = sd >> 1, sd & 1
        r = 32 + 12 * (sd % 4)
        f = 8 * qb + sd
        for d in range(4):
            j = 2 * sp + (d >> 1); e = 2 * (d & 1)
            a("v_accvgpr_read_b32 v%d, a%d" % (r + 2 * d, 4 * (2 * (4 * cb + e) + qb) + j))
            a("v_accvgpr_read_b32 v%d, a%d" % (r + 2 * d + 1, 4 * (2 * (4 * cb + e + 1) + qb) + j))
        for d in range(4): a("v_cvt_pk_bf16_f32 v%d, v%d, v%d" % (r + 8 + d, r + 2 * d, r + 2 * d + 1))
        if store:
            if f % 4 == 0 and f: a("s_add_u32 s25, s25, s39")
            a("buffer_store_dwordx4 %s, v1, s[12:15], s25 offen offset:%d sc1" % (vr(r + 8), (f % 4) * 1024))
        for d in range(4): a("v_accvgpr_write_b32 a%d, v%d" % (dst + 4 * f + d, r + 8 + d))

def l_total(a): xlane_reduce2(a, "v_add_f32", V_L, V_L + 1, V_T)

def pkmul(a, d, x, sc):
    lo = sc & ~1; h = sc & 1
    a("v_pk_mul_f32 %s, %s, %s op_sel:[0,%d] op_sel_hi:[1,%d]" % (vr(d, 2), vr(x, 2), vr(lo, 2), h, h))
def pkfma(a, d, x, sc, c):
    lo = sc & ~1; h = sc & 1
    a("v_pk_fma_f32 %s, %s, %s, %s op_sel:[0,%d,0] op_sel_hi:[1,%d,1]" % (vr(d, 2), vr(x, 2), vr(lo, 2), vr(c, 2), h, h))

def normalize(a, soff=None, f0=0, f1=16):
    if f0 == 0:
        for qb in range(2): a("v_rcp_f32 v%d, v%d" % (V_T2 + qb, V_L + qb))
        a("s_nop 0")
    for f in range(f0, f1):
        qb, s = f >> 3, f & 7
        r = V_CTX + 4 * f
        for h in range(2):
            o = Ot(2 * s + h, qb)
            pkmul(a, o, o, V_T2 + qb); pkmul(a, o + 2, o + 2, V_T2 + qb)
        for h in range(2):
            o = Ot(2 * s + h, qb)
            a("v_cvt_pk_bf16_f32 v%d, v%d, v%d" % (r + 2 * h, o, o + 1))
            a("v_cvt_pk_bf16_f32 v%d, v%d, v%d" % (r + 2 * h + 1, o + 2, o + 3))
        if soff is not None:
            if f % 4 == 0 and f: a("s_add_u32 s%d, s%d, 4096" % (soff, soff))
            a("buffer_store_dwordx4 %s, v1, s[12:15], s%d offen offset:%d sc1" % (vr(r), soff, (f % 4) * 1024))

def partner_loads(a):
    pair_off(a, 25, OPX, 17408)
    for f in range(17):
        if f % 4 == 0 and f: a("s_add_u32 s25, s25, 4096")
        a("buffer_load_dwordx4 %s, v1, s[12:15], s25 offen offset:%d sc1" % (ar(A_SP + 4 * f) if f < 16 else vr(V_X), (f % 4) * 1024))

def combine(a):
    al, be = V_T2, V_T2 + 2
    for qb in range(2):
        t = V_T
        a("v_min_f32 v%d, v%d, v%d" % (t, V_NEGM + qb, V_X + qb))
        a("v_sub_f32 v%d, v%d, v%d" % (t + 1, t, V_NEGM + qb))
        a("v_sub_f32 v%d, v%d, v%d" % (t + 2, t, V_X + qb))
        a("v_exp_f32 v%d, v%d" % (t + 1, t + 1))
        a("v_exp_f32 v%d, v%d" % (t + 2, t + 2))
        a("s_nop 0")
        a("v_mul_f32 v%d, v%d, v%d" % (t + 2, t + 2, V_X + 2 + qb))
        a("v_fma_f32 v%d, v%d, v%d, v%d" % (t, t + 1, V_L + qb, t + 2))
        a("v_rcp_f32 v%d, v%d" % (t, t))
        a("s_nop 0")
        a("v_mul_f32 v%d, v%d, v%d" % (al + qb, t + 1, t))
        a("v_mul_f32 v%d, v%d, v%d" % (be + qb, t + 2, t))
    for f in range(16):
        qb, s = f >> 3, f & 7
        for d in range(4): a("v_accvgpr_read_b32 v%d, a%d" % (V_C + 2 * d + 1, A_SP + 4 * f + d))
        for d in range(4):
            o = Ot(2 * s + (d >> 1), qb) + 2 * (d & 1)
            pkmul(a, o, o, al + qb)
        for d in range(4):
            a("v_lshlrev_b32 v%d, 16, v%d" % (V_C + 2 * d, V_C + 2 * d + 1))
            a("v_and_b32 v%d, 0xffff0000, v%d" % (V_C + 2 * d + 1, V_C + 2 * d + 1))
        for d in range(4):
            o = Ot(2 * s + (d >> 1), qb) + 2 * (d & 1)
            pkfma(a, o, V_C + 2 * d, be + qb, o)
        for d in range(4):
            o = Ot(2 * s + (d >> 1), qb) + 2 * (d & 1)
            a("v_cvt_pk_bf16_f32 v%d, v%d, v%d" % (V_CTX + 4 * f + d, o, o + 1))

def attention(a, st):
    st.rt(a, "q_end")
    a("s_xor_b32 s87, s%d, 1" % S_ROLE)
    a("s_cmp_eq_u32 s%d, 7" % S_I)
    a("s_cselect_b32 s86, 0, s%d" % S_ROLE)
    a("s_cselect_b32 s87, 0, s87")
    pair_off(a, 25, QX, 17408)
    a("s_cmp_eq_u32 s86, 1")
    a("s_cselect_b32 s25, s25, %d" % WSZ)
    a("s_cselect_b32 s39, 4096, 0")
    grp_voff(a, V_T, 16)
    partner_flags(a, 29)
    q_epilogue(a, 0, A_Q, True)
    a(flag_load("v%d" % V_T, "s%d" % S_GRPF, O_KV2, V_T + 1))
    q_epilogue(a, 1, A_Q, True)
    zero_o(a)
    cinit(a, False, True)
    a("s_waitcnt vmcnt(8)")
    a("v_cmp_ne_u32 vcc, 1, v%d" % (V_T + 1))
    a("s_nop 2")
    a("s_cbranch_vccz AT_kvok")
    poll(a, "v%d" % V_T, "s%d" % S_GRPF, O_KV2, V_T + 1, "fkv")
    a.label("AT_kvok")
    st.rt(a, "kv_ready")
    ring_restart(a)
    a("s_lshl_b32 s3, s2, 2")
    a("s_add_u32 s3, s3, %d" % PKA)
    a("buffer_store_dword v14, v31, s[12:15], s3 offen sc1")
    a("s_cmp_eq_u32 s86, 1")
    a("s_cbranch_scc0 AT_notA")
    a("s_waitcnt vmcnt(9)")
    a("s_barrier")
    for x in sig(O_Q): a(x)
    first_reads(a, V_RDK, 0)
    st.rt(a, "at_start")
    call(a, "qkfirst")
    if st.on and "fcyc" in E:
        run_k(a, "full", XA - 4 - 28)
        st.cyc(a, "f0_c")
        run_k(a, "full", 28)
        st.cyc(a, "f1_c")
    else:
        run_k(a, "full", XA - 4)
    a(code_warm("v%d" % (V_X + 8)))
    a(flag_load("off", "s29", O_O, V_X + 4))
    run_k(a, "full", 2)
    a("v_readfirstlane_b32 s39, v%d" % (V_X + 4))
    a("s_cmp_eq_u32 s39, 1")
    a("s_cbranch_scc0 AT_A_late")
    partner_loads(a)
    run_k(a, "full", 1)
    call(a, "pvlast")
    st.rt(a, "seg_done")
    a("s_branch AT_A_comb")
    a.label("AT_A_late")
    run_k(a, "full", 1)
    call(a, "pvlast")
    st.rt(a, "seg_done")
    poll(a, "off", "s29", O_O, V_T, "fo")
    partner_loads(a)
    a("s_waitcnt vmcnt(0)")
    a.label("AT_A_comb")
    l_total(a)
    a("s_waitcnt vmcnt(17)")
    combine(a)
    a("s_branch AT_oproj_start")
    a.label("AT_notA")
    a("s_cmp_eq_u32 s87, 1")
    a("s_cbranch_scc1 AT_B")
    a("s_barrier")
    first_reads(a, V_RDK, 0)
    st.rt(a, "at_start")
    a("s_branch AT_seg1")
    a.label("AT_B")
    for k in range(64): a("v_accvgpr_mov_b32 a%d, a%d" % (A_SP + k, A_Q + k))
    poll(a, "off", "s29", O_Q, V_T, "fq")
    pair_off(a, 25, QX, 17408)
    for f in range(16):
        if f % 4 == 0 and f: a("s_add_u32 s25, s25, 4096")
        a("buffer_load_dwordx4 %s, v1, s[12:15], s25 offen offset:%d sc1" % (ar(A_Q + 4 * f), (f % 4) * 1024))
    a("s_barrier")
    first_reads(a, V_RDK, 0)
    a("s_waitcnt vmcnt(0)")
    st.rt(a, "at_start")
    a.label("AT_seg1")
    a("s_add_u32 s25, s%d, s66" % S_N1)
    a("s_cmp_eq_u32 s25, 4")
    a("s_cbranch_scc1 AT_s1_single")
    call(a, "qkfirst")
    a("s_sub_u32 s25, s25, 5")
    run_n(a, "full", 25)
    cinit(a, True, False)
    run_k(a, "full", 1)
    a("s_branch AT_s1_last")
    a.label("AT_s1_single")
    cinit(a, True, True)
    call(a, "qkfirst")
    a.label("AT_s1_last")
    call(a, "pvlast")
    a("s_nop 3")
    l_total(a)
    a("s_cmp_eq_u32 s87, 1")
    a("s_cbranch_scc1 AT_B_gap")
    st.rt(a, "seg_done")
    a(code_warm("v%d" % (V_X + 8)))
    normalize(a)
    a("s_sub_u32 s25, 3, s66")
    run_n(a, "idle", 25)
    a("s_branch AT_oproj_start")
    a.label("AT_B_gap")
    pair_off(a, 25, OPX, 17408)
    normalize(a, 25)
    a("s_add_u32 s25, s25, 4096")
    a("buffer_store_dwordx4 %s, v1, s[12:15], s25 offen sc1" % vr(V_NEGM))
    run_k(a, "idle", 1)
    for k in range(64): a("v_accvgpr_mov_b32 a%d, a%d" % (A_Q + k, A_SP + k))
    zero_o(a)
    run_k(a, "idle", 1)
    def sig_o():
        a("s_cmp_eq_u32 s%d, 1" % S_FAST)
        a("s_cselect_b32 s25, s%d, %d" % (S_MYF, WSZ))
        a("s_cselect_b32 s3, %d, s%d" % (WSZ, S_MYF))
        a("s_mov_b64 exec, 1")
        a("buffer_store_dword v14, off, s[12:15], s25 offset:%d" % O_O)
        a("buffer_store_dword v14, off, s[12:15], s3 offset:%d sc1" % O_O)
        a("s_mov_b64 exec, -1")
    only_wave(a, 3, sig_o)
    a.label("AT_seg2")
    cinit(a, True, True)
    call(a, "qkfirst")
    a("s_sub_u32 s25, s%d, s66" % S_N2)
    a("s_sub_u32 s25, s25, 1")
    run_n(a, "full", 25)
    a(code_warm("v%d" % (V_X + 8)))
    call(a, "pvlast")
    st.rt(a, "seg_done")
    a("s_nop 3")
    l_total(a)
    normalize(a)
    a.label("AT_oproj_start")
    st.rt(a, "oproj_start")
```

```python
from asmlib import *
import struct, math
def f2u(x): return struct.unpack("<I", struct.pack("<f", x))[0]

import os
KTS = 32768 + int(os.environ.get('KPAD', 1280)); KHS = 64 * KTS + int(os.environ.get('HPAD', 2304))
KV   = 0x7000000
XN   = 0x2000000
WQP  = 0x2200000
WOP  = 0x2600000
W13P = 0x2A00000
W2P  = 0x2E00000
QX   = 0x0000000
OPX  = 0x3800000
PO   = 0x4200000
FLG  = 0x6A00000
STAMP = 0x0F000000
WSZ  = 0x10000000
WBLK = 229376

FB = 384
O_XCC, O_KV1, O_KV2, O_Q, O_O, O_H, O_A, O_A0, O_PO, O_PO1 = 0, 4, 8, 12, 16, 20, 24, 28, 128, 132
PKA = FLG + 0x20000
ALT = 0x5E00000
POH = 2048 * 896
S_FAST, S_MYF, S_GRPF, S_B6 = 92, 93, 94, 95

S_PX, S_PC, S_PWQ, S_PWUK, S_PWUV, S_PWO, S_PBX, S_PW1, S_PW3, S_PW2, S_POUT, S_PDBG, S_PWS = range(40, 66, 2)
def vr(b, n=4): return "v[%d:%d]" % (b, b + n - 1)
def ar(b, n=4): return "a[%d:%d]" % (b, b + n - 1)
def MF(d, a_, b_, c): return "v_mfma_f32_16x16x32_bf16 %s, %s, %s, %s" % (d, a_, b_, c)

class Stamps:
    def __init__(self, on):
        self.on = on; self.names = []
    def idx(self, name):
        if name not in self.names: self.names.append(name)
        assert len(self.names) <= 32, self.names
        return self.names.index(name)
    def rt(self, a, name, op="s_memrealtime"):
        if not self.on: return
        a("%s s[100:101]" % op)
        a("s_waitcnt lgkmcnt(0)")
        a("v_writelane_b32 v3, s100, %d" % self.idx(name))
    def cyc(self, a, name): self.rt(a, name, "s_memtime")
    def flush(self, a):
        if not self.on: return
        a("s_lshl_b32 s3, s2, 2")
        a("s_add_u32 s3, s3, s66")
        a("s_lshl_b32 s3, s3, 7")
        a("s_add_u32 s3, s3, %d" % STAMP)
        a("v_lshlrev_b32 v4, 2, v2")
        a("s_mov_b32 exec_hi, 0")
        a("buffer_store_dword v3, v4, s[12:15], s3 offen")
        a("s_mov_b64 exec, -1")

def xlane_reduce(a, op, x, t):
    a("v_mov_b32 v%d, v%d" % (t, x))
    a("s_nop 1")
    a("v_permlane16_swap_b32 v%d, v%d" % (x, t))
    a("s_nop 1")
    a("%s v%d, v%d, v%d" % (op, x, x, t))
    a("v_mov_b32 v%d, v%d" % (t, x))
    a("s_nop 1")
    a("v_permlane32_swap_b32 v%d, v%d" % (x, t))
    a("s_nop 1")
    a("%s v%d, v%d, v%d" % (op, x, x, t))

def xlane_reduce2(a, op, x, y, t):
    for pl in ("v_permlane16_swap_b32", "v_permlane32_swap_b32"):
        a("v_mov_b32 v%d, v%d" % (t, x))
        a("v_mov_b32 v%d, v%d" % (t + 1, y))
        a("s_nop 0")
        a("%s v%d, v%d" % (pl, x, t))
        a("%s v%d, v%d" % (pl, y, t + 1))
        a("s_nop 0")
        a("%s v%d, v%d, v%d" % (op, x, x, t))
        a("%s v%d, v%d, v%d" % (op, y, y, t + 1))

def code_warm(dst):
    return "buffer_load_dword %s, v1, s[44:47], s48 offen" % dst
def code_srd(a, r, off, uid):
    a("s_getpc_b64 s[%d:%d]" % (r, r + 1))
    a.label("M_pc%d" % uid)
    a("s_sub_u32 s%d, s%d, M_pc%d-M_begin" % (r, r, uid))
    a("s_subb_u32 s%d, s%d, 0" % (r + 1, r + 1))
    a("s_mov_b32 s%d, M_codeend-M_begin" % (r + 2))
    a("s_mov_b32 s%d, 0x00020000" % (r + 3))
    a("s_lshl_b32 s%d, s68, 2" % off)
    a("s_add_u32 s%d, s%d, s66" % (off, off))
    a("s_lshl_b32 s%d, s%d, 10" % (off, off))

def poll(a, voff, soff, imm, vt, name, val=1, srd="s[12:15]"):
    lp = a.newlabel(name + "_poll"); dn = a.newlabel(name + "_pdone")
    a("s_mov_b32 s3, 0x20000")
    a.label(lp)
    a(flag_load(voff, soff, imm, vt, srd))
    a("s_waitcnt vmcnt(0)")
    a("%s vcc, %d, v%d" % ("v_cmp_ne_u32" if val == 1 else "v_cmp_gt_u32", val, vt))
    a("s_sub_u32 s3, s3, 1")
    a("s_cbranch_scc1 %s" % dn)
    a("s_nop 1")
    a("s_cbranch_vccnz %s" % lp)
    a.label(dn)
def flag_load(voff, soff, imm, vt, srd="s[12:15]"):
    return "buffer_load_dword v%d, %s, %s, %s%s offset:%d sc1" % (vt, voff, srd, soff, "" if voff == "off" else " offen", imm)
def sig(off):
    return ["buffer_store_dword v14, v30, s[12:15], s%d offen offset:%d" % (S_MYF, off),
            "buffer_store_dword v14, v29, s[12:15], s%d offen offset:%d sc1" % (S_MYF, off)]
def grp_voff(a, vt, n):
    a("v_min_u32 v%d, %d, v2" % (vt, n - 1))
    a("v_mul_u32_u24 v%d, %d, v%d" % (vt, 16 * FB, vt))

def only_wave(a, w, fn):
    sk = a.newlabel("ow")
    a("s_cmp_lg_u32 s66, %d" % w)
    a("s_cbranch_scc1 %s" % sk)
    fn()
    a.label(sk)

class Sched:
    def __init__(self, mf):
        self.mf = mf
        self.items = {g: [] for g in range(-1, 64)}
        self.tail = {g: [] for g in range(-1, 64)}
        self.free = {g: (2 if (g >= 0 and mf[g] is not None) else 99) for g in range(-1, 64)}
    def vm_ok(self, g, d):
        return not any(x.startswith("buffer_") for k in range(max(-1, g - d), min(63, g + d) + 1) for x in self.items[k] + self.tail[k])
    def at(self, g, s, cost=1, last=False):
        (self.tail if last else self.items)[g].append(s)
        self.free[g] -= cost
        return g
    def first_free(self, g0, cost=1, g1=63):
        g = g0
        while g < g1 and self.free[g] < cost: g += 1
        return g
    def flow(self, stream, g0, g1, vd=0):
        tot = float(sum(c for _, c in stream)); done = 0; pos = g0
        for s, c in stream:
            while pos < g1:
                if self.free[pos] >= c and (not vd or not s.startswith("buffer_") or self.vm_ok(pos, vd)) and (pos - g0) / float(g1 - g0 + 1) + 1e-9 >= done / tot - 0.06: break
                pos += 1
            self.at(pos, s, c)
            done += c
    def seq(self):
        out = []
        for g in range(-1, 64):
            if g >= 0 and self.mf[g] is not None: out.append(self.mf[g])
            out += self.items[g] + self.tail[g]
        return out
    def emit(self, a, vm=None):
        for s in self.seq():
            if vm is not None: s = vm.see(s)
            if s: a(s)
    def overflow(self):
        return sum(-f for f in self.free.values() if f < 0)

class VM:
    def __init__(self): self.ops = []
    def see(self, s):
        if s.startswith("WAITVM"):
            p = s.split(None, 2)
            tags = p[1].split(",")
            idx = [i for i, t in enumerate(self.ops) if t in tags]
            extra = " " + p[2] if len(p) > 2 else ""
            if not idx: return ("s_waitcnt" + extra) if extra else ""
            n = len(self.ops) - 1 - max(idx)
            assert n <= 63, n
            return "s_waitcnt vmcnt(%d)%s" % (n, extra)
        if s.startswith("buffer_") or s.startswith("global_"):
            tag = None
            if "@" in s:
                s, tag = s.split("@"); s = s.strip(); tag = tag.strip()
            self.ops.append(tag)
        return s
```

```python
from common import *
import os
E = os.environ.get("EXP", "").split("+")
WFL = " nt"
AFL = " nt" if "nta" in E else ""
QSCALE = math.log2(math.e) / 16.0
S_HEAD, S_I, S_ROLE, S_QB = 30, 31, 32, 33
V_DMA = 4
V_F = [32, 96]
V_VA, V_VW, V_RW, V_RA, V_RAC = 232, 240, 244, 252, 254
LDS_A = 65536; LDS_END = 163840; LN_LDS = LDS_A + 32768
U_SRD = [80, 84, 88]; U_SRC = [92, 93, 94]; U_DST = [95, 96, 97]; U_STR = [69, 98, 99]
U_VOFF = [25, 26, 27]
def U_L(slot, e):
    if slot < 2: return 208 + 2 * e
    return 16 + 2 * e if e < 4 else 224 + 2 * (e - 4)
SRD_X = 72
DMAFL = ""
WARM = True
HEADST = True

def xn_reg(qb, s):
    if s < 6: return vr(160 + 4 * (2 * s + qb))
    return vr(32 + 4 * (2 * (s - 6) + qb))
QUNIT = [96, 112, 0, 16, 128, 144, 32, 48, 64, 80, 0, 16, 128, 144]

class Items:
    def __init__(self): self.it = []
    def __call__(self, s): self.it.append((s, min(2, 1 + s.count("\n"))))

def pack_decode(a, slot):
    R = U_SRD[slot]; sS = U_SRC[slot]; sD = U_DST[slot]; sT = U_STR[slot]
    u, x, y, t0, t1, t2 = 70, 71, 72, 73, 74, 75
    if slot == 0:
        a("s_lshr_b32 s%d, s49, 2" % x)
        a("s_and_b32 s%d, s49, 3" % y)
        a("s_lshl_b32 s%d, s%d, 18" % (sS, x))
        a("s_lshl_b32 s%d, s%d, 9" % (t0, S_HEAD))
        a("s_add_u32 s%d, s%d, s%d" % (sS, sS, t0))
        a("s_lshl_b32 s%d, s%d, 7" % (t0, y))
        a("s_add_u32 s%d, s%d, s%d" % (sS, sS, t0))
        a("s_mul_i32 s%d, s%d, %d" % (sD, S_HEAD, WBLK))
        a("s_lshl_b32 s%d, s49, 12" % t0)
        a("s_add_u32 s%d, s%d, s%d" % (sD, sD, t0))
        a("s_add_u32 s%d, s%d, %d" % (sD, sD, WQP))
        prim = (S_PWQ, 448 * 8192, 8192)
    elif slot == 1:
        a("s_and_b32 s%d, s49, 7" % x)
        a("s_lshr_b32 s%d, s49, 3" % y)
        a("s_mul_i32 s%d, s%d, %d" % (sD, S_HEAD, WBLK))
        a("s_mul_i32 s%d, s%d, %d" % (t0, x, 32 * 896))
        a("s_add_u32 s%d, s%d, s%d" % (sS, sD, t0))
        a("s_lshl_b32 s%d, s%d, 7" % (t0, y))
        a("s_add_u32 s%d, s%d, s%d" % (sS, sS, t0))
        a("s_lshl_b32 s%d, s49, 12" % t0)
        a("s_add_u32 s%d, s%d, s%d" % (sD, sD, t0))
        a("s_add_u32 s%d, s%d, %d" % (sD, sD, WOP))
        prim = (S_PWO, 4096 * 896, 896)
    else:
        a("s_lshl_b32 s%d, s%d, 6" % (t2, S_HEAD))
        a("s_add_u32 s%d, s%d, s49" % (t2, t2))
        a("s_cmp_ge_u32 s%d, 392\ns_cselect_b32 s%d, s%d, s%d\ns_cselect_b32 s%d, s%d, s%d\ns_cselect_b32 s%d, 392, 0\ns_cselect_b32 s%d, 4096, 0"
          % (t2, S_PW1, S_PW3, S_PW1, S_PW1 + 1, S_PW3 + 1, S_PW1 + 1, t0, sD))
        a("s_sub_u32 s%d, s%d, s%d" % (u, t2, t0))
        a("s_lshr_b32 s%d, s%d, 2" % (x, u))
        a("s_mul_i32 s%d, s%d, 9363" % (x, x))
        a("s_lshr_b32 s%d, s%d, 16" % (x, x))
        a("s_mul_i32 s%d, s%d, 28" % (y, x))
        a("s_sub_u32 s%d, s%d, s%d" % (y, u, y))
        a("s_mul_i32 s%d, s%d, %d" % (sS, x, 32 * 3584))
        a("s_lshl_b32 s%d, s%d, 7" % (t0, y))
        a("s_add_u32 s%d, s%d, s%d" % (sS, sS, t0))
        a("s_mul_i32 s%d, s%d, %d" % (t0, y, WBLK // 2))
        a("s_add_u32 s%d, s%d, s%d" % (sD, sD, t0))
        a("s_lshl_b32 s%d, s%d, 13" % (t0, x))
        a("s_add_u32 s%d, s%d, s%d" % (sD, sD, t0))
        a("s_add_u32 s%d, s%d, %d" % (sD, sD, W13P))
        prim = (S_PW1, 448 * 3584, 3584)
    if slot < 2:
        a("s_lshl_b32 s%d, s%d, 3" % (u, S_HEAD))
        a("s_add_u32 s%d, s%d, s49" % (u, u))
        a("s_add_u32 s%d, s%d, %d" % (u, u, (240, 368)[slot] - 56))
    else:
        a("s_sub_u32 s%d, s%d, 784" % (u, t2))
        a("s_max_i32 s%d, s%d, 0" % (u, u))
    a("s_mul_i32 s%d, s%d, 9363" % (x, u))
    a("s_lshr_b32 s%d, s%d, 16" % (x, x))
    a("s_mul_i32 s%d, s%d, 7" % (y, x))
    a("s_sub_u32 s%d, s%d, s%d" % (y, u, y))
    a("s_mul_i32 s%d, s%d, %d" % (t0, x, 32 * 896))
    a("s_lshl_b32 s%d, s%d, 7" % (t1, y))
    a("s_add_u32 s%d, s%d, s%d" % (t0, t0, t1))
    a("s_mul_i32 s%d, s%d, %d" % (t1, y, WBLK))
    a("s_bfe_u32 s%d, s%d, 0x10001" % (y, x))
    a("s_mul_i32 s%d, s%d, %d" % (y, y, 28 * 4096))
    a("s_add_u32 s%d, s%d, s%d" % (t1, t1, y))
    a("s_and_b32 s%d, s%d, 1" % (y, x))
    a("s_lshr_b32 s%d, s%d, 2" % (x, x))
    a("s_lshl_b32 s%d, s%d, 1" % (x, x))
    a("s_add_u32 s%d, s%d, s%d" % (x, x, y))
    a("s_lshl_b32 s%d, s%d, 12" % (x, x))
    a("s_add_u32 s%d, s%d, s%d" % (t1, t1, x))
    a("s_add_u32 s%d, s%d, %d" % (t1, t1, W2P))
    if slot == 1:
        a("s_cmp_ge_u32 s%d, 392\ns_cselect_b32 s%d, 0, s%d\ns_cselect_b32 s%d, %d, s%d" % (u, t0, t0, t1, WSZ, t1))
    a("s_mov_b32 s%d, %d" % (R + 2, prim[1]))
    a("s_mov_b32 s%d, %d" % (sT, prim[2]))
    c = "s_cmp_ge_u32 s49, 56" if slot < 2 else "s_cmp_ge_u32 s%d, 784" % t2
    a(c + "\ns_cselect_b32 s%d, s%d, s%d\ns_cselect_b32 s%d, s%d, s%d" % (R, S_PW2, prim[0], R + 1, S_PW2 + 1, prim[0] + 1))
    a(c + "\ns_cselect_b32 s%d, %d, s%d\ns_cselect_b32 s%d, 896, s%d" % (R + 2, 1792 * 896, R + 2, sT, sT))
    a(c + "\ns_cselect_b32 s%d, s%d, s%d\ns_cselect_b32 s%d, s%d, s%d\ns_cselect_b64 vcc, -1, 0" % (sS, t0, sS, sD, t1, sD))
    a("s_mov_b32 s%d, 0x00020000" % (R + 3))
    a("v_mul_lo_u32 v%d, v28, s%d" % (U_VOFF[slot], sT))
    a("v_cndmask_b32 v24, v30, v29, vcc")
    a("v_add_u32 v%d, v%d, v24" % (U_VOFF[slot], U_VOFF[slot]))

def unit_loads(slot):
    it = [("s_mul_i32 s70, s%d, 13" % U_STR[slot], 1)]
    for e in range(8):
        it.append(("buffer_load_dwordx2 %s, v%d, s[%d:%d], s%d offen nt @U%d" % (vr(U_L(slot, e), 2), U_VOFF[slot], U_SRD[slot], U_SRD[slot] + 3, U_SRC[slot], slot), 2))
        if e < 7: it.append(("s_add_u32 s%d, s%d, s%d" % (U_SRC[slot], U_SRC[slot], 70 if e == 3 else U_STR[slot]), 1))
    return it
def unit_finish(slot, e0=0, e1=4):
    it = [("WAITVM U%d" % slot, 1)] if e0 == 0 else []
    for e in range(e0, e1):
        o = 8 + 4 * (e & 1)
        for d in range(4):
            it.append(("v_perm_b32 v%d, v%d, v%d, s%d" % (o + d, U_L(slot, 2 * d + 1) + (e >> 1), U_L(slot, 2 * d) + (e >> 1), 76 + (e & 1)), 1))
        it.append(("buffer_store_dwordx4 %s, v1, s[12:15], s%d offen offset:%d sc1 @PK" % (vr(o), U_DST[slot], e * 1024), 2))
    return it

def x_own_off(a, vt, t):
    a("v_and_b32 v%d, 7, v0" % vt)
    a("v_mul_u32_u24 v%d, 896, v%d" % (vt, vt))
    a("v_lshrrev_b32 v%d, 5, v0" % t)
    a("v_lshl_add_u32 v%d, v%d, 6, v%d" % (vt, t, vt))
    a("v_bfe_u32 v%d, v0, 3, 2" % t)
    a("v_lshl_add_u32 v%d, v%d, 3, v%d" % (vt, t, vt))
def frag8_voff(a, vt, t):
    a("v_lshrrev_b32 v%d, 3, v0" % vt)
    a("v_lshlrev_b32 v%d, 8, v%d" % (vt, vt))
    a("v_and_b32 v%d, 7, v0" % t)
    a("v_lshl_add_u32 v%d, v%d, 4, v%d" % (vt, t, vt))
def frag8_soff(a, row8, base, sD1, sD2):
    a("s_lshr_b32 s%d, s%d, 1" % (sD1, row8))
    a("s_mul_i32 s%d, s%d, 14336" % (sD1, sD1))
    a("s_and_b32 s3, s%d, 1" % row8)
    a("s_lshl_b32 s3, s3, 7")
    a("s_add_u32 s%d, s%d, s3" % (sD1, sD1))
    a("s_add_u32 s%d, s%d, %d" % (sD1, sD1, base))
    a("s_add_u32 s%d, s%d, 8192" % (sD2, sD1))
    a("s_cmp_eq_u32 s66, 3\ns_cselect_b32 s%d, %d, s%d" % (sD2, WSZ, sD2))

def ln1_items():
    a = Items()
    t = 12; S = [14, 15]; Q = [16, 17]
    a("v_mov_b32 v%d, 0x3f803f80" % t)
    for d in range(4):
        for r in range(2):
            x = 160 + 4 * r + d
            a("v_dot2_f32_bf16 v%d, v%d, v%d, %s" % (S[r], x, t, "v%d" % S[r] if d else "0"))
            a("v_dot2_f32_bf16 v%d, v%d, v%d, %s" % (Q[r], x, x, "v%d" % Q[r] if d else "0"))
    a("v_and_b32 v9, 3, v2")
    a("v_and_b32 v10, 60, v2")
    a("v_and_b32 v11, 1, v9")
    for sh in (1, 2, 4, 8):
        for x in S + Q: a("v_add_f32_dpp v%d, v%d, v%d row_ror:%d row_mask:0xf bank_mask:0xf" % (x, x, x, sh))
    n0 = len(a.it)
    xlane_reduce2(a, "v_add_f32", S[0], S[1], t)
    xlane_reduce2(a, "v_add_f32", Q[0], Q[1], t)
    for r in range(2):
        a("v_mul_f32 v%d, 0x%x, v%d" % (S[r], f2u(1.0 / 448), S[r]))
        a("v_mul_f32 v%d, 0x%x, v%d" % (Q[r], f2u(1.0 / 448), Q[r]))
        a("v_fma_f32 v%d, -v%d, v%d, v%d" % (Q[r], S[r], S[r], Q[r]))
        a("v_max_f32 v%d, 0, v%d" % (Q[r], Q[r]))
        a("v_add_f32 v%d, 0x%x, v%d" % (Q[r], f2u(1e-5), Q[r]))
        a("v_rsq_f32 v%d, v%d" % (Q[r], Q[r]))
    a("v_lshl_add_u32 v10, v11, 1, v10")
    for r in range(2):
        a("v_mul_f32 v%d, 0x%x, v%d" % (Q[r], f2u(QSCALE), Q[r]))
        a("v_mul_f32 v%d, v%d, v%d" % (S[r], S[r], Q[r]))
    n1 = len(a.it)
    a("v_lshrrev_b32 v9, 1, v9")
    a("v_mul_u32_u24 v11, 4682, v10")
    a("v_lshrrev_b32 v11, 16, v11")
    a("v_min_u32 v11, 3, v11")
    a("v_mul_u32_u24 v11, %d, v11" % (8192 - 14 * 144))
    a("v_mul_u32_u24 v10, 144, v10")
    a("v_add_u32 v18, v10, v11")
    a("v_lshl_add_u32 v18, v9, 3, v18")
    a("s_lshl_b32 s3, s66, 5")
    a("s_add_u32 s3, s3, %d" % (LN_LDS + 4096))
    a("v_add_u32 v18, s3, v18")
    for r in range(2):
        for d in range(4):
            x = 160 + 4 * r + d
            a("v_lshlrev_b32 v%d, 16, v%d" % (t, x))
            a("v_and_b32 v%d, 0xffff0000, v%d" % (t + 1, x))
            a("v_fma_f32 v%d, v%d, v%d, -v%d" % (t, t, Q[r], S[r]))
            a("v_fma_f32 v%d, v%d, v%d, -v%d" % (t + 1, t + 1, Q[r], S[r]))
            a("v_cvt_pk_bf16_f32 v%d, v%d, v%d" % (x, t, t + 1))
        a("ds_write_b64 v18, %s offset:%d" % (vr(160 + 4 * r, 2), 16 * r))
        a("ds_write_b64 v18, %s offset:%d" % (vr(162 + 4 * r, 2), 16 * r + 144))
    a("v_lshrrev_b32 v11, 3, v2")
    a("v_add_lshl_u32 v11, v11, v2, 4")
    a("v_add_u32 v11, s29, v11")
    a("v_add_u32 v11, %d, v11" % LN_LDS)
    return a.it[:n0], a.it[n0:n1], a.it[n1:]
def xn_store_items():
    a = Items()
    a("v_lshrrev_b32 v9, 3, v2")
    a("v_lshlrev_b32 v9, 8, v9")
    a("v_and_b32 v10, 7, v2")
    a("v_lshl_add_u32 v9, v10, 4, v9")
    a("v_cmp_gt_u32 vcc, 48, v2")
    a("v_mov_b32 v10, %d" % WSZ)
    a("s_lshr_b32 s70, s2, 1")
    a("s_mul_i32 s70, s70, 14336")
    a("v_cndmask_b32 v10, v10, v9, vcc")
    a("s_and_b32 s3, s2, 1")
    a("s_lshl_b32 s3, s3, 7")
    a("s_add_u32 s70, s70, s3")
    a("s_mul_i32 s3, s66, %d" % (14 * 256))
    a("s_add_u32 s70, s70, s3")
    a("s_add_u32 s70, s70, %d" % XN)
    a("buffer_store_dwordx4 v[160:163], v9, s[12:15], s70 offen sc1")
    a("buffer_store_dwordx4 v[164:167], v10, s[12:15], s70 offen offset:2048 sc1")
    a("s_getreg_b32 s71, hwreg(HW_REG_XCC_ID, 0, 4)")
    a("s_mul_i32 s3, s2, %d" % FB)
    a("s_add_u32 s71, s71, 1")
    a("s_add_u32 s3, s3, %d" % FLG)
    a("v_cmp_gt_u32 vcc, 16, v0")
    a("v_mov_b32 v9, %d" % WSZ)
    a("v_mov_b32 v12, 0")
    a("v_cndmask_b32 v9, v9, v1, vcc")
    a("v_mov_b32 v13, 0")
    a("v_mov_b32 v14, 0")
    a("v_mov_b32 v15, 0")
    a("v_writelane_b32 v12, s71, 0")
    a("buffer_store_dwordx4 v[12:15], v9, s[12:15], s3 offen sc1")
    a("s_lshl_b32 s3, s2, 2")
    a("s_add_u32 s3, s3, %d" % PKA)
    a("buffer_store_dword v13, v31, s[12:15], s3 offen sc1")
    return a.it
def fast_items():
    a = Items()
    a("s_mul_i32 s%d, s2, %d" % (S_MYF, FB))
    a("s_add_u32 s%d, s%d, %d" % (S_MYF, S_MYF, FLG))
    a("s_mul_i32 s3, s67, %d" % FB)
    a("s_add_u32 s3, s3, %d" % FLG)
    a("v_and_b32 v9, 31, v2")
    a("v_mul_u32_u24 v9, %d, v9" % (8 * FB))
    a("buffer_load_dword v28, v9, s[12:15], s3 offen sc1 @XC")
    a("s_and_b32 s%d, s2, 15" % S_GRPF)
    a("s_mul_i32 s%d, s%d, %d" % (S_GRPF, S_GRPF, FB))
    a("s_add_u32 s%d, s%d, %d" % (S_GRPF, S_GRPF, FLG))
    b = Items()
    b("s_getreg_b32 s3, hwreg(HW_REG_XCC_ID, 0, 4)")
    b("WAITVM XC")
    b("s_add_u32 s3, s3, 1")
    b("v_cmp_ne_u32 vcc, s3, v28")
    b("v_mov_b32 v28, %d" % WSZ)
    b("s_nop 0")
    if "slow" in E: b("s_mov_b64 vcc, -1")
    b("s_cmp_eq_u64 vcc, 0\ns_cselect_b32 s%d, 1, 0\ns_cselect_b64 vcc, -1, 0" % S_FAST)
    b("v_cndmask_b32 v30, v28, v31, vcc")
    b("v_cndmask_b32 v29, v31, v28, vcc")
    return a.it, b.it
def misc_items():
    a = Items()
    a("s_bfe_u32 s%d, s68, 0x30001" % S_I)
    a("s_lshr_b32 s%d, s68, 4" % S_ROLE)
    a("s_sub_u32 s3, 15, s%d" % S_I)
    a("s_cmp_eq_u32 s%d, 1\ns_cselect_b32 s%d, s3, s%d" % (S_ROLE, S_QB, S_I))
    a("s_mul_i32 s34, s30, %d" % KHS)
    a("s_add_u32 s34, s34, %d" % KV)
    a("s_mul_i32 s3, s27, %d" % (8 * KTS))
    a("s_add_u32 s34, s34, s3")
    a("s_lshr_b32 s3, s66, 1")
    a("s_mul_i32 s3, s3, %d" % (4 * KTS))
    a("s_add_u32 s34, s34, s3")
    a("s_lshl_b32 s3, s28, 14")
    a("s_add_u32 s34, s34, s3")
    a("v_cmp_eq_u32 vcc, 0, v0")
    a("v_mov_b32 v31, %d" % WSZ)
    a("s_and_b32 s79, s68, 7")
    a("v_cndmask_b32 v31, v31, 0, vcc")
    a("s_add_u32 s79, s79, 14")
    a("s_lshl_b32 s79, s79, 18")
    a("s_mov_b32 s16, s62")
    a("s_mov_b32 s17, s63")
    a("s_mov_b32 s18, 256")
    a("s_mov_b32 s19, 0x00020000")
    a("s_mov_b32 s76, 0x05040100")
    a("s_mov_b32 s77, 0x07060302")
    a("v_add_u32 v%d, s24, v1" % V_DMA)
    return a.it

def acc(i, j): return ar(4 * (8 * i + j))
def fa(buf, i): return vr(V_F[buf] + 4 * i)
def fw(buf, j): return V_F[buf] + 32 + 4 * j
def reads(t):
    buf = t & 1; r = []; ws = (t & 3) * 16384
    for j in range(8):
        b = fw(buf, j)
        r.append("ds_read_b64_tr_b16 v[%d:%d], v%d offset:%d" % (b, b + 1, V_RW + j, ws))
        r.append("ds_read_b64_tr_b16 v[%d:%d], v%d offset:%d" % (b + 2, b + 3, V_RW + j, ws + 2048))
        r.append("ds_read_b128 %s, v%d offset:%d" % (fa(buf, j), V_RAC + (t & 1), 2048 * j))
    return r
def dmaW(t):
    return (["s_add_u32 m0, s24, %d" % ((t & 3) * 16384)],
            ["buffer_load_dwordx4 v%d, s[8:11], s20 offen offset:%d%s lds @W%d" % (V_VW + j, j * 1024, WFL, t) for j in range(4)],
            ["s_add_u32 s20, s20, 262144"])
def dmaA(j, half):
    post = []
    if half == 1:
        post = ["s_add_u32 s21, s21, 128", "s_add_u32 s22, s22, 32768",
                "s_cmp_eq_u32 s22, %d\ns_cselect_b32 s22, %d, s22" % (LDS_END, LDS_A)]
    return (["s_add_u32 m0, s22, s%d" % (37 if half == 0 else 29)],
            ["buffer_load_dwordx4 v%d, s[4:7], s21 offen offset:%d%s lds @A%d" % (V_VA + 4 * half + k, k * 1024, AFL, j) for k in range(4)], post)
def dmaQ(k):
    return (["s_add_u32 s39, s38, %d" % (k * 16384), "s_add_u32 m0, s24, %d" % (QUNIT[k] * 1024)],
            ["buffer_load_dwordx4 v%d, s[12:15], s39 offen offset:%d lds%s @Q%d" % (V_DMA, j * 1024, DMAFL, k) for j in range(4)], [])
def xn_load(m):
    s_, qb = m >> 1, m & 1
    return ("buffer_load_dwordx4 %s, v%d, s[12:15], s%d offen offset:%d sc1 @X%d" % (xn_reg(qb, s_), 5 if qb else 1, (36, 35, 72, 73)[s_ >> 2], (s_ & 3) * 1024, m), 2)

def half_step(a, t, isK, vm, groups, doR=True, first=False, inject=(), wait=None, pre=(), fixed=()):
    buf = t & 1
    mf = []
    for i in range(8):
        for j in (range(8) if i & 1 == 0 or "nochain" in E else range(7, -1, -1)):
            ws = vr(fw(buf, j)); c = acc(i, j); src = "0" if first else c
            mf.append(MF(c, ws, fa(buf, i), src) if isK else MF(c, fa(buf, i), ws, src))
    sc = Sched(mf)
    sc.at(-1, wait if wait else "WAITVM W%d,A%d lgkmcnt(0)" % (t + 1, (t + 1) // 2))
    sc.at(-1, "s_barrier")
    sc.free[63] -= 2
    for s, c in pre: sc.at(2, s, c)
    if doR:
        if (t + 1) & 1 == 0:
            sc.at(0, "s_add_u32 s25, s25, 32768")
            sc.at(1, "s_cmp_eq_u32 s25, %d\ns_cselect_b32 s25, %d, s25" % (LDS_END, LDS_A), 2)
            sc.at(5, "v_add_u32 v%d, s25, v%d" % (V_RAC, V_RA))
            sc.at(6, "v_add_u32 v%d, s25, v%d" % (V_RAC + 1, V_RA + 1))
        for n, s in enumerate(reads(t + 1)): sc.at(3 + 2 * n, s)
    ng = len(groups)
    if ng:
        span = 56 // ng
        step = (span // 4) & ~1
        for gi, (p0, ld, post) in enumerate(groups):
            pos = 4 + ((gi * span) & ~1)
            for s in p0: sc.at(pos - 1, s)
            for n in range(4): sc.at(pos + step * n, ld[n], 2)
            g = pos + step * 3 + 1
            for s in post:
                c = 1 + s.count("\n")
                g = sc.first_free(g, c); sc.at(g, s, c)
    for g, s, c in fixed: sc.at(g, s, c)
    if inject: sc.flow(list(inject), 3 if not fixed else max(g for g, _, _ in fixed) + 1, 62)
    for s in sc.seq():
        s = vm.see(s)
        if s: a(s)
    return sc.overflow()

def std_groups(t):
    g = []
    if t + 4 <= 31: g.append(dmaW(t + 4))
    if t <= 26: g.append(dmaA((t + 5) // 2, (t + 1) & 1))
    return g

def emit_group(a, vm, g):
    for s in g[0]: a(s)
    a("s_nop 0")
    for s in g[1] + g[2]: a(vm.see(s))

def prologue(a, st, endlabel):
    a.label("M_begin")
    a("s_cmp_ge_u32 s2, 256")
    a("s_cbranch_scc1 %s" % endlabel)
    a("""
    s_load_dwordx16 s[40:55], s[0:1], 0
    s_load_dwordx8 s[56:63], s[0:1], 64
    s_load_dwordx2 s[64:65], s[0:1], 96
    v_lshrrev_b32 v5, 6, v0
    v_and_b32 v2, 63, v0
    v_readfirstlane_b32 s66, v5
    v_lshlrev_b32 v1, 4, v2
    s_and_b32 s67, s2, 7
    s_lshr_b32 s68, s2, 3
    s_and_b32 s3, s68, 1
    s_lshl_b32 s30, s67, 1
    s_add_u32 s30, s30, s3
    s_bfe_u32 s28, s68, 0x10001
    s_lshr_b32 s27, s68, 2
    """)
    if st.on: a("v_mov_b32 v3, 0")
    if WARM:
        code_srd(a, 20, 24, 0)
        a("buffer_load_dword v8, v1, s[20:23], s24 offen")
    a("v_lshrrev_b32 v9, 3, v2")
    a("v_lshrrev_b32 v10, 4, v2")
    a("v_and_b32 v11, 7, v2")
    a("s_lshl_b32 s3, s66, 6")
    a("v_add_u32 v9, s3, v9")
    a("v_lshlrev_b32 v9, 11, v9")
    a("v_xor_b32 v12, v11, v10")
    a("v_xor_b32 v13, 4, v12")
    a("v_lshl_add_u32 v12, v12, 4, v9")
    a("v_lshl_add_u32 v13, v13, 4, v9")
    for j in range(8):
        a("v_add_u32 v%d, %d, v%d" % (V_VA + j, j * 8 * 2048 - (j & 3) * 1024, 12 + (j & 1)))
    a("v_lshrrev_b32 v9, 5, v2")
    a("v_and_b32 v11, 31, v2")
    a("s_and_b32 s3, s66, 1")
    a("s_lshl_b32 s3, s3, 3")
    a("s_lshl_b32 s38, s66, 3")
    for j in range(4):
        a("v_add_u32 v12, %d, v9" % (2 * j))
        a("v_and_b32 v13, 3, v12")
        a("v_lshlrev_b32 v13, 1, v13")
        a("v_or_b32 v13, s3, v13")
        a("v_xor_b32 v13, v13, v11")
        a("v_add_u32 v12, s38, v12")
        a("v_lshlrev_b32 v12, 13, v12")
        a("v_lshl_add_u32 v12, v13, 4, v12")
        a("v_subrev_u32 v%d, %d, v12" % (V_VW + j, j * 1024))
    a("""
    s_mov_b32 s20, 0
    s_mov_b32 s21, 0
    s_mov_b32 s22, %d
    s_lshl_b32 s37, s66, 13
    s_add_u32 s29, s37, 4096
    s_lshl_b32 s24, s66, 12
    s_waitcnt lgkmcnt(0)
    s_lshl_b32 s3, s27, 19
    s_add_u32 s4, s42, s3
    s_addc_u32 s5, s43, 0
    s_mov_b32 s6, 524288
    s_mov_b32 s7, 0x00020000
    s_cmp_eq_u32 s28, 0
    s_cselect_b32 s8, s46, s48
    s_cselect_b32 s9, s47, s49
    s_lshl_b32 s3, s30, 9
    s_add_u32 s8, s8, s3
    s_addc_u32 s9, s9, 0
    s_sub_u32 s10, 8388608, s3
    s_mov_b32 s11, 0x00020000
    """ % LDS_A)
    st.rt(a, "start")
    vm = VM()
    a("s_mov_b32 s72, s40\ns_mov_b32 s73, s41\ns_mov_b32 s74, 1835008\ns_mov_b32 s75, 0x00020000")
    a("s_lshl_b32 s3, s2, 2")
    a("s_add_u32 s3, s3, s66")
    a("s_mul_i32 s3, s3, %d" % (2 * 896))
    a("v_cmp_gt_u32 vcc, 56, v2")
    a("v_mov_b32 v12, 0x7fffffff")
    a("s_nop 0")
    a("v_cndmask_b32 v12, v12, v1, vcc")
    a(vm.see("buffer_load_dwordx4 v[160:163], v12, s[72:75], s3 offen @X"))
    a(vm.see("buffer_load_dwordx4 v[164:167], v12, s[72:75], s3 offen offset:896 @X"))
    for g in (dmaA(0, 0), dmaW(0), dmaA(0, 1), dmaW(1)): emit_group(a, vm, g)
    a("s_mov_b32 s12, s64\ns_mov_b32 s13, s65\ns_mov_b32 s14, %d\ns_mov_b32 s15, 0x00020000" % WSZ)
    a("v_and_b32 v11, 15, v2")
    a("v_lshrrev_b32 v12, 2, v11")
    a("v_and_b32 v13, 1, v10")
    a("v_lshl_or_b32 v13, v13, 2, v12")
    a("v_lshl_add_u32 v12, v10, 3, v12")
    a("v_lshlrev_b32 v12, 9, v12")
    a("v_and_b32 v14, 3, v11")
    a("v_lshl_add_u32 v12, v14, 3, v12")
    a("s_and_b32 s3, s66, 1")
    a("s_lshl_b32 s3, s3, 8")
    a("v_add_u32 v12, s3, v12")
    for nb in range(8):
        a("v_xor_b32 v14, %d, v13" % nb)
        a("v_lshl_add_u32 v%d, v14, 5, v12" % (V_RW + nb))
    a("v_lshrrev_b32 v12, 1, v11")
    a("v_xor_b32 v12, v12, v10")
    a("v_lshlrev_b32 v12, 4, v12")
    a("v_lshl_add_u32 v12, v11, 7, v12")
    a("s_lshr_b32 s3, s66, 1")
    a("s_lshl_b32 s3, s3, 14")
    a("v_add_u32 v%d, s3, v12" % V_RA)
    a("v_xor_b32 v%d, 64, v%d" % (V_RA + 1, V_RA))
    a("s_mov_b32 s25, %d" % LDS_A)
    a("v_add_u32 v%d, s25, v%d" % (V_RAC, V_RA))
    a("v_add_u32 v%d, s25, v%d" % (V_RAC + 1, V_RA + 1))
    for g in (dmaA(1, 0), dmaW(2), dmaA(1, 1)): emit_group(a, vm, g)
    a("v_lshlrev_b32 v28, 2, v10")
    a("v_lshlrev_b32 v29, 3, v11")
    a("v_and_b32 v12, 3, v11")
    a("v_lshlrev_b32 v12, 5, v12")
    a("v_lshrrev_b32 v11, 2, v11")
    a("v_lshl_add_u32 v30, v11, 3, v12")
    a("s_lshr_b32 s49, s68, 1")
    a("s_lshl_b32 s49, s49, 2")
    a("s_add_u32 s49, s49, s66")
    pack_decode(a, 0)
    code_srd(a, 44, 48, 1)
    for g in (dmaW(3), dmaA(2, 0)): emit_group(a, vm, g)
    a(vm.see("WAITVM W0,A0"))
    a("s_barrier")
    for s in reads(0): a(s)
    st.rt(a, "gemm_start")
    return vm

def kv_off(isK, n):
    x, y = n >> 2, n & 3
    if isK: return 4 * (8 * x + 2 * y), 4 * (8 * x + 2 * y + 1), (x >> 1) * KTS + (x & 1) * 8192 + y * 1024
    ip, j = x >> 1, (x & 1) * 4 + y
    return 4 * (8 * (2 * ip) + j), 4 * (8 * (2 * ip + 1) + j), ip * KTS + j * 1024
def kv_hold(n): return 208 + 4 * (n % 12)
def kv_store(isK, n):
    off = kv_off(isK, n)[2]
    it = [("s_add_u32 s90, s91, %d" % off, 1)] if (n & 3) == 0 else []
    return it + [("buffer_store_dwordx4 %s, v1, s[12:15], s90 offen offset:%d sc1 @KV%d" % (vr(kv_hold(n)), (n & 3) * 1024, 1 if n < 16 else 2), 2)]
def kv_conv(isK, n, r):
    t0, t1, off = kv_off(isK, n)
    it = [("v_accvgpr_read_b32 v%d, a%d" % (r + q, t0 + q), 1) for q in range(4)]
    it += [("v_accvgpr_read_b32 v%d, a%d" % (r + 4 + q, t1 + q), 1) for q in range(4)]
    it += [("v_cvt_pk_bf16_f32 v%d, v%d, v%d" % (kv_hold(n) + q, r + 2 * q, r + 2 * q + 1), 1) for q in range(4)]
    return it

def gemm(a, st, vm0, stubs, qproj):
    import copy
    a("s_cmp_eq_u32 s28, 0")
    a("s_cbranch_scc0 G_V")
    l0, l1, l2 = ln1_items()
    d1 = Items(); pack_decode(d1, 1)
    vmq = None
    for isK in (True, False):
        nm = "G_K" if isK else "G_V"
        a.label(nm)
        ov = []
        vm = copy.deepcopy(vm0)
        hinj = {0: unit_loads(0) + l0, 1: misc_items() + d1.it, 2: l1, 3: l2, 4: xn_store_items(), 5: unit_finish(0)}
        for t in range(0, 6):
            fx = [(0, "ds_read_b128 v[160:163], v11", 1), (0, "ds_read_b128 v[164:167], v11 offset:1152", 1), (12, "s_waitcnt lgkmcnt(5)", 1)] if t == 4 else []
            if "hst" in E and t > 0: st.rt(a, "t%d" % t)
            ov.append(half_step(a, t, isK, vm, std_groups(t), first=(t == 0), inject=hinj[t], fixed=fx))
        if HEADST: st.rt(a, "t6")
        a("s_mov_b32 s35, 5")
        a("s_branch %s_mid" % nm)
        a(".p2align 4")
        a.label(nm + "_loop")
        vm = VM()
        for t in range(20, 24):
            h = t & 3
            if h == 2: a.label(nm + "_mid")
            pre = [("s_cmp_eq_u32 s20, s79\ns_cbranch_scc1 %s_sig%d\n%s_sigback%d:" % (nm, h, nm, h), 2)]
            stubs.append("%s_sig%d:\nv_mov_b32 v24, 1\nbuffer_atomic_add v24, v31, s[16:19], 0 offen sc1\ns_branch %s_sigback%d" % (nm, h, nm, h))
            ov.append(half_step(a, t, isK, vm, std_groups(t), wait="s_waitcnt vmcnt(16) lgkmcnt(0)", pre=pre))
        if st.on and "itst" in E:
            for k in range(1, 7): st.idx("it%d" % k)
            a("s_memrealtime s[100:101]")
            a("s_sub_u32 s3, %d, s35" % (st.idx("it1") + 6))
            a("s_waitcnt lgkmcnt(0)")
            a("s_mov_b32 m0, s3")
            a("v_writelane_b32 v3, s100, m0")
        a("s_sub_u32 s35, s35, 1")
        a("s_cmp_lg_u32 s35, 0")
        a("s_cbranch_scc1 %s_loop" % nm)
        st.rt(a, "t24")
        sp = Asm(); sp.uid = 1000 + (0 if isK else 50)
        sp.label(nm + "_spin"); poll(sp, "off", "0", 0, 9, nm + "cnt", val=256, srd="s[16:19]"); sp("s_branch %s_spinback" % nm)
        stubs.append(sp.text())
        su = Items()
        su("s_mul_i32 s38, s%d, %d" % (S_HEAD, WBLK))
        su("s_add_u32 s38, s38, %d" % WQP)
        su("s_sub_u32 s36, 3, s66")
        su("s_cmp_lt_u32 s68, 14\ns_cselect_b32 s26, s36, s66")
        su("s_lshl_b32 s36, s%d, 2" % S_QB)
        su("s_add_u32 s26, s26, s36")
        su("s_mul_i32 s36, s26, %d" % (2 * 14336))
        su("s_add_u32 s36, s36, %d" % XN)
        su("s_add_u32 s35, s36, 4096")
        su("s_add_u32 s72, s36, 8192")
        su("s_add_u32 s73, s36, 12288")
        su("v_add_u32 v5, 14336, v1")
        su("s_and_b32 s3, s66, 1")
        su("s_lshl_b32 s3, s3, %d" % (12 if isK else 13))
        su("s_add_u32 s91, s34, s3")
        d2 = Items(); pack_decode(d2, 2)
        k31 = []
        for n in range(6): k31 += kv_conv(isK, n, 8) + (kv_store(isK, n >> 1) if n & 1 else [])
        xl = [xn_load(m) for m in range(28)]
        touch = [("s_and_b32 s3, s49, 7", 1), ("s_lshl_b32 s3, s3, 13", 1), ("s_add_u32 s3, s3, s38", 1), ("s_add_u32 s3, s3, %d" % (10 * 16384), 1),
                 ("v_lshlrev_b32 v24, 3, v1", 1), ("buffer_load_dword v24, v24, s[12:15], s3 offen", 2)]
        def mix(x, y):
            out = []; k = 0
            for n, it in enumerate(x):
                out.append(it)
                while k < len(y) and (k + 1) * len(x) <= (n + 1) * len(y): out.append(y[k]); k += 1
            return out
        tinj = {24: [("buffer_load_dword v9, off, s[16:19], 0 sc1 @cnt", 2), (code_warm("v8"), 2)] + unit_loads(1) + d2.it[:30],
                25: d2.it[30:] + unit_loads(2) + su.it,
                26: [("WAITVM cnt", 1), ("v_cmp_gt_u32 vcc, 0x100, v9", 1), ("s_nop 0", 1), ("s_nop 0", 1),
                     ("s_cbranch_vccnz %s_spin\n%s_spinback:" % (nm, nm), 1)] + fast_items()[0],
                28: mix(unit_finish(1), xl[0:12]), 29: fast_items()[1] + unit_finish(2) + touch, 31: k31}
        tfix = {30: [(8 * i + 8 + (6 if i < 6 else 4), xl[12 + i][0], 2) for i in range(7)],
                31: [(19, xl[19][0], 2)]}
        tq = {27: [dmaQ(0), dmaQ(1)], 28: [dmaQ(2)], 29: [dmaQ(3), dmaQ(4)], 30: [dmaQ(5), dmaQ(6)], 31: [dmaQ(7), dmaQ(8)]}
        for t in range(24, 32):
            if "tst" in E and t > 24: st.rt(a, "t%d" % t)
            ov.append(half_step(a, t, isK, vm, std_groups(t) + tq.get(t, []), doR=(t < 31), inject=tinj.get(t, []), fixed=tfix.get(t, [])))
        if isK: print("gemm overflow", ov)
        st.rt(a, "gemm_end")
        for n in range(6, 16):
            for s_, c_ in kv_conv(isK, n, 96 + 8 * (n & 3)) + (kv_store(isK, {8: 3, 13: 4}[n]) if n in (8, 13) else []): a(vm.see(s_))
        st.rt(a, "epi_end")
        qproj(a, st, vm, isK, stubs)
        if isK: a("s_branch G_done")
        vmq = vm
    a.label("G_done")
    return vmq
```

```python
from common import *
from gemm import x_own_off, frag8_voff, frag8_soff
from attn import *
import os

def publish(a, off):
    sk = a.newlabel("pub")
    a("s_cmp_eq_u32 s%d, 1" % S_FAST)
    a("s_waitcnt vmcnt(0)")
    a("s_barrier")
    a("s_cbranch_scc1 %s" % sk)
    a("buffer_wbl2 sc1")
    a("s_waitcnt vmcnt(0)")
    a.label(sk)
    for x in sig(off): a(x)
def acquire(a, n, off, name):
    sk = a.newlabel("acq")
    grp_voff(a, 12, n)
    poll(a, "v12", "s%d" % S_GRPF, off, 13, name)
    a("s_cmp_eq_u32 s%d, 1" % S_FAST)
    a("s_cbranch_scc1 %s" % sk)
    a("buffer_inv sc1")
    a("s_waitcnt vmcnt(0)")
    a.label(sk)

NWO = 2; WR1 = (8, 9, 10)[:int(os.environ.get('WR1', 0))]
R1_X = 16; R1_X0 = 112; R1_ACC = 32; R1_L = 128
XLDS = 131072 + 1024
def r1_x_items():
    a = Items()
    a("s_lshl_b32 s25, s%d, 4" % S_R)
    a("s_add_u32 s25, s25, s%d" % S_M)
    for x in ("s_mov_b32 s8, s%d" % S_PX, "s_mov_b32 s9, s%d" % (S_PX + 1), "s_mov_b32 s10, %d" % (2048 * 896), "s_mov_b32 s11, 0x00020000"): a(x)
    a("v_cmp_gt_u32 vcc, 56, v2")
    a("v_mov_b32 v10, 0x7fffffff")
    a("s_lshl_b32 s3, s25, 2")
    a("s_add_u32 s3, s3, s66")
    a("v_cndmask_b32 v10, v10, v1, vcc")
    a("s_mul_i32 s3, s3, %d" % (2 * 896))
    a("buffer_load_dwordx4 %s, v10, s[8:11], s3 offen @X" % vr(R1_X0))
    a("buffer_load_dwordx4 %s, v10, s[8:11], s3 offen offset:896 @X" % vr(R1_X0 + 4))
    b = Items()
    b("v_and_b32 v10, 60, v2")
    b("v_and_b32 v11, 1, v2")
    b("v_lshl_add_u32 v10, v11, 1, v10")
    b("v_bfe_u32 v11, v2, 1, 1")
    b("v_mul_u32_u24 v10, 144, v10")
    b("v_lshl_add_u32 v10, v11, 3, v10")
    b("s_lshl_b32 s3, s66, 5")
    b("s_add_u32 s3, s3, %d" % XLDS)
    b("v_add_u32 v10, s3, v10")
    b("WAITVM X")
    for r in range(2):
        b("ds_write_b64 v10, %s offset:%d" % (vr(R1_X0 + 4 * r, 2), 16 * r))
        b("ds_write_b64 v10, %s offset:%d" % (vr(R1_X0 + 4 * r + 2, 2), 16 * r + 144))
    c = Items()
    c("v_lshrrev_b32 v10, 3, v0")
    c("v_add_lshl_u32 v10, v10, v0, 4")
    c("v_add_u32 v10, %d, v10" % XLDS)
    c("ds_read_b128 %s, v10" % vr(R1_X0))
    c("ds_read_b128 %s, v10 offset:%d" % (vr(R1_X0 + 4), 32 * 144))
    return a.it, b.it, c.it
def r1_pre(a):
    frag8_voff(a, 9, 11)
    frag8_soff(a, 25, PO, 38, 39)
    a("s_mov_b32 s%d, %d" % (S_B6, ALT))
    a("s_cmp_eq_u32 s%d, 1\ns_cselect_b32 s%d, %d, s%d" % (S_FAST, S_B6, PO + 10 * POH, S_B6))
    a("s_sub_u32 s3, 23, s%d" % S_R)
    a("s_cmp_ge_u32 s%d, 8\ns_cselect_b32 s28, s3, s%d" % (S_R, S_R))
    a("s_mul_i32 s28, s28, %d" % (16 * FB))
    a("s_add_u32 s28, s28, %d" % FLG)
    a("v_min_u32 v12, 15, v2")
    a("v_mul_u32_u24 v12, %d, v12" % FB)

def r1_unpack_x(a):
    for d in range(8):
        a("v_lshlrev_b32 v%d, 16, v%d" % (R1_ACC + 2 * d, R1_X0 + d))
        a("v_and_b32 v%d, 0xffff0000, v%d" % (R1_ACC + 2 * d + 1, R1_X0 + d))
def oproj(a, st, stubs):
    vm = VM(); vm.ops = ["T1"] * 8 + ["T2"] * 8
    chk = "v_and_b32 v124, v124, v125\nv_and_b32 v126, v126, v127\nv_and_b32 v124, v124, v126\nv_cmp_ne_u32 vcc, 1, v124\n"
    a("s_waitcnt vmcnt(8)")
    a(chk)
    p4_wbase(a)
    a("s_cbranch_vccnz OP_pk")
    a.label("OP_pkback")
    stubs.append("OP_pk:\ns_mov_b32 s3, 0x20000\ns_mov_b32 s29, %d\nOP_pkl:\nbuffer_load_dwordx4 v[124:127], v1, s[12:15], s29 offen sc1\ns_waitcnt vmcnt(0)\n" % PKA
                 + chk + "s_sub_u32 s3, s3, 1\ns_cbranch_scc1 OP_pkback\ns_nop 1\ns_cbranch_vccnz OP_pkl\ns_branch OP_pkback")
    xa, xb, xc = r1_x_items()
    i0 = Items()
    i0("s_mul_i32 s%d, s%d, %d" % (S_ST, S_HEAD, POH))
    i0("s_mul_i32 s3, s%d, %d" % (S_RW, 2 * 14336))
    i0("s_add_u32 s%d, s%d, s3" % (S_ST, S_ST))
    i0("s_add_u32 s%d, s%d, %d" % (S_ST, S_ST, PO))
    i0("v_add_u32 v%d, 14336, v1" % V_T2)
    i1 = Items(); r1_pre(i1)
    cost2 = lambda it: [(x, 2 if x.startswith("buffer_") else c) for x, c in it]
    W = p4_wload_items
    wl = [x for t in range(NWO) for x in W(t)]
    for k in range(7):
        p = (k + 1) & 1
        mf = []
        for s_ in range(8):
            for e in range(4):
                for qb in range(2):
                    d = vr(op_acc(p, e, qb))
                    mf.append(MF(d, Fr(4 * s_ + e), vr(V_CTX + 4 * (8 * qb + s_)), "0" if s_ == 0 else d))
        sc = Sched(mf)
        ring_fixed(sc, p, vm="WAITVM T%d%s" % (k + 1, ",S3" if k == 5 else ""), tag=" @T%d" % (k + 3), kpos=(5, 13, 21, 29), vpos=(49, 53, 57, 61))
        if k == 5: sc.at(51, "buffer_store_dword v14, v31, s[12:15], s%d offen offset:%d sc1" % (S_MYF, O_PO1), 2)
        if k == 6: sc.at(59, flag_load("v12", "s28", O_PO1, 13) + " @F1", 2)
        for g in ((3, 9, 17, 25, 33, 37, 41, 45) if k == 0 else ()):
            if not wl: break
            if not wl[0][0].startswith("buffer_"): sc.at(g - 2, wl.pop(0)[0])
            sc.at(g, wl.pop(0)[0], 2)
        if k:
            g = 3; sp_ = [9, 17, 25, 33]
            for x, c in op_flush_items(1 - p, k - 1):
                if x.startswith("buffer_"): g = sc.at(sp_.pop(0), x, 2) + 1
                else: g = sc.at(sc.first_free(g), x)
        if k == 0: sc.flow(i0.it + xa[:-2], 4, 58)
        if k == 1:
            sc.at(37, xa[-2][0], 2); sc.at(41, xa[-1][0], 2)
        if k == 2: sc.flow(i1.it, 1, 60)
        if k == 3: sc.flow(xb[:9], 34, 60)
        if k == 4: sc.flow(xb[9:], 10, 30)
        if k == 5: sc.flow(xc, 34, 45)
        print("oproj overflow", k, sc.overflow())
        sc.emit(a, vm)
        if "ost" in E: st.rt(a, "o%d" % (k + 1))
    r1_unpack_x(a)
    for x, c in op_flush_items(1, 6): a(vm.see(x))
    st.rt(a, "oproj_end")
    return vm

def r1_ld(h, second):
    it = ["buffer_load_dwordx4 %s, v9, s[12:15], s%d offen sc1 @P%d" % (vr((128 if second else 192) + 4 * h), 39 if second else 38, h + 16 * second)]
    if h < 15: it.append("s_add_u32 s%d, s%d, %s" % ((39, 39, "s36") if second else (38, 38, str(POH))))
    return it
def r1_acc(a, vm, second):
    for h in range(16):
        a(vm.see("WAITVM P%d" % (h + 16 * second)))
        for d in range(4):
            r = (128 if second else 192) + 4 * h + d
            a("v_lshlrev_b32 v%d, 16, v%d" % (48 + 2 * d, r))
            a("v_and_b32 v%d, 0xffff0000, v%d" % (49 + 2 * d, r))
        for d in range(4):
            o = R1_ACC + 8 * second + 2 * d
            a("v_pk_add_f32 %s, %s, %s" % (vr(o, 2), vr(o, 2), vr(48 + 2 * d, 2)))
def r1_extras(a, vm):
    t3 = Asm(); hoist_tile3(t3)
    for l in t3.lines: a(vm.see(l.strip()))
    for t in WR1:
        for x, c in p4_wload_items(t): a(vm.see(x))
def r1_stage1(a, st, vm):
    po2 = "buffer_store_dword v14, v31, s[12:15], s%d offen offset:%d sc1" % (S_MYF, O_PO)
    a(vm.see("WAITVM F1"))
    a("v_cmp_ne_u32 vcc, 1, v13")
    a("s_nop 2")
    a("s_cbranch_vccnz R1_late")
    for h in range(8):
        for x in r1_ld(h, 0): a(x.split("@")[0])
    a("s_waitcnt vmcnt(8)")
    a("s_barrier")
    a(po2)
    st.rt(a, "po_pub")
    a("s_branch R1_join")
    a.label("R1_late")
    a("s_waitcnt vmcnt(0)")
    a("s_barrier")
    a(po2)
    st.rt(a, "po_pub")
    poll(a, "v12", "s28", O_PO1, 13, "fpo1")
    for h in range(8):
        for x in r1_ld(h, 0): a(x.split("@")[0])
    a.label("R1_join")
    st.rt(a, "po1_ready")
    vm = VM(); vm.ops = ["P%d" % h for h in range(8)]
    for h in range(8, 16):
        for x in r1_ld(h, 0): a(vm.see(x))
    r1_acc(a, vm, 0)
    if "ex2" not in E: r1_extras(a, vm)
def r1_main(a, lds_off):
    vm = VM()
    a("s_cmp_eq_u32 s66, 3")
    a("s_cselect_b32 s36, 0, %d" % POH)
    for h in range(16):
        for x in r1_ld(h, 1): a(vm.see(x))
    if "ex2" in E: r1_extras(a, vm)
    frag8_soff(a, 25, 4 * POH, 38, 39)
    a("s_cselect_b32 s36, 0, s%d" % S_B6)
    a("s_add_u32 s38, s38, s%d" % S_B6)
    a("s_add_u32 s39, s39, s36")
    r1_acc(a, vm, 1)
    vS, vQ, t = 56, 57, 58
    for d in range(8):
        a("v_cvt_pk_bf16_f32 v%d, v%d, v%d" % (R1_X + d, R1_ACC + 2 * d, R1_ACC + 2 * d + 1))
    a("buffer_store_dwordx4 %s, v9, s[12:15], s38 offen" % vr(R1_X))
    a("buffer_store_dwordx4 %s, v9, s[12:15], s39 offen" % vr(R1_X + 4))
    a("v_mov_b32 v%d, 0x3f803f80" % t)
    a("v_mov_b32 v%d, 0" % vS)
    a("v_mov_b32 v%d, 0" % vQ)
    for d in range(8):
        a("v_dot2_f32_bf16 v%d, v%d, v%d, v%d" % (vS, R1_X + d, t, vS))
        a("v_dot2_f32_bf16 v%d, v%d, v%d, v%d" % (vQ, R1_X + d, R1_X + d, vQ))
    a("v_and_b32 v10, 7, v2")
    a("v_lshlrev_b32 v10, 3, v10")
    a("s_lshl_b32 s3, s66, 6")
    a("v_add_u32 v10, %d, v10" % lds_off)
    a("v_add_u32 v11, s3, v10")
    a("v_add_f32_dpp v%d, v%d, v%d row_ror:8 row_mask:0xf bank_mask:0xf" % (vS, vS, vS))
    a("v_add_f32_dpp v%d, v%d, v%d row_ror:8 row_mask:0xf bank_mask:0xf" % (vQ, vQ, vQ))
    xlane_reduce2(a, "v_add_f32", vS, vQ, t)
    a("ds_write_b64 v11, %s" % vr(vS, 2))
    a("s_waitcnt lgkmcnt(0)")
    a("s_barrier")
    for w in range(4): a("ds_read_b64 %s, v10 offset:%d" % (vr(60 + 2 * w, 2), 64 * w))
    for d in range(8):
        a("v_lshlrev_b32 v%d, 16, v%d" % (R1_ACC + 2 * d, R1_X + d))
        a("v_and_b32 v%d, 0xffff0000, v%d" % (R1_ACC + 2 * d + 1, R1_X + d))
    a("s_add_u32 s38, s38, %d" % POH)
    a("s_cmp_eq_u32 s66, 3")
    a("s_cselect_b32 s36, 0, %d" % POH)
    a("s_add_u32 s39, s39, s36")
    a("s_waitcnt lgkmcnt(0)")
    for k, x in enumerate((vS, vQ)):
        a("v_add_f32 v%d, v%d, v%d" % (x, 60 + k, 62 + k))
        a("v_add_f32 v%d, v%d, v%d" % (64 + k, 64 + k, 66 + k))
        a("v_add_f32 v%d, v%d, v%d" % (x, x, 64 + k))
    a("v_mul_f32 v%d, 0x%x, v%d" % (vS, f2u(1.0 / 448), vS))
    a("v_mul_f32 v%d, 0x%x, v%d" % (vQ, f2u(1.0 / 448), vQ))
    a("v_fma_f32 v%d, -v%d, v%d, v%d" % (vQ, vS, vS, vQ))
    a("v_max_f32 v%d, 0, v%d" % (vQ, vQ))
    a("v_add_f32 v%d, 0x%x, v%d" % (vQ, f2u(1e-5), vQ))
    a("v_rsq_f32 v%d, v%d" % (vQ, vQ))
    a("s_nop 0")
    a("v_mul_f32 v%d, v%d, v%d" % (vS, vS, vQ))
    for d in range(8):
        a("v_fma_f32 v%d, v%d, v%d, -v%d" % (R1_ACC + 2 * d, R1_ACC + 2 * d, vQ, vS))
        a("v_fma_f32 v%d, v%d, v%d, -v%d" % (R1_ACC + 2 * d + 1, R1_ACC + 2 * d + 1, vQ, vS))
        a("v_cvt_pk_bf16_f32 v%d, v%d, v%d" % (72 + d, R1_ACC + 2 * d, R1_ACC + 2 * d + 1))
        if d == 3: a("buffer_store_dwordx4 %s, v9, s[12:15], s38 offen" % vr(72))
    a("buffer_store_dwordx4 %s, v9, s[12:15], s39 offen" % vr(76))

def hn_reg(qb, s): return ar(8 * s + 4 * qb)
def p3_pre(a):
    a("s_lshl_b32 s25, s%d, 2" % S_R)
    a("s_add_u32 s25, s25, s66")
    a("s_mul_i32 s25, s25, %d" % (2 * 14336))
    a("s_add_u32 s25, s25, s%d" % S_B6)
    a("s_cmp_ge_u32 s%d, 7" % S_M)
    a("s_cselect_b32 s3, %d, 0" % (POH - 14336))
    a("s_add_u32 s96, s25, s3")
    a("s_lshl_b32 s3, s%d, 11" % S_M)
    a("s_add_u32 s96, s96, s3")
    a("s_add_u32 s97, s96, %d" % (2 * POH))
    a("s_add_u32 s25, s25, %d" % (5 * POH))
    for k in range(1, 4): a("s_add_u32 s%d, s25, %d" % (34 + k, 4096 * k))
    a("v_add_u32 v11, 14336, v1")
    a("s_mov_b32 s98, 0x%x" % f2u(-math.log2(math.e)))
def hn_load(s, qb):
    return "buffer_load_dwordx4 %s, v%d, s[12:15], s%d offen offset:%d sc1 @H%d" % (hn_reg(qb, s), 11 if qb else 1, (25, 35, 36, 37)[s >> 2], (s & 3) * 1024, s)

def swiglu_items(cb, qb, pk=False):
    G = [Ot(4 * cb + e, qb) for e in range(4)]; U = [Ot(8 + 4 * cb + e, qb) for e in range(4)]
    it = []
    if pk:
        two = lambda r: vr(r, 2)
        for e in range(4):
            for j in (0, 2): it.append(("v_pk_mul_f32 %s, %s, %s" % (two(U[e] + j), two(G[e] + j), two(U[e] + j)), 1))
        for e in range(4):
            for j in (0, 2): it.append(("v_pk_mul_f32 %s, %s, s[98:99] op_sel_hi:[1,0]" % (two(G[e] + j), two(G[e] + j)), 1))
        for e in range(4):
            for j in range(4): it.append(("v_exp_f32 v%d, v%d" % (G[e] + j, G[e] + j), 2))
        for e in range(4):
            for j in (0, 2): it.append(("v_pk_add_f32 %s, %s, 1.0 op_sel_hi:[1,0]" % (two(G[e] + j), two(G[e] + j)), 1))
        for e in range(4):
            for j in range(4): it.append(("v_rcp_f32 v%d, v%d" % (G[e] + j, G[e] + j), 2))
        for e in range(4):
            for j in (0, 2): it.append(("v_pk_mul_f32 %s, %s, %s" % (two(U[e] + j), two(G[e] + j), two(U[e] + j)), 1))
    else:
        el = [(G[e] + j, U[e] + j) for e in range(4) for j in range(4)]
        st_ = [lambda g, u: ("v_mul_f32 v%d, v%d, v%d" % (u, g, u), 1), lambda g, u: ("v_mul_f32 v%d, s98, v%d" % (g, g), 1),
               lambda g, u: ("v_exp_f32 v%d, v%d" % (g, g), 2), lambda g, u: ("v_add_f32 v%d, 1.0, v%d" % (g, g), 1),
               lambda g, u: ("v_rcp_f32 v%d, v%d" % (g, g), 2), lambda g, u: ("v_mul_f32 v%d, v%d, v%d" % (u, g, u), 1)]
        off = (0, 0, 1, 2, 3, 4)
        for k in range(16 + 4):
            for stg in (2, 0, 1, 4, 3, 5):
                n = k - off[stg]
                if 0 <= n < 16: it.append(st_[stg](*el[n]))
    for sp in range(2):
        for d in range(4):
            j = 2 * sp + (d >> 1); e = 2 * (d & 1)
            it.append(("v_cvt_pk_bf16_f32 v%d, v%d, v%d" % (G[sp] + d, U[e] + j, U[e + 1] + j), 1))
        it.append(("buffer_store_dwordx4 %s, v%d, s[12:15], s%d offen offset:%d @AS%d" % (vr(G[sp]), 11 if qb else 1, 96 + cb, sp * 1024, cb), 2))
    return it

P4_ACC = 192
def p4_act(t, rb):
    if t < 4: return ar(48 + 16 * t + 4 * rb)
    if t < 7: return ar(192 + 16 * (t - 4) + 4 * rb)
    if t < 11: return vr(128 + 16 * (t - 7) + 4 * rb)
    if t == 11: return ar(240 + 4 * rb)
    return ar(48 + 16 * (t - 12) + 4 * rb)
def p4_w(t, e):
    if t < 5: return ar(112 + 16 * t + 4 * e)
    if t < 11: return vr(32 + 16 * (t - 5) + 4 * e)
    return ar(16 * (t - 11) + 4 * e)
def p4_wbase(a):
    a("s_min_u32 s86, s%d, 13" % S_M)
    a("s_lshr_b32 s86, s86, 1")
    a("s_mul_i32 s86, s86, %d" % WBLK)
    a("s_mul_i32 s3, s66, %d" % (7 * 4096))
    a("s_add_u32 s86, s86, s3")
    a("s_add_u32 s86, s86, %d" % W2P)
def p4_wload_items(t):
    it = [("s_add_u32 s89, s86, %d" % ((t if t < 7 else t + 21) * 4096), 1)]
    return it + [("buffer_load_dwordx4 %s, v1, s[12:15], s89 offen offset:%d sc1 @W%d" % (p4_w(t, e), e * 1024, t), 2) for e in range(4)]

def hoist_tile3(a):
    a("v_readlane_b32 s%d, v%d, s%d" % (S_KO, V_TABK, S_G3))
    a("v_readlane_b32 s%d, v%d, s%d" % (S_VO, V_TABV, S_G3))
    a("s_add_u32 m0, s%d, 16384" % S_WQ)
    a("s_nop 3")
    for j in range(4): a("buffer_load_dwordx4 v%d, s[12:15], s%d offen offset:%d lds" % (V_DMA, S_KO, j * 1024))
    a("s_add_u32 m0, s%d, %d" % (S_WQ, 16384 + 65536))
    a("s_nop 0")
    for j in range(4): a("buffer_load_dwordx4 v%d, s[12:15], s%d offen offset:%d lds" % (V_DMA, S_VO, j * 1024))

def gateup(a, st, vm, stubs, hloads):
    sw = swiglu_items(0, 0) + swiglu_items(0, 1)
    lq = [hn_load(s_, qb) for s_ in range(5, 14) for qb in range(2)] + [x for t in range(NWO, 11) if t not in WR1 for x, c_ in p4_wload_items(t)] + hloads
    lq += [None] + [x for t in (11, 12, 13) for x, c_ in p4_wload_items(t)]
    pos = 0
    for c in range(7):
        mf = []
        for n in range(32):
            q = 4 * c + (n >> 3); cb, s = divmod(q, 14)
            for qb in range(2):
                d = vr(Ot(8 * ((n >> 2) & 1) + 4 * cb + (n & 3), qb))
                mf.append(MF(d, Fr(n), hn_reg(qb, s), "0" if s == 0 else d))
        sc = Sched(mf)
        ring_fixed(sc, c & 1, vm="WAITVM T%d" % (c + 1) if c < 6 else "WAITVM AS0", dma=(1 <= c < 4), nxt=(c < 6), tag=" @T%d" % (c + 3), paired=(c >= 4), kpos=(5, 13, 21, 29), vpos=(49, 53, 57, 61))
        for k in range(4):
            q = 4 * c + k
            if q < 14: sc.at(16 * k - 1, "WAITVM H%d" % q, last=True)
        if c == 6:
            sc.at(48, "s_cmp_eq_u32 s%d, 1\ns_cbranch_scc0 GU_wb\nGU_wbback:" % S_FAST, 2)
            stubs.append("GU_wb:\nbuffer_wbl2 sc1\ns_waitcnt vmcnt(0)\ns_branch GU_wbback")
            for k in range(2): sc.at(49 + k, sig(O_A0)[k], 2)
        slots = {0: range(1, 62, 4), 1: (1, 9, 17, 25, 33, 37, 41, 45), 2: (1, 9, 17, 25, 33, 37, 41, 45), 3: (1, 9, 17, 25, 33, 37, 41, 45),
                 4: range(1, 62, 4), 5: range(1, 62, 4), 6: (53, 57, 61, 63)}[c]
        for g in slots:
            if not lq or (lq[0] is None and c < 5): break
            if lq[0] is None: lq.pop(0)
            if c == 5 and len(lq) <= 5: break
            if not lq[0].startswith("buffer_"): sc.at(max(g - 1, 0) if c < 4 else g + 0, lq.pop(0))
            sc.at(g, lq.pop(0), 2)
        if c >= 3:
            g = 36 if c == 3 else 0
            lim = 63 if c < 6 else 44
            if c >= 4:
                for gg in range(7, lim, 8): sc.free[gg] += 1
                for gg in range(0, lim, 4): sc.free[gg] += 2 if (c < 6 or gg % 8 == 4) else 0
            while pos < len(sw):
                x, cost = sw[pos]
                g2 = sc.first_free(g, cost, lim)
                if g2 >= lim and c < 6: break
                sc.at(g2, x, cost); g = g2; pos += 1
        print("gateup overflow", c, sc.overflow(), pos, len(sw))
        sc.emit(a, vm)
        if "gst" in E and c < 6: st.rt(a, "g%d" % (c + 1))
    assert not lq, lq

def _unused(): pass
def p4_hloads(a):
    a("s_and_b32 s3, s%d, 1" % S_M)
    a("s_lshl_b32 s3, s3, 2")
    a("s_lshl_b32 s87, s%d, 3" % S_R)
    a("s_add_u32 s87, s87, s3")
    a("s_add_u32 s88, s87, s66")
    a("s_mul_i32 s39, s88, 14336")
    a("s_lshr_b32 s3, s%d, 1" % S_M)
    a("s_lshl_b32 s3, s3, 11")
    a("s_add_u32 s39, s39, s3")
    a("s_add_u32 s39, s39, s%d" % S_B6)
    a("s_add_u32 s39, s39, %d" % (4 * POH))
    a("v_lshrrev_b32 v9, 5, v2")
    a("v_lshlrev_b32 v9, 10, v9")
    a("v_bfe_u32 v10, v2, 4, 1")
    a("v_lshl_add_u32 v9, v10, 3, v9")
    a("v_and_b32 v10, 15, v2")
    a("v_lshl_add_u32 v9, v10, 4, v9")
    return ["buffer_load_dwordx2 %s, v9, s[12:15], s39 offen offset:%d sc1" % (vr(16 + 2 * gp, 2), gp * 256) for gp in range(4)]
def p4_pre(a):
    a("s_mul_i32 s90, s87, 14336")
    a("s_lshr_b32 s3, s66, 1")
    a("s_mul_i32 s3, s3, %d" % POH)
    a("s_add_u32 s90, s90, s3")
    a("s_and_b32 s3, s66, 1")
    a("s_mul_i32 s3, s3, 7168")
    a("s_add_u32 s90, s90, s3")
    a("s_add_u32 s90, s90, s%d" % S_B6)
    for rb in range(4):
        a("s_add_u32 s3, s66, %d" % rb)
        a("s_and_b32 s3, s3, 3")
        if rb: a("s_mul_i32 s%d, s3, 12288" % (69 + rb))
        a("s_mul_i32 s3, s3, 14336")
        a("v_add_u32 v%d, s3, v1" % (24 + rb))
    a("s_mov_b32 s8, s%d\ns_mov_b32 s9, s%d\ns_mov_b32 s10, %d\ns_mov_b32 s11, 0x00020000" % (S_POUT, S_POUT + 1, 2048 * 896))
    a("s_mul_i32 s38, s88, %d" % (16 * 896))
    a("s_lshr_b32 s3, s%d, 1" % S_M)
    a("s_lshl_b32 s3, s3, 7")
    a("s_add_u32 s38, s38, s3")
    a("v_and_b32 v10, 15, v2")
    a("v_mul_u32_u24 v10, 896, v10")
    a("v_lshrrev_b32 v15, 4, v2")
    a("v_lshl_add_u32 v10, v15, 5, v10")
    a("s_mul_i32 s3, s66, 12288")
    a("v_add_u32 v15, s3, v1")
def act_load_items(t):
    k = t % 7
    it = [("s_add_u32 s91, s90, %d" % ((k & 4) * 1024 + (2 * POH if t >= 7 else 0)), 1)] if k in (0, 4) else []
    return it + [("buffer_load_dwordx4 %s, v%d, s[12:15], s91 offen offset:%d sc1 @A%d" % (p4_act(t, rb), 24 + rb, (k & 3) * 1024, t), 2) for rb in range(4)]
def p4_step(a, vm, t, fill=()):
    order = [(e, rb) for e in range(4) for rb in range(4)] if t < 13 else [(e, rb) for rb in (1, 2, 3, 0) for e in range(4)]
    fill = list(fill)
    a(vm.see("WAITVM A%d" % t))
    for n, (e, rb) in enumerate(order):
        d = vr(P4_ACC + 4 * (4 * rb + e))
        a(MF(d, p4_w(t, e), p4_act(t, rb), "0" if t == 0 else d))
        if n % 2 == 0 and fill: a(vm.see(fill.pop(0)))
    for x in fill: a(vm.see(x))
def check_flag(a, stubs, off, name):
    a("v_cmp_ne_u32 vcc, 1, v13")
    a("s_cmp_eq_u32 s%d, 1" % S_FAST)
    a("s_cbranch_scc0 %s_slow" % name)
    a("s_cbranch_vccnz %s_slow" % name)
    a.label(name + "_back")
    sp = Asm(); sp.uid = 7000 + off
    sp.label(name + "_slow"); acquire(sp, 14, off, name); sp("s_branch %s_back" % name)
    stubs.append(sp.text())
def p4_main(a, st, vm, stubs):
    grp_voff(a, 12, 14)
    sw = swiglu_items(1, 0, True)
    for n, (x, c) in enumerate(sw):
        if n == 24: a(vm.see(flag_load("v12", "s%d" % S_GRPF, O_A0, 13) + " @F0"))
        a(vm.see(x))
    a(vm.see("WAITVM F0"))
    check_flag(a, stubs, O_A0, "P4a0")
    st.rt(a, "a0_ready")
    ld = [x for t in range(7) for x, c in act_load_items(t)]
    for n, (x, c) in enumerate(swiglu_items(1, 1, True)):
        if n % 4 == 0 and n < 64: a(vm.see(ld.pop(0)))
        a(vm.see(x))
    a(vm.see(ld.pop(0))); a(vm.see(ld.pop(0)))
    p4_step(a, vm, 0, ld[:6]); p4_step(a, vm, 1, ld[6:])
    p4_step(a, vm, 2)
    a("s_cmp_eq_u32 s%d, 1" % S_FAST)
    a(vm.see("WAITVM AS1"))
    a("s_barrier")
    a("s_cbranch_scc0 P4_wb")
    a.label("P4_wbback")
    stubs.append("P4_wb:\nbuffer_wbl2 sc1\ns_waitcnt vmcnt(0)\ns_branch P4_wbback")
    st.rt(a, "act_pub")
    p4_step(a, vm, 3, sig(O_A))
    p4_step(a, vm, 4, ["s_nop 0"] * 3 + [flag_load("v12", "s%d" % S_GRPF, O_A, 13) + " @F1"])
    p4_step(a, vm, 5)
    a(vm.see("WAITVM F1"))
    check_flag(a, stubs, O_A, "P4a1")
    st.rt(a, "act_ready")
    ld = [x for t in range(7, 14) for x, c in act_load_items(t)]
    for x in ld[:9]: a(vm.see(x))
    p4_step(a, vm, 6, ld[9:18])
    p4_step(a, vm, 7, ld[18:24]); p4_step(a, vm, 8, ld[24:])
    hu = []
    for j in range(4):
        for e in range(4):
            src = 16 + 2 * j + (e >> 1)
            hu.append(("v_and_b32 v%d, 0xffff0000, v%d" if e & 1 else "v_lshlrev_b32 v%d, 16, v%d") % (32 + 4 * e + j, src))
    p4_step(a, vm, 9)
    p4_step(a, vm, 10, ["v_add_u32 v%d, s%d, v1" % (24 + rb, 69 + rb) for rb in range(1, 4)])
    p4_step(a, vm, 11, hu[:8]); p4_step(a, vm, 12, hu[8:])
    p4_step(a, vm, 13)
    st.rt(a, "p4_mfma")
    for rb in range(1, 4):
        for e in range(4):
            a("ds_write_b128 v%d, %s offset:%d" % (24 + rb, vr(P4_ACC + 4 * (4 * rb + e)), (rb - 1) * 4096 + e * 1024))
    for k in range(0, 16, 2): a("v_pk_add_f32 %s, %s, %s" % (vr(32 + k, 2), vr(32 + k, 2), vr(P4_ACC + k, 2)))
    a("s_waitcnt lgkmcnt(0)")
    a("s_barrier")
    for w in range(3):
        for e in range(4):
            a("ds_read_b128 %s, v15 offset:%d" % (vr(48 + 16 * w + 4 * e), w * 4096 + e * 1024))
    for w in range(3):
        a("s_waitcnt lgkmcnt(%d)" % (8 - 4 * w))
        for k in range(0, 16, 2): a("v_pk_add_f32 %s, %s, %s" % (vr(32 + k, 2), vr(32 + k, 2), vr(48 + 16 * w + k, 2)))
    for j in range(4):
        a("v_cvt_pk_bf16_f32 v%d, v%d, v%d" % (112 + 2 * j, 32 + j, 36 + j))
        a("v_cvt_pk_bf16_f32 v%d, v%d, v%d" % (113 + 2 * j, 40 + j, 44 + j))
        if j == 1: a("buffer_store_dwordx4 %s, v10, s[8:11], s38 offen" % vr(112))
    a("buffer_store_dwordx4 %s, v10, s[8:11], s38 offen offset:16" % vr(116))

def tail(a, st, stubs):
    vm = oproj(a, st, stubs)
    r1_stage1(a, st, vm)
    st.rt(a, "s1_done")
    poll(a, "v12", "s28", O_PO, 13, "fpo")
    st.rt(a, "po_ready")
    r1_main(a, 131072)
    st.rt(a, "r1_done")
    publish(a, O_H)
    a("s_cmp_ge_u32 s%d, 14" % S_M)
    a("s_cbranch_scc1 M_fin")
    p3_pre(a)
    hl = p4_hloads(a)
    p4_pre(a)
    acquire(a, 16, O_H, "fh")
    st.rt(a, "h_ready")
    vm = VM()
    for s_ in range(5):
        for qb in range(2): a(vm.see(hn_load(s_, qb)))
    gateup(a, st, vm, stubs, hl)
    st.rt(a, "p3_end")
    a("s_nop 2")
    p4_main(a, st, vm, stubs)
```

```python
import sys
from common import *
import gemm, attn, tail
def mega(stamp=False):
    a = Asm(); st = Stamps(stamp); stubs = []
    vm = gemm.prologue(a, st, "M_end")
    gemm.gemm(a, st, vm, stubs, attn.qproj)
    attn.attention(a, st)
    tail.tail(a, st, stubs)
    a.label("M_fin")
    a("s_waitcnt vmcnt(0) lgkmcnt(0)")
    st.rt(a, "end")
    st.flush(a)
    a.label("M_end")
    a("s_endpgm")
    for s in stubs: a(s)
    attn.subroutines(a)
    a.label("M_codeend")
    return a.text(), st.names
def write(path, stamp):
    body, names = mega(stamp)
    import os, re
    E = os.environ.get("EXP", "").split("+")
    if "plainkv" in E: body = re.sub(r"(s90 offen offset:\d+) sc1", r"\1", body)
    if "plainq" in E: body = re.sub(r"(buffer_store_dwordx4 \S+ v1, s\[12:15\], s25 offen( offset:\d+)?) sc1", r"\1", body)
    if "plainh" in E: body = re.sub(r"(buffer_store_dwordx4 \S+ v9, s\[12:15\], s3[89] offen) sc1", r"\1", body)
    if "plainf" in E: body = re.sub(r"(buffer_store_dword v\d+, v31, s\[12:15\], s2[58] offen( offset:\d+)?) sc1", r"\1", body)
    hdr = "".join(open("cdna_kernels/" + NAME + ".s.ref").readlines()[:14])
    kn = NAME + "_kernel"
    out = hdr + "; @launch grid=(256,1,1) block=(256,1,1) lds=163840\n.amdgcn_target \"amdgcn-amd-amdhsa--gfx950\"\n"
    out += kernel_header(kn) + body + kernel_desc(kn, 512, 102, 256)
    open(path, "w").write(out)
    if stamp: open(path.replace(".s", ".names"), "w").write(" ".join(names))
if __name__ == "__main__":
    tag = sys.argv[1] if len(sys.argv) > 1 else "m"
    write("exp/%s.s" % tag, False)
    write("exp/%s_st.s" % tag, True)
```

```python
from common import *
import os
from gemm import E, S_HEAD, S_I, S_ROLE, S_QB, V_DMA, xn_reg, QUNIT, dmaQ, DMAFL, Items, kv_store, kv_conv, xn_load

V_RDK, V_RDV, V_TABK, V_TABV = 5, 6, 7, 8
V_T = 9
V_NEGM, V_L, V_TS = 16, 18, 20
V_R = 26
V_T2 = 22
V_S = [32, 48]; V_P = [64, 72]; V_E = 80; V_C = 96; V_X = 112
V_O = 128
V_CTX = 32; A_SP = 64; A_Q = 128; A_F = 192
S_G3, S_END, S_WQ, S_KO, S_VO = 20, 21, 22, 23, 27
S_RW = 26
S_RET, S_RET2 = 82, 84
S_MASK = 70
S_N1, S_N2, S_ST, S_THR = 34, 35, 36, 37
S_R, S_M = 78, 79
NEG = 0xff3fffff
XA = 36
EXP = set()

def St(buf, kb, qb): return V_S[buf] + 4 * (2 * kb + qb)
def Ct(kb, qb): return V_C + 4 * (2 * kb + qb)
def Ot(db, qb): return V_O + 4 * (2 * db + qb)
def Fr(n): return ar(A_F + 4 * (n % 16))
def Qf(qb, s): return ar(A_Q + 4 * (8 * qb + s))

def FrV(n): return vr(96 + 4 * (n % 16))
def frag_reads(sc, rdK, rdV, rdN, bar, Fr=Fr, paired=False):
    out = [0, 0, 0, 0, 1, 1, 1, 1]
    def wait_for(grp):
        if grp not in out: return None
        idx = max(i for i, x in enumerate(out) if x == grp)
        n = len(out) - 1 - idx
        del out[:idx + 1]
        return n
    for gam in range(8):
        need = (gam < 4 and rdK) or (gam >= 4 and rdV)
        n = wait_for(gam) if need else None
        if gam == 0 and not rdK:
            n = 0; del out[:]
        lg = "" if n is None else "lgkmcnt(%d)" % n
        if gam == 6 and bar is not None:
            if bar or lg: sc.at(47, ((bar if bar else "s_waitcnt") + " " + lg).strip(), last=True)
            sc.at(47, "s_barrier", last=True)
        elif n is not None:
            sc.at(8 * gam - 1, "s_waitcnt " + lg, last=True)
        t = gam + 2
        src = rdK if t < 4 else rdV if t < 8 else rdN
        if not src: continue
        for k in range(4):
            sc.at(8 * gam + (4 * (k >> 1) if paired else 2 * k), "ds_read_b128 %s, v%d offset:%d" % (Fr(4 * t + k), src[0], src[1] + (4 * (t % 4) + k) * 1024))
            out.append(t if t < 8 else 100 + t)
    sc.free[63] -= 1

def ring_fixed(sc, p, useK=True, useV=True, vm=12, loop=None, dma=True, nxt=True, tag="", paired=False, kpos=(21, 25, 27, 29), vpos=(53, 57, 59, 61)):
    frag_reads(sc, (V_RDK, p * 16384) if useK else None, (V_RDV, p * 16384) if useV else None,
               (V_RDK, (1 - p) * 16384) if nxt else None, vm if isinstance(vm, str) else "s_waitcnt vmcnt(%d)" % vm, paired=paired)
    nomf0 = sc.mf[0] is None; nomf1 = sc.mf[63] is None
    if p == 1:
        if dma or not paired: sc.at(0, "s_xor_b32 s%d, s%d, 0x8000" % (S_WQ, S_WQ))
        sc.at(31 if paired else 30, "v_xor_b32 v%d, 0x8000, v%d" % (V_RDK, V_RDK))
        sc.at(55 if paired else 48, "v_xor_b32 v%d, 0x8000, v%d" % (V_RDV, V_RDV))
    if dma:
        sc.at(0 if p == 0 else 2, "v_readlane_b32 s%d, v%d, s%d" % (S_KO, V_TABK, S_G3))
        sc.at(kpos[0] - 1, "s_add_u32 m0, s%d, %d" % (S_WQ, (1 - p) * 16384))
        if nomf0: sc.at(kpos[0] - 1, "s_nop 3")
        for k, g in enumerate(kpos):
            sc.at(g, "buffer_load_dwordx4 v%d, s[12:15], s%d offen offset:%d lds%s" % (V_DMA, S_KO, k * 1024, DMAFL + tag), 2)
        sc.at(36, "v_readlane_b32 s%d, v%d, s%d" % (S_VO, V_TABV, S_G3))
        sc.at(vpos[0] - 1 if vpos[0] > 49 else 46, "s_add_u32 m0, s%d, %d" % (S_WQ, (1 - p) * 16384 + 65536))
        if nomf1: sc.at(vpos[0] - 1, "s_nop 3")
        for k, g in enumerate(vpos):
            sc.at(g, "buffer_load_dwordx4 v%d, s[12:15], s%d offen offset:%d lds%s" % (V_DMA, S_VO, k * 1024, DMAFL + tag), 2)
    if not paired: sc.at(60, "s_add_u32 s%d, s%d, 1" % (S_G3, S_G3))
    if loop:
        sc.at(62, "s_cmp_eq_u32 s%d, s%d" % (S_G3, S_END), last=True)
        sc.at(63, loop, last=True)

def ring_restart(a):
    a("v_readlane_b32 s%d, v%d, 2" % (S_KO, V_TABK))
    a("v_readlane_b32 s%d, v%d, 2" % (S_VO, V_TABV))
    a("s_mov_b32 m0, s24")
    a("v_add_u32 v%d, 0x8000, v1" % V_RDK)
    a("v_add_u32 v%d, 0x18000, v1" % V_RDV)
    a("s_mov_b32 s%d, s24" % S_WQ)
    a("s_mov_b32 s%d, 3" % S_G3)
    for j in range(4): a("buffer_load_dwordx4 v%d, s[12:15], s%d offen offset:%d lds%s" % (V_DMA, S_KO, j * 1024, DMAFL))
    a("s_add_u32 m0, s24, 65536")
    a("s_nop 0")
    for j in range(4): a("buffer_load_dwordx4 v%d, s[12:15], s%d offen offset:%d lds%s" % (V_DMA, S_VO, j * 1024, DMAFL))

def first_reads(a, vreg, imm, Fr=Fr):
    for n in range(8): a("ds_read_b128 %s, v%d offset:%d" % (Fr(n), vreg, imm + n * 1024))

def sm_ops(buf, kb):
    ex, pl = [], []
    for qb in range(2):
        s = St(buf, kb, qb); e = V_E + 8 * kb + 4 * qb; ts = V_TS + qb; P = V_P[buf] + 4 * qb + 2 * kb
        ex += ["v_exp_f32 v%d, v%d" % (e + j, s + j) for j in range(4)]
        b = 4 * qb
        if kb == 0: pl.append(("v_add_f32 v%d, v%d, v%d" % (ts, e, e + 1), b + 1))
        else: pl += [("v_add_f32 v%d, v%d, v%d" % (ts, ts, e), b), ("v_add_f32 v%d, v%d, v%d" % (ts, ts, e + 1), b + 1)]
        pl.append(("v_cvt_pk_bf16_f32 v%d, v%d, v%d" % (P, e, e + 1), b + 1))
        pl += [("v_add_f32 v%d, v%d, v%d" % (ts, ts, e + 2), b + 2), ("v_add_f32 v%d, v%d, v%d" % (ts, ts, e + 3), b + 3)]
        pl.append(("v_cvt_pk_bf16_f32 v%d, v%d, v%d" % (P + 1, e + 2, e + 3), b + 3))
    return ex, pl
def sm_serial(buf, kb):
    ex, pl = sm_ops(buf, kb)
    return ex + [s for s, _ in pl]
def place_sm(sc, buf, kb, exgaps, g0, g1, pre=(), post=()):
    ex, pl = sm_ops(buf, kb)
    for s, g in zip(ex, exgaps):
        if g is not None: sc.at(g, s, 2)
    exgaps = [-1 if g is None else g for g in exgaps]
    g = g0
    for s in pre: g = sc.at(sc.first_free(g, 1, g1), s)
    for s, d in pl: g = sc.at(sc.first_free(max(g, exgaps[d] + 1), 1, g1), s)
    for s in post: g = sc.at(sc.first_free(g, 1, g1), s)

def qk_mfmas(buf):
    mf = []
    for kb in range(2):
        order = [(s, 0) for s in range(4)] + [(s, 1) for s in range(8)] + [(s, 0) for s in range(4, 8)]
        if "nochain" in E: order = [(s, qb) for s in range(8) for qb in range(2)]
        for s, qb in order:
            d = vr(St(buf, kb, qb))
            mf.append(MF(d, Fr(8 * kb + s), Qf(qb, s), vr(Ct(kb, qb)) if s == 0 else d))
    return mf
def pv_mfmas(buf):
    return [MF(vr(Ot(db, qb)), Fr(16 + db), vr(V_P[buf] + 4 * qb), vr(Ot(db, qb))) for db in range(16) for qb in ((0, 1) if db & 1 == 0 or "nochain" in E else (1, 0))]
CHECK = ["v_max_f32 v%d, v%d, v%d" % (V_T, V_TS, V_TS + 1), "v_cmp_lt_f32 vcc, s%d, v%d" % (S_THR, V_T)]
LACC = ["v_add_f32 v%d, v%d, v%d" % (V_L + qb, V_L + qb, V_TS + qb) for qb in range(2)]

def body_full(a, p, loop, stubs):
    sc = Sched(qk_mfmas(p) + pv_mfmas(1 - p))
    sp4 = "sp4" in E
    ring_fixed(sc, p, loop=loop, kpos=(17, 21, 25, 29) if sp4 else (21, 25, 27, 29), vpos=(49, 53, 57, 61) if sp4 else (53, 57, 59, 61))
    back = "AT_full%d_back" % p
    sc.at(31, "s_cbranch_vccnz AT_full%d_stub\n%s:" % (p, back))
    stubs.append(("AT_full%d_stub" % p, p, back))
    if sp4:
        place_sm(sc, 1 - p, 1, (None, 1, 3, 5, 9, 11, 13, 19), 0, 30, post=CHECK)
        place_sm(sc, p, 0, (27, 33, 35, 37, 41, 43, 45, 51), 32, 63, pre=LACC)
        sc.at(59, sm_ops(p, 1)[0][0], 2)
    else:
        place_sm(sc, 1 - p, 1, (1, 3, 5, 9, 11, 13, 17, 19), 0, 30, post=CHECK)
        place_sm(sc, p, 0, (33, 35, 37, 41, 43, 45, 49, 51), 32, 63, pre=LACC)
    sc.emit(a)
    return sc.overflow()

def body_pvlast(a, p, stubs):
    sc = Sched([None] * 32 + pv_mfmas(1 - p))
    ring_fixed(sc, p, useK=False)
    for g in range(16, 31):
        rd = [s for s in sc.items[g] if s.startswith("ds_read")]
        sc.items[g] = [s for s in sc.items[g] if not s.startswith("ds_read")]
        sc.tail[-1] += rd
    back = "AT_pv%d_back" % p
    for s in sm_serial(1 - p, 1) + CHECK: sc.at(10, s)
    sc.at(31, "s_cbranch_vccnz AT_pv%d_stub\n%s:" % (p, back))
    stubs.append(("AT_pv%d_stub" % p, p, back))
    for k, s in enumerate(LACC): sc.at(33, s)
    sc.emit(a)

def body_qkfirst(a, p):
    sc = Sched(qk_mfmas(p) + [None] * 32)
    ring_fixed(sc, p, useV=False)
    t = Asm()
    m = V_T
    for qb in range(2):
        s0 = St(p, 0, qb)
        sc.at(23, "v_max3_f32 v%d, v%d, v%d, v%d" % (m + qb, s0, s0 + 1, s0 + 2))
        sc.at(24, "v_mov_b32 v%d, 0" % (V_L + qb))
    t("s_nop 6")
    for qb in range(2):
        s0, s1 = St(p, 0, qb), St(p, 1, qb)
        t("v_max3_f32 v%d, v%d, v%d, v%d" % (m + qb, m + qb, s0 + 3, s1))
        t("v_max3_f32 v%d, v%d, v%d, v%d" % (m + qb, m + qb, s1 + 1, s1 + 2))
        t("v_max_f32 v%d, v%d, v%d" % (m + qb, m + qb, s1 + 3))
    xlane_reduce2(t, "v_max_f32", m, m + 1, m + 2)
    for qb in range(2):
        t("v_sub_f32 v%d, 0, v%d" % (V_NEGM + qb, m + qb))
        for j in range(4): t("v_sub_f32 v%d, v%d, v%d" % (St(p, 0, qb) + j, St(p, 0, qb) + j, m + qb))
    for l in t.lines: sc.at(37, l.strip())
    t = Asm()
    for s in sm_serial(p, 0): t(s)
    for qb in range(2):
        for j in range(4): t("v_sub_f32 v%d, v%d, v%d" % (St(p, 1, qb) + j, St(p, 1, qb) + j, m + qb))
        for kb in range(2):
            for j in range(4): t("v_mov_b32 v%d, v%d" % (Ct(kb, qb) + j, V_NEGM + qb))
    t(sm_ops(p, 1)[0][0])
    NB = int(os.environ.get("QKB", 22))
    for l in t.lines[:NB]: sc.at(38, l.strip())
    for l in t.lines[NB:]: sc.at(63, l.strip())
    sc.emit(a)

def body_idle(a, p, loop):
    sc = Sched([None] * 64)
    ring_fixed(sc, p, useK=False, useV=False, loop=loop)
    sc.emit(a)

def rescale_sub(a, p):
    cur, nxt = 1 - p, p
    a.label("AT_rescale%d" % p)
    a("s_nop 7")
    for qb in range(2):
        m = V_T; f = V_T + 1
        s0, s1 = St(cur, 0, qb), St(cur, 1, qb)
        a("v_max3_f32 v%d, v%d, v%d, v%d" % (m, s0, s0 + 1, s0 + 2))
        a("v_max3_f32 v%d, v%d, v%d, v%d" % (m, m, s0 + 3, s1))
        a("v_max3_f32 v%d, v%d, v%d, v%d" % (m, m, s1 + 1, s1 + 2))
        a("v_max3_f32 v%d, v%d, v%d, 0" % (m, m, s1 + 3))
        xlane_reduce(a, "v_max_f32", m, V_T + 2)
        a("v_exp_f32 v%d, -v%d" % (f, m))
        a("v_sub_f32 v%d, v%d, v%d" % (V_NEGM + qb, V_NEGM + qb, m))
        a("v_mul_f32 v%d, v%d, v%d" % (V_L + qb, V_L + qb, f))
        for kb in range(2):
            for j in range(4):
                for r in (St(cur, kb, qb), St(nxt, kb, qb), Ct(kb, qb)):
                    a("v_sub_f32 v%d, v%d, v%d" % (r + j, r + j, m))
        for db in range(16):
            for j in range(4):
                a("v_mul_f32 v%d, v%d, v%d" % (Ot(db, qb) + j, Ot(db, qb) + j, f))
    for kb in range(2):
        for s in sm_serial(cur, kb): a(s)
    a(sm_ops(nxt, 0)[0][0])
    a("s_nop 1")
    a("s_setpc_b64 s[%d:%d]" % (S_RET2, S_RET2 + 1))

def op_acc(buf, e, qb): return V_O + 32 * buf + 4 * (2 * e + qb)
def op_flush_items(buf, k):
    it = []
    if k in (1, 2): it.append(("s_add_u32 s80, s80, 4096", 1))
    if k == 4: it.append(("s_sub_u32 s%d, s%d, 12288" % (S_ST, S_ST), 1))
    if k > 4: it.append(("s_add_u32 s%d, s%d, 4096" % (S_ST, S_ST), 1))
    if k >= 4: it.append(("WAITVM D%d" % (k - 4), 1))
    for qb in range(2):
        for sp in range(2):
            r = V_C + 4 * (2 * qb + sp)
            pd = 192 + 16 * (k & 1) + 4 * (2 * qb + sp)
            for d in range(4):
                j = 2 * sp + (d >> 1); e = 2 * (d & 1)
                o0, o1 = op_acc(buf, e, qb) + j, op_acc(buf, e + 1, qb) + j
                if k < 4:
                    it += [("v_mul_f32 v%d, v%d, v%d" % (o, o, V_R + qb), 1) for o in (o0, o1)]
                else:
                    it += [("v_lshlrev_b32 v%d, 16, v%d" % (r + d, pd + d), 1), ("v_and_b32 v%d, 0xffff0000, v%d" % (pd + d, pd + d), 1),
                           ("v_fma_f32 v%d, v%d, v%d, v%d" % (o0, o0, V_R + qb, r + d), 1), ("v_fma_f32 v%d, v%d, v%d, v%d" % (o1, o1, V_R + qb, pd + d), 1)]
                it.append(("v_cvt_pk_bf16_f32 v%d, v%d, v%d" % (r + d, o0, o1), 1))
            if k < 3: it.append(("buffer_store_dwordx4 %s, v1, s[12:15], s80 offen offset:%d @S%d" % (vr(r), (2 * qb + sp) * 1024, k), 2))
            else: it.append(("buffer_store_dwordx4 %s, v%d, s[12:15], s%d offen offset:%d sc1 @S%d" % (vr(r), V_T2 if qb else 1, S_ST, sp * 1024, k), 2))
    return it

def subroutines(a):
    stubs = []
    ret = "s_setpc_b64 s[%d:%d]" % (S_RET, S_RET + 1)
    def looped(name, fn):
        a.label("AT_%s" % name)
        a("s_bitcmp1_b32 s%d, 0" % S_G3)
        a("s_cbranch_scc0 AT_%s_odd" % name)
        a(".p2align 4")
        a.label("AT_%s_even" % name)
        fn(0, "s_cbranch_scc1 AT_%s_ret" % name)
        a.label("AT_%s_odd" % name)
        fn(1, "s_cbranch_scc0 AT_%s_even" % name)
        a.label("AT_%s_ret" % name)
        a(ret)
    def single(name, fn):
        a.label("AT_%s" % name)
        a("s_bitcmp1_b32 s%d, 0" % S_G3)
        a("s_cbranch_scc0 AT_%s_odd" % name)
        fn(0); a(ret)
        a.label("AT_%s_odd" % name)
        fn(1); a(ret)
    single("qkfirst", lambda p: body_qkfirst(a, p))
    looped("full", lambda p, l: print("full overflow", body_full(a, p, l, stubs)))
    single("pvlast", lambda p: body_pvlast(a, p, stubs))
    looped("idle", lambda p, l: body_idle(a, p, l))
    for lab, p, back in stubs:
        a.label(lab)
        a("s_call_b64 s[%d:%d], AT_rescale%d" % (S_RET2, S_RET2 + 1, p))
        a("s_branch %s" % back)
    rescale_sub(a, 0); rescale_sub(a, 1)

def call(a, name):
    if name == "pvlast":
        a("s_mov_b32 s3, %d" % PKA)
        a("buffer_load_dwordx4 v[124:127], v1, s[12:15], s3 offen sc1")
    a("s_call_b64 s[%d:%d], AT_%s" % (S_RET, S_RET + 1, name))
def run_k(a, name, k):
    a("s_add_u32 s%d, s%d, %d" % (S_END, S_G3, k))
    call(a, name)
def run_n(a, name, cnt):
    sk = a.newlabel("skip")
    a("s_cmp_lt_i32 s%d, 1" % cnt)
    a("s_cbranch_scc1 %s" % sk)
    a("s_add_u32 s%d, s%d, s%d" % (S_END, S_G3, cnt))
    call(a, name)
    a.label(sk)

def cinit(a, masked, zero):
    if masked: a("v_mov_b32 v%d, 0x%x" % (V_T, NEG))
    for kb in range(2):
        for qb in range(2):
            base = "0" if zero else "v%d" % (V_NEGM + qb)
            for j in range(4):
                r = Ct(kb, qb) + j
                if masked and kb == qb: a("v_cndmask_b32 v%d, %s, v%d, s[%d:%d]" % (r, base, V_T, S_MASK + 2 * j, S_MASK + 2 * j + 1))
                elif masked and kb > qb: a("v_mov_b32 v%d, v%d" % (r, V_T))
                elif zero: a("v_mov_b32 v%d, 0" % r)
def zero_o(a):
    for k in range(64): a("v_mov_b64 %s, 0" % vr(V_O + 2 * k, 2))

def tab_seg(a, startK, startV, base, stride, cnt1, lag, first=False):
    t = V_T
    a("v_subrev_u32 v%d, %s, v2" % (t, startK))
    a("v_min_i32 v%d, %s, v%d" % (t + 1, cnt1, t))
    a("v_subrev_u32 v%d, %d, v%d" % (t + 2, lag, t))
    a("v_max_i32 v%d, 0, v%d" % (t + 2, t + 2))
    a("v_min_i32 v%d, %s, v%d" % (t + 2, cnt1, t + 2))
    a("v_mul_i32_i24 v%d, %d, v%d" % (t + 1, stride, t + 1))
    a("v_mul_i32_i24 v%d, %d, v%d" % (t + 2, stride, t + 2))
    a("v_add_u32 v%d, %s, v%d" % (t + 1, base, t + 1))
    a("v_add_u32 v%d, %s, v%d" % (t + 2, base, t + 2))
    a("v_add_u32 v%d, 0x4000, v%d" % (t + 2, t + 2))
    if first:
        a("v_mov_b32 v%d, v%d" % (V_TABK, t + 1))
        a("v_mov_b32 v%d, v%d" % (V_TABV, t + 2))
    else:
        a("v_cmp_le_i32 vcc, 0, v%d" % t)
        a("s_nop 1")
        a("v_cndmask_b32 v%d, v%d, v%d, vcc" % (V_TABK, V_TABK, t + 1))
        a("v_cmp_le_i32 vcc, %d, v%d" % (startV, t))
        a("s_nop 1")
        a("v_cndmask_b32 v%d, v%d, v%d, vcc" % (V_TABV, V_TABV, t + 2))

def tables(a):
    a("s_lshl_b32 s86, s%d, 2" % S_I)
    a("s_sub_u32 s%d, %d, s86" % (S_N1, 64 - XA))
    a("s_add_u32 s%d, s86, 4" % S_N2)
    a("s_cmp_eq_u32 s%d, 1\ns_cselect_b32 s87, %d, 32" % (S_ROLE, XA))
    a("s_cmp_lt_u32 s68, 14\ns_cselect_b32 s%d, s%d, s87\ns_cselect_b32 s%d, s%d, 0\ns_cselect_b32 s87, %d, 0" % (S_N1, S_N1, S_N2, S_N2, XA * KTS))
    a("s_mov_b32 s%d, 0x%x" % (S_THR, f2u(65536.0)))
    a("s_mul_i32 s88, s%d, %d" % (S_HEAD, KHS))
    if KV: a("s_add_u32 s88, s88, %d" % KV)
    a("s_add_u32 s25, s88, s87")
    a("s_sub_u32 s89, s%d, 1" % S_N1)
    tab_seg(a, "0", 0, "s25", KTS, "s89", 1, first=True)
    a("s_add_u32 s86, s86, 3")
    a("s_mul_i32 s86, s86, %d" % KTS)
    a("s_add_u32 s25, s88, s86")
    a("s_sub_u32 s89, s%d, 1" % S_N2)
    tab_seg(a, "s%d" % S_N1, 1, "s25", -KTS, "s89", 1)
    a("s_add_u32 s69, s%d, s%d" % (S_N1, S_N2))
    a("s_add_u32 s69, s69, 1")
    a("s_mul_i32 s25, s%d, %d" % (S_HEAD, WBLK))
    a("s_add_u32 s25, s25, %d" % WOP)
    tab_seg(a, "s69", 0, "s25", 32768, "6", 0)
    a("s_and_b32 s86, s68, 1")
    a("s_lshl_b32 s%d, s67, 1" % S_R)
    a("s_add_u32 s%d, s%d, s86" % (S_R, S_R))
    a("s_lshr_b32 s%d, s68, 1" % S_M)
    a("s_add_u32 s69, s69, 7")
    a("s_min_u32 s25, s%d, 13" % S_M)
    a("s_mul_i32 s25, s25, %d" % WBLK)
    a("s_add_u32 s25, s25, %d" % W13P)
    tab_seg(a, "s69", 0, "s25", 32768, "6", 0)
    a("v_lshrrev_b32 v%d, 4, v2" % V_T)
    a("v_lshlrev_b32 v%d, 2, v%d" % (V_T, V_T))
    a("v_and_b32 v%d, 15, v2" % (V_T + 1))
    for j in range(4):
        a("v_add_u32 v%d, %d, v%d" % (V_T + 2, j, V_T))
        a("v_cmp_gt_u32 s[%d:%d], v%d, v%d" % (S_MASK + 2 * j, S_MASK + 2 * j + 1, V_T + 2, V_T + 1))

def qproj(a, st, vm, isK, stubs):
    a("v_add_u32 v%d, 0x10000, v1" % V_RDV)
    a("v_add_u32 v13, 0x20000, v1")
    a("v_mov_b32 v14, 1")
    a("s_cmp_lt_u32 s68, 14")
    a("s_cselect_b32 s3, %d, 0" % (2 * (XA >> 3)))
    a("v_min_u32 v15, 1, v2")
    a("v_add_u32 v15, s3, v15")
    a("v_mul_u32_u24 v15, %d, v15" % (16 * FB))
    def src(c, h):
        if c > 6: return None
        u = QUNIT[2 * c + h]
        return ((1, V_RDV, 13)[u >> 6], (u & 63) * 1024)
    a(vm.see("WAITVM X18,Q6"))
    a("s_barrier")
    first_reads(a, src(0, 0)[0], src(0, 0)[1], FrV)
    st.rt(a, "q_start")
    nm = "QK" if isK else "QV"
    def place_group(sc, g, g0, offs=(0, 2, 6, 10)):
        p0, ld, _ = g
        for x in p0: sc.at(g0 - 2, x)
        for k in range(4): sc.at(g0 + offs[k], ld[k], 2)
    def kv_group(entry, isV, slot):
        so = S_VO if isV else S_KO
        return (["v_readlane_b32 s%d, v%d, %d" % (so, V_TABV if isV else V_TABK, entry), "s_add_u32 m0, s24, %d" % (slot * 16384 + (65536 if isV else 0))],
                ["buffer_load_dwordx4 v%d, s[12:15], s%d offen offset:%d lds%s" % (V_DMA, so, j * 1024, DMAFL) for j in range(4)], [])
    tb = Items(); tables(tb)
    for c in range(7):
        mf = []
        for h in range(2):
            s = 2 * c + h
            for n in range(16):
                for qb in range(2):
                    d = ar(4 * (2 * n + qb))
                    mf.append(MF(d, FrV(16 * h + n), xn_reg(qb, s), "0" if s == 0 else d))
        sc = Sched(mf)
        bar = {4: "WAITVM Q11,KV1", 5: "WAITVM Q13", 6: "WAITVM KV2,F1"}.get(c)
        frag_reads(sc, src(c, 0), src(c, 1), src(c + 1, 0), bar, FrV)
        if c == 0:
            place_group(sc, dmaQ(9), 3, (0, 8, 16, 24))
            for k in range(8): sc.at(5 + 8 * k - (2 if k == 7 else 0), xn_load(20 + k)[0], 2)
        if c in (2, 3):
            sc.at(-1, "WAITVM X19,Q8" if c == 2 else "WAITVM X27,Q9", last=True)
            sc.at(-1, "s_barrier", last=True)
            for h in range(2): place_group(sc, dmaQ(2 * c + 6 + h), 3 + 32 * h, (0, 8, 16, 24))
        if c == 4:
            for k in range(2): sc.at(49 + 2 * k, sig(O_KV1)[k], 2)
        if c == 6:
            sc.at(29, flag_load("v15", "s%d" % S_GRPF, O_KV1, 12) + " @F1", 2)
            for k in range(2): sc.at(48 + 2 * k, sig(O_KV2)[k], 2)
            sc.at(49, "v_cmp_ne_u32 vcc, 1, v12")
            sc.at(51, "s_cbranch_vccnz %s_spin\n%s_spinback:" % (nm, nm))
            sp = Asm(); sp.label(nm + "_spin"); poll(sp, "v15", "s%d" % S_GRPF, O_KV1, 12, nm + "f1"); sp("s_branch %s_spinback" % nm)
            stubs.append(sp.text())
            g = kv_group(0, False, 2)
            sc.at(45, g[0][0]); sc.at(45, g[0][1])
            for k in range(4): sc.at(52 + k, g[1][k], 2)
            g = kv_group(1, True, 3)
            sc.at(43, g[0][0]); sc.at(56, g[0][1])
            sc.at(56, kv_group(1, False, 3)[0][0])
            for k in range(4): sc.at(57 + k, g[1][k], 2)
            g = kv_group(1, False, 3)
            sc.at(61, g[0][1])
            for k in range(4): sc.at(62 + min(k, 1), g[1][k], 2)
        it = []
        ntb = {0: (0, 24), 1: (24, 84), 6: (84, 999)}.get(c, (0, 0))
        tbi = tb.it[ntb[0]:ntb[1]]
        ns = list({0: range(5, 9), 1: range(9, 14), 2: range(14, 18), 3: range(18, 23), 4: range(23, 27), 5: range(27, 32)}.get(c, ()))
        for k, n in enumerate(ns):
            if n >= 16: it += kv_conv(isK, n, 16)
            elif c == 2: it += [("", 1)] * 12
            it += kv_store(isK, n) + tbi[k * len(tbi) // len(ns):(k + 1) * len(tbi) // len(ns)]
        if c == 6: it = tbi
        if it: sc.flow(it, 0, {6: 40}.get(c, 62))
        if isK: print("qproj overflow", c, sc.overflow())
        sc.emit(a, vm)
        if "qst" in E and c < 6: st.rt(a, "q%d" % (c + 1))

def pair_off(a, dst, base, per_wave):
    a("s_lshl_b32 s%d, s%d, 3" % (dst, S_HEAD))
    a("s_add_u32 s%d, s%d, s%d" % (dst, dst, S_I))
    a("s_lshl_b32 s%d, s%d, 2" % (dst, dst))
    a("s_add_u32 s%d, s%d, s66" % (dst, dst))
    a("s_mul_i32 s%d, s%d, %d" % (dst, dst, per_wave))
    a("s_add_u32 s%d, s%d, %d" % (dst, dst, base))
def ex_base(a, dst):
    pair_off(a, dst, 0, 17408)
    a("s_cmp_eq_u32 s%d, 1\ns_cselect_b32 s3, %d, %d" % (S_ROLE, OPX, QX))
    a("s_add_u32 s%d, s%d, s3" % (dst, dst))
def ex_touch(a):
    ex_base(a, 80)
    a("v_lshlrev_b32 v%d, 3, v1" % (V_X + 9))
    a("s_add_u32 s3, s80, 8192")
    a("buffer_load_dword v%d, v%d, s[12:15], s80 offen" % (V_X + 10, V_X + 9))
    a("buffer_load_dword v%d, v%d, s[12:15], s3 offen" % (V_X + 11, V_X + 9))
def partner_flags(a, dst):
    a("s_xor_b32 s%d, s2, 128" % dst)
    a("s_mul_i32 s%d, s%d, %d" % (dst, dst, FB))
    a("s_add_u32 s%d, s%d, %d" % (dst, dst, FLG))

def q_epilogue(a, qb, dst, store):
    for sd in range(8):
        cb, sp = sd >> 1, sd & 1
        r = 32 + 12 * (sd % 4)
        f = 8 * qb + sd
        for d in range(4):
            j = 2 * sp + (d >> 1); e = 2 * (d & 1)
            a("v_accvgpr_read_b32 v%d, a%d" % (r + 2 * d, 4 * (2 * (4 * cb + e) + qb) + j))
            a("v_accvgpr_read_b32 v%d, a%d" % (r + 2 * d + 1, 4 * (2 * (4 * cb + e + 1) + qb) + j))
        for d in range(4): a("v_cvt_pk_bf16_f32 v%d, v%d, v%d" % (r + 8 + d, r + 2 * d, r + 2 * d + 1))
        if store:
            if f % 4 == 0 and f: a("s_add_u32 s25, s25, s39")
            a("buffer_store_dwordx4 %s, v1, s[12:15], s25 offen offset:%d sc1" % (vr(r + 8), (f % 4) * 1024))
        for d in range(4): a("v_accvgpr_write_b32 a%d, v%d" % (dst + 4 * f + d, r + 8 + d))

def l_total(a): xlane_reduce2(a, "v_add_f32", V_L, V_L + 1, V_T)

def pkmul(a, d, x, sc):
    if "nopk" in E:
        a("v_mul_f32 v%d, v%d, v%d\nv_mul_f32 v%d, v%d, v%d" % (d, x, sc, d + 1, x + 1, sc)); return
    lo = sc & ~1; h = sc & 1
    a("v_pk_mul_f32 %s, %s, %s op_sel:[0,%d] op_sel_hi:[1,%d]" % (vr(d, 2), vr(x, 2), vr(lo, 2), h, h))
def pkfma(a, d, x, sc, c):
    lo = sc & ~1; h = sc & 1
    a("v_pk_fma_f32 %s, %s, %s, %s op_sel:[0,%d,0] op_sel_hi:[1,%d,1]" % (vr(d, 2), vr(x, 2), vr(lo, 2), vr(c, 2), h, h))

def normalize(a, soff=None, f0=0, f1=16, rcp=True, nst=16):
    if soff is None and rcp:
        for qb in range(2): a("v_rcp_f32 v%d, v%d" % (V_R + qb, V_L + qb))
    for f in range(f0, f1):
        qb, s = f >> 3, f & 7
        r = V_CTX + 4 * f
        if soff is not None:
            for h in range(2):
                o = Ot(2 * s + h, qb)
                pkmul(a, o, o, V_T2 + qb); pkmul(a, o + 2, o + 2, V_T2 + qb)
        for h in range(2):
            o = Ot(2 * s + h, qb)
            a("v_cvt_pk_bf16_f32 v%d, v%d, v%d" % (r + 2 * h, o, o + 1))
            a("v_cvt_pk_bf16_f32 v%d, v%d, v%d" % (r + 2 * h + 1, o + 2, o + 3))
        if soff is not None and f < nst: part_store(a, soff, f)
def part_store(a, soff, f):
    if f % 4 == 0 and f: a("s_add_u32 s%d, s%d, 4096" % (soff, soff))
    a("buffer_store_dwordx4 %s, v1, s[12:15], s%d offen offset:%d sc1" % (vr(V_CTX + 4 * f) if f < 16 else vr(V_NEGM), soff, (f % 4) * 1024))

def partner_loads(a):
    pair_off(a, 25, OPX, 17408)
    for f in range(17):
        if f % 4 == 0 and f: a("s_add_u32 s25, s25, 4096")
        a("buffer_load_dwordx4 %s, v1, s[12:15], s25 offen offset:%d sc1" % (ar(A_SP + 4 * f) if f < 16 else vr(V_X), (f % 4) * 1024))

def combine(a):
    al, be = V_T2, V_T2 + 2
    for qb in range(2):
        t = V_T
        a("v_min_f32 v%d, v%d, v%d" % (t, V_NEGM + qb, V_X + qb))
        a("v_sub_f32 v%d, v%d, v%d" % (t + 1, t, V_NEGM + qb))
        a("v_sub_f32 v%d, v%d, v%d" % (t + 2, t, V_X + qb))
        a("v_exp_f32 v%d, v%d" % (t + 1, t + 1))
        a("v_exp_f32 v%d, v%d" % (t + 2, t + 2))
        a("s_nop 0")
        a("v_mul_f32 v%d, v%d, v%d" % (t, t + 2, V_X + 2 + qb))
        a("v_fma_f32 v%d, v%d, v%d, v%d" % (t, t + 1, V_L + qb, t))
        a("v_rcp_f32 v%d, v%d" % (t, t))
        a("s_nop 0")
        a("v_mul_f32 v%d, v%d, v%d" % (al + qb, t + 1, t))
        a("v_mul_f32 v%d, v%d, v%d" % (be + qb, t + 2, t))
        a("v_mov_b32 v%d, 1.0" % (V_R + qb))
    for f in range(16):
        qb, s = f >> 3, f & 7
        for d in range(4): a("v_accvgpr_read_b32 v%d, a%d" % (V_C + 2 * d + 1, A_SP + 4 * f + d))
        for d in range(4):
            o = Ot(2 * s + (d >> 1), qb) + 2 * (d & 1)
            pkmul(a, o, o, al + qb)
        for d in range(4):
            a("v_lshlrev_b32 v%d, 16, v%d" % (V_C + 2 * d, V_C + 2 * d + 1))
            a("v_and_b32 v%d, 0xffff0000, v%d" % (V_C + 2 * d + 1, V_C + 2 * d + 1))
        for d in range(4):
            o = Ot(2 * s + (d >> 1), qb) + 2 * (d & 1)
            pkfma(a, o, V_C + 2 * d, be + qb, o)
        for d in range(4):
            o = Ot(2 * s + (d >> 1), qb) + 2 * (d & 1)
            a("v_cvt_pk_bf16_f32 v%d, v%d, v%d" % (V_CTX + 4 * f + d, o, o + 1))

def attention(a, st, stubs):
    st.rt(a, "q_end")
    a("s_xor_b32 s87, s%d, 1" % S_ROLE)
    a("s_cmp_eq_u32 s%d, 7" % S_I)
    a("s_cselect_b32 s86, 0, s%d" % S_ROLE)
    a("s_cselect_b32 s87, 0, s87")
    pair_off(a, 25, QX, 17408)
    a("s_cmp_eq_u32 s86, 1")
    a("s_cselect_b32 s25, s25, %d" % WSZ)
    a("s_cselect_b32 s39, 4096, 0")
    grp_voff(a, V_T, 16)
    partner_flags(a, 29)
    q_epilogue(a, 0, A_Q, True)
    a(flag_load("v%d" % V_T, "s%d" % S_GRPF, O_KV2, V_T + 1))
    q_epilogue(a, 1, A_Q, True)
    zero_o(a)
    cinit(a, False, True)
    a("s_waitcnt vmcnt(8)")
    a("v_cmp_ne_u32 vcc, 1, v%d" % (V_T + 1))
    a("s_nop 2")
    a("s_cbranch_vccz AT_kvok")
    poll(a, "v%d" % V_T, "s%d" % S_GRPF, O_KV2, V_T + 1, "fkv")
    a.label("AT_kvok")
    st.rt(a, "kv_ready")
    ring_restart(a)
    a("s_lshl_b32 s3, s2, 2")
    a("s_add_u32 s3, s3, %d" % PKA)
    a("buffer_store_dword v14, v31, s[12:15], s3 offen sc1")
    a("s_cmp_eq_u32 s86, 1")
    a("s_cbranch_scc0 AT_notA")
    a("s_waitcnt vmcnt(9)")
    a("s_barrier")
    for x in sig(O_Q): a(x)
    first_reads(a, V_RDK, 0)
    st.rt(a, "at_start")
    call(a, "qkfirst")
    a("s_add_u32 s25, s25, 4096")
    a("buffer_store_dwordx2 %s, v1, s[12:15], s25 offen sc1" % vr(V_NEGM, 2))
    run_k(a, "full", 2)
    for x in sig(O_M): a(x)
    if st.on and "fcyc" in E:
        run_k(a, "full", XA - 6 - 28)
        st.cyc(a, "f0_c")
        run_k(a, "full", 28)
        st.cyc(a, "f1_c")
    else:
        run_k(a, "full", XA - 6)
    a(code_warm("v%d" % (V_X + 8)))
    a("s_lshl_b32 s3, s66, 2")
    a("s_add_u32 s29, s29, s3")
    a(flag_load("off", "s29", O_O, V_X + 4))
    run_k(a, "full", 2)
    a("v_readfirstlane_b32 s39, v%d" % (V_X + 4))
    a("s_cmp_eq_u32 s39, 1")
    a("s_cbranch_scc0 AT_A_late")
    partner_loads(a)
    run_k(a, "full", 1)
    a("s_branch AT_A_last")
    a.label("AT_A_late")
    a(flag_load("off", "s29", O_O, V_X + 4))
    run_k(a, "full", 1)
    a("s_waitcnt vmcnt(8)")
    a("v_readfirstlane_b32 s39, v%d" % (V_X + 4))
    a("s_cmp_eq_u32 s39, 1")
    a("s_cbranch_scc0 AT_A_last")
    partner_loads(a)
    a.label("AT_A_last")
    call(a, "pvlast")
    st.rt(a, "seg_done")
    a("s_cmp_eq_u32 s39, 1")
    a("s_cbranch_scc1 AT_A_have")
    poll(a, "off", "s29", O_O, V_T, "fo")
    partner_loads(a)
    a("s_waitcnt vmcnt(0)")
    a.label("AT_A_have")
    l_total(a)
    a("v_lshrrev_b32 v%d, 4, v2" % V_T)
    a("v_and_b32 v%d, 15, v2" % (V_T + 1))
    a("v_lshlrev_b32 v%d, 2, v%d" % (V_T, V_T))
    a("v_sub_u32 v%d, v%d, v%d" % (V_T, V_T + 1, V_T))
    a("v_and_b32 v%d, 1, v%d" % (V_T + 1, V_T))
    a("v_lshlrev_b32 v%d, 4, v%d" % (V_T + 1, V_T + 1))
    a("v_mov_b32 v%d, 0x3f80" % (V_T + 2))
    a("v_lshlrev_b32 v%d, v%d, v%d" % (V_T + 1, V_T + 1, V_T + 2))
    a("v_lshrrev_b32 v%d, 1, v%d" % (V_T, V_T))
    a("v_cmp_eq_u32 vcc, 0, v%d" % V_T)
    a("v_mov_b64 %s, 0" % vr(V_C, 2))
    a("v_mov_b64 %s, 0" % vr(V_C + 4, 2))
    a("v_cndmask_b32 v%d, 0, v%d, vcc" % (V_C + 2, V_T + 1))
    a("v_cmp_eq_u32 vcc, 1, v%d" % V_T)
    a("s_waitcnt vmcnt(9)")
    a("v_add_f32 v%d, v%d, v%d" % (V_R, V_L, V_X + 2))
    a("v_cndmask_b32 v%d, 0, v%d, vcc" % (V_C + 3, V_T + 1))
    a("v_cmp_ne_u64 vcc, %s, %s" % (vr(V_NEGM, 2), vr(V_X, 2)))
    a("v_add_f32 v%d, v%d, v%d" % (V_R + 1, V_L + 1, V_X + 3))
    if "nopva" in E: a("s_mov_b64 vcc, -1")
    for qb in range(2): a("v_rcp_f32 v%d, v%d" % (V_R + qb, V_R + qb))
    a("s_cbranch_vccnz AT_A_gen")
    D = int(os.environ.get('AD', 3))
    for f in range(16 + D):
        nz = []
        if f >= D:
            t = Asm(); normalize(t, None, f - D, f - D + 1, rcp=False); nz = [l.strip() for l in t.lines]
        for h in range(2):
            if f < 16:
                o = vr(Ot(2 * (f & 7) + h, f >> 3))
                a(MF(o, vr(V_C + 2 - 2 * h), ar(A_SP + 4 * f), o))
            if f == D and h == 0: a("s_nop 1")
            for x in nz[2 * h:2 * h + 2]: a(x)
    a("s_branch AT_oproj_start")
    a.label("AT_A_gen")
    combine(a)
    a("s_branch AT_oproj_start")
    a.label("AT_notA")
    a("s_cmp_eq_u32 s87, 1")
    a("s_cbranch_scc1 AT_B")
    a("s_barrier")
    first_reads(a, V_RDK, 0)
    st.rt(a, "at_start")
    a("s_branch AT_seg1")
    a.label("AT_B")
    for k in range(64): a("v_accvgpr_mov_b32 a%d, a%d" % (A_SP + k, A_Q + k))
    poll(a, "off", "s29", O_Q, V_T, "fq")
    pair_off(a, 25, QX, 17408)
    for f in range(16):
        if f % 4 == 0 and f: a("s_add_u32 s25, s25, 4096")
        a("buffer_load_dwordx4 %s, v1, s[12:15], s25 offen offset:%d sc1" % (ar(A_Q + 4 * f), (f % 4) * 1024))
    a("s_barrier")
    first_reads(a, V_RDK, 0)
    a("s_waitcnt vmcnt(0)")
    st.rt(a, "at_start")
    a.label("AT_seg1")
    a("s_add_u32 s25, s%d, s66" % S_N1)
    a("s_cmp_eq_u32 s25, 4")
    a("s_cbranch_scc1 AT_s1_single")
    call(a, "qkfirst")
    a("s_sub_u32 s25, s25, 5")
    run_n(a, "full", 25)
    cinit(a, True, False)
    run_k(a, "full", 1)
    a("s_branch AT_s1_last")
    a.label("AT_s1_single")
    cinit(a, True, True)
    call(a, "qkfirst")
    a.label("AT_s1_last")
    pair_off(a, 25, QX + 16384, 17408)
    a(flag_load("off", "s29", O_M, V_X + 2))
    a("buffer_load_dwordx2 %s, v1, s[12:15], s25 offen sc1" % vr(V_X, 2))
    call(a, "pvlast")
    a("s_nop 3")
    l_total(a)
    a("s_cmp_eq_u32 s87, 1")
    a("s_cbranch_scc1 AT_B_gap")
    st.rt(a, "seg_done")
    ex_touch(a)
    a(code_warm("v%d" % (V_X + 8)))
    normalize(a)
    a("s_sub_u32 s25, 3, s66")
    run_n(a, "idle", 25)
    a("s_branch AT_oproj_start")
    a.label("AT_B_gap")
    a("s_waitcnt vmcnt(9)")
    a("v_readfirstlane_b32 s3, v%d" % (V_X + 2))
    a("s_cmp_eq_u32 s3, 1")
    a("s_cbranch_scc1 AT_B_havem")
    a(flag_load("off", "s29", O_M, V_X + 2))
    a("buffer_load_dwordx2 %s, v1, s[12:15], s25 offen sc1" % vr(V_X, 2))
    a("s_waitcnt vmcnt(0)")
    a.label("AT_B_havem")
    pair_off(a, 25, OPX, 17408)
    a("s_mov_b32 s3, 0x42700000")
    a("v_cmp_eq_u32 s[88:89], 1, v%d" % (V_X + 2))
    for qb in range(2):
        a("v_sub_f32 v%d, v%d, v%d" % (V_T, V_X + qb, V_NEGM + qb))
        a("v_cmp_ge_f32 vcc, s3, abs(v%d)" % V_T)
        a("s_nop 1")
        a("s_and_b64 vcc, vcc, s[88:89]")
        a("v_cndmask_b32 v%d, 0, v%d, vcc" % (V_T, V_T))
        a("v_cndmask_b32 v%d, v%d, v%d, vcc" % (V_NEGM + qb, V_NEGM + qb, V_X + qb))
        a("v_exp_f32 v%d, v%d" % (V_T2 + qb, V_T))
        a("s_nop 0")
        a("v_mul_f32 v%d, v%d, v%d" % (V_L + qb, V_L + qb, V_T2 + qb))
    NS = int(os.environ.get("GAPS", 9))
    normalize(a, 25, nst=NS)
    run_k(a, "idle", 1)
    mv = ["v_accvgpr_mov_b32 a%d, a%d" % (A_Q + k, A_SP + k) for k in range(64)]
    for f in range(NS, 17):
        part_store(a, 25, f)
        for x in mv[:8]: a(x)
        mv = mv[8:]
    for x in mv: a(x)
    zero_o(a)
    cinit(a, True, True)
    sig_wave(a, O_O, "s_waitcnt vmcnt(0)")
    run_k(a, "idle", 1)
    a.label("AT_seg2")
    call(a, "qkfirst")
    a("s_sub_u32 s25, s%d, s66" % S_N2)
    a("s_sub_u32 s25, s25, 1")
    run_n(a, "full", 25)
    ex_touch(a)
    a(code_warm("v%d" % (V_X + 8)))
    call(a, "pvlast")
    st.rt(a, "seg_done")
    l_total(a)
    normalize(a)
    a.label("AT_oproj_start")
    st.rt(a, "oproj_start")
```

```python
from asmlib import *
import struct, math
def f2u(x): return struct.unpack("<I", struct.pack("<f", x))[0]

import os
KTS = 32768 + int(os.environ.get('KPAD', 1280)); KHS = 64 * KTS + int(os.environ.get('HPAD', 2304))
KV   = 0x7000000
XN   = 0x2000000
WQP  = 0x2200000
WOP  = 0x2600000
W13P = 0x2A00000
W2P  = 0x2E00000
QX   = 0x0000000
OPX  = 0x3800000
PO   = 0x4200000
FLG  = 0x6A00000
STAMP = 0x0F000000
WSZ  = 0x10000000
WBLK = 229376

FB = 384
O_XCC, O_KV1, O_KV2, O_Q, O_O, O_H, O_A, O_A0, O_M, O_PO, O_PO1 = 0, 4, 8, 12, 48, 20, 24, 28, 32, 128, 132
PKA = FLG + 0x20000
ALT = 0x5400000
B16S = 16640
POH = 128 * B16S + 1280
O_X = 64
S_FAST, S_MYF, S_GRPF, S_B6 = 92, 93, 94, 95

S_PX, S_PC, S_PWQ, S_PWUK, S_PWUV, S_PWO, S_PBX, S_PW1, S_PW3, S_PW2, S_POUT, S_PDBG, S_PWS = range(40, 66, 2)
S_POUT = 64
def vr(b, n=4): return "v[%d:%d]" % (b, b + n - 1)
def ar(b, n=4): return "a[%d:%d]" % (b, b + n - 1)
def MF(d, a_, b_, c): return "v_mfma_f32_16x16x32_bf16 %s, %s, %s, %s" % (d, a_, b_, c)

class Stamps:
    def __init__(self, on):
        self.on = on; self.names = []
    def idx(self, name):
        if name not in self.names: self.names.append(name)
        assert len(self.names) <= 32, self.names
        return self.names.index(name)
    def rt(self, a, name, op="s_memrealtime"):
        if not self.on: return
        a("%s s[100:101]" % op)
        a("s_waitcnt lgkmcnt(0)")
        a("v_writelane_b32 v3, s100, %d" % self.idx(name))
    def cyc(self, a, name): self.rt(a, name, "s_memtime")
    def flush(self, a):
        if not self.on: return
        a("s_lshl_b32 s3, s2, 2")
        a("s_add_u32 s3, s3, s66")
        a("s_lshl_b32 s3, s3, 7")
        a("s_add_u32 s3, s3, %d" % STAMP)
        a("v_lshlrev_b32 v4, 2, v2")
        a("s_mov_b32 exec_hi, 0")
        a("buffer_store_dword v3, v4, s[12:15], s3 offen")
        a("s_mov_b64 exec, -1")

def xlane_reduce(a, op, x, t):
    a("v_mov_b32 v%d, v%d" % (t, x))
    a("s_nop 1")
    a("v_permlane16_swap_b32 v%d, v%d" % (x, t))
    a("s_nop 1")
    a("%s v%d, v%d, v%d" % (op, x, x, t))
    a("v_mov_b32 v%d, v%d" % (t, x))
    a("s_nop 1")
    a("v_permlane32_swap_b32 v%d, v%d" % (x, t))
    a("s_nop 1")
    a("%s v%d, v%d, v%d" % (op, x, x, t))

def xlane_reduce2(a, op, x, y, t):
    for pl in ("v_permlane16_swap_b32", "v_permlane32_swap_b32"):
        a("v_mov_b32 v%d, v%d" % (t, x))
        a("v_mov_b32 v%d, v%d" % (t + 1, y))
        a("s_nop 0")
        a("%s v%d, v%d" % (pl, x, t))
        a("%s v%d, v%d" % (pl, y, t + 1))
        a("s_nop 0")
        a("%s v%d, v%d, v%d" % (op, x, x, t))
        a("%s v%d, v%d, v%d" % (op, y, y, t + 1))

def code_warm(dst):
    return "buffer_load_dword %s, v1, s[44:47], s48 offen" % dst
def code_srd(a, r, off, uid):
    a("s_getpc_b64 s[%d:%d]" % (r, r + 1))
    a.label("M_pc%d" % uid)
    a("s_sub_u32 s%d, s%d, M_pc%d-M_begin" % (r, r, uid))
    a("s_subb_u32 s%d, s%d, 0" % (r + 1, r + 1))
    a("s_mov_b32 s%d, M_codeend-M_begin" % (r + 2))
    a("s_mov_b32 s%d, 0x00020000" % (r + 3))
    a("s_lshl_b32 s%d, s68, 2" % off)
    a("s_add_u32 s%d, s%d, s66" % (off, off))
    a("s_lshl_b32 s%d, s%d, 10" % (off, off))

def poll(a, voff, soff, imm, vt, name, val=1, srd="s[12:15]"):
    lp = a.newlabel(name + "_poll"); dn = a.newlabel(name + "_pdone")
    a("s_mov_b32 s3, 0x20000")
    a.label(lp)
    a(flag_load(voff, soff, imm, vt, srd))
    a("s_waitcnt vmcnt(0)")
    a("%s vcc, %d, v%d" % ("v_cmp_ne_u32" if val == 1 else "v_cmp_gt_u32", abs(val), vt))
    a("s_sub_u32 s3, s3, 1")
    a("s_cbranch_scc1 %s" % dn)
    a("s_nop 1")
    a("s_cbranch_vccnz %s" % lp)
    a.label(dn)
def flag_load(voff, soff, imm, vt, srd="s[12:15]"):
    return "buffer_load_dword v%d, %s, %s, %s%s offset:%d sc1" % (vt, voff, srd, soff, "" if voff == "off" else " offen", imm)
def sig(off):
    return ["buffer_store_dword v14, v30, s[12:15], s%d offen offset:%d" % (S_MYF, off),
            "buffer_store_dword v14, v29, s[12:15], s%d offen offset:%d sc1" % (S_MYF, off)]
def sig_wave(a, off, wait):
    a("s_lshl_b32 s3, s66, 2")
    a("s_add_u32 s3, s3, s%d" % S_MYF)
    a("s_cmp_eq_u32 s%d, 1" % S_FAST)
    a("s_cselect_b32 s28, s3, %d" % WSZ)
    a("s_cselect_b32 s3, %d, s3" % WSZ)
    a(wait)
    a("s_mov_b64 exec, 1")
    a("buffer_store_dword v14, off, s[12:15], s28 offset:%d" % off)
    a("buffer_store_dword v14, off, s[12:15], s3 offset:%d sc1" % off)
    a("s_mov_b64 exec, -1")
def grp_voff(a, vt, n):
    a("v_min_u32 v%d, %d, v2" % (vt, n - 1))
    a("v_mul_u32_u24 v%d, %d, v%d" % (vt, 16 * FB, vt))

def only_wave(a, w, fn):
    sk = a.newlabel("ow")
    a("s_cmp_lg_u32 s66, %d" % w)
    a("s_cbranch_scc1 %s" % sk)
    fn()
    a.label(sk)

class Sched:
    def __init__(self, mf):
        self.mf = mf
        self.items = {g: [] for g in range(-1, 64)}
        self.tail = {g: [] for g in range(-1, 64)}
        self.free = {g: (2 if (g >= 0 and mf[g] is not None) else 99) for g in range(-1, 64)}
    def vm_ok(self, g, d):
        return not any(x.startswith("buffer_") for k in range(max(-1, g - d), min(63, g + d) + 1) for x in self.items[k] + self.tail[k])
    def at(self, g, s, cost=1, last=False):
        (self.tail if last else self.items)[g].append(s)
        self.free[g] -= cost
        return g
    def first_free(self, g0, cost=1, g1=63):
        g = g0
        while g < g1 and self.free[g] < cost: g += 1
        return g
    def flow(self, stream, g0, g1, vd=0):
        tot = float(sum(c for _, c in stream)); done = 0; pos = g0
        for s, c in stream:
            while pos < g1:
                if self.free[pos] >= c and (not vd or not s.startswith("buffer_") or self.vm_ok(pos, vd)) and (pos - g0) / float(g1 - g0 + 1) + 1e-9 >= done / tot - 0.06: break
                pos += 1
            self.at(pos, s, c)
            done += c
    def seq(self):
        out = []
        for g in range(-1, 64):
            if g >= 0 and self.mf[g] is not None: out.append(self.mf[g])
            out += self.items[g] + self.tail[g]
        return out
    def emit(self, a, vm=None):
        for s in self.seq():
            if vm is not None: s = vm.see(s)
            if s: a(s)
    def overflow(self):
        return sum(-f for f in self.free.values() if f < 0)

class VM:
    def __init__(self): self.ops = []
    def see(self, s):
        if s.startswith("WAITVM"):
            p = s.split(None, 2)
            tags = p[1].split(",")
            idx = [i for i, t in enumerate(self.ops) if t in tags]
            extra = " " + p[2] if len(p) > 2 else ""
            if not idx: return ("s_waitcnt" + extra) if extra else ""
            n = len(self.ops) - 1 - max(idx)
            n = min(n, 63)
            return "s_waitcnt vmcnt(%d)%s" % (n, extra)
        if s.startswith("buffer_") or s.startswith("global_"):
            tag = None
            if "@" in s:
                s, tag = s.split("@"); s = s.strip(); tag = tag.strip()
            self.ops.append(tag)
        return s
```

```python
from common import *
import os
E = os.environ.get("EXP", "").split("+")
WFL = " nt"
AFL = " nt" if "nta" in E else ""
QSCALE = math.log2(math.e) / 16.0
S_HEAD, S_I, S_ROLE, S_QB = 30, 31, 32, 33
V_DMA = 4
V_F = [32, 96]
V_VA, V_VW, V_RW, V_RA, V_RAC = 232, 240, 244, 252, 254
LDS_A = 65536; LDS_END = 163840; LN_LDS = LDS_A + 32768
U_SRD = [80, 84, 88]; U_SRC = [92, 93, 94]; U_DST = [95, 96, 97]; U_STR = [69, 98, 99]
U_VOFF = [25, 26, 27]
def U_L(slot, e):
    if slot < 2: return 208 + 2 * e
    return 16 + 2 * e if e < 4 else 224 + 2 * (e - 4)
SRD_X = 72
DMAFL = ""
WARM = True
HEADST = True

def xn_reg(qb, s):
    if s < 6: return vr(160 + 4 * (2 * s + qb))
    return vr(32 + 4 * (2 * (s - 6) + qb))
QUNIT = [96, 112, 0, 16, 128, 144, 32, 48, 64, 80, 0, 16, 128, 144]

class Items:
    def __init__(self): self.it = []
    def __call__(self, s): self.it.append((s, min(2, 1 + s.count("\n"))))

def pack_decode(a, slot):
    R = U_SRD[slot]; sS = U_SRC[slot]; sD = U_DST[slot]; sT = U_STR[slot]
    u, x, y, t0, t1, t2 = 70, 71, 72, 73, 74, 75
    if slot == 0:
        a("s_lshr_b32 s%d, s49, 2" % x)
        a("s_and_b32 s%d, s49, 3" % y)
        a("s_lshl_b32 s%d, s%d, 18" % (sS, x))
        a("s_lshl_b32 s%d, s%d, 9" % (t0, S_HEAD))
        a("s_add_u32 s%d, s%d, s%d" % (sS, sS, t0))
        a("s_lshl_b32 s%d, s%d, 7" % (t0, y))
        a("s_add_u32 s%d, s%d, s%d" % (sS, sS, t0))
        a("s_mul_i32 s%d, s%d, %d" % (sD, S_HEAD, WBLK))
        a("s_lshl_b32 s%d, s49, 12" % t0)
        a("s_add_u32 s%d, s%d, s%d" % (sD, sD, t0))
        a("s_add_u32 s%d, s%d, %d" % (sD, sD, WQP))
        prim = (S_PWQ, 448 * 8192, 8192)
    elif slot == 1:
        a("s_and_b32 s%d, s49, 7" % x)
        a("s_lshr_b32 s%d, s49, 3" % y)
        a("s_mul_i32 s%d, s%d, %d" % (sD, S_HEAD, WBLK))
        a("s_mul_i32 s%d, s%d, %d" % (t0, x, 32 * 896))
        a("s_add_u32 s%d, s%d, s%d" % (sS, sD, t0))
        a("s_lshl_b32 s%d, s%d, 7" % (t0, y))
        a("s_add_u32 s%d, s%d, s%d" % (sS, sS, t0))
        a("s_xor_b32 s%d, s%d, s%d" % (t0, y, S_HEAD))
        a("s_bitcmp1_b32 s%d, 0\ns_cselect_b32 s%d, 0, 4" % (t0, t0))
        a("s_cmp_eq_u32 s%d, 6\ns_cselect_b32 s%d, 0, s%d" % (y, t0, t0))
        a("s_lshr_b32 s%d, s%d, 1" % (t1, y))
        a("s_add_u32 s%d, s%d, s%d" % (t0, t0, t1))
        a("s_lshl_b32 s%d, s%d, 3" % (t0, t0))
        a("s_add_u32 s%d, s%d, s%d" % (t0, t0, x))
        a("s_lshl_b32 s%d, s%d, 12" % (t0, t0))
        a("s_add_u32 s%d, s%d, s%d" % (sD, sD, t0))
        a("s_add_u32 s%d, s%d, %d" % (sD, sD, WOP))
        prim = (S_PWO, 4096 * 896, 896)
    else:
        a("s_lshl_b32 s%d, s%d, 6" % (t2, S_HEAD))
        a("s_add_u32 s%d, s%d, s49" % (t2, t2))
        a("s_cmp_ge_u32 s%d, 392\ns_cselect_b32 s%d, s%d, s%d\ns_cselect_b32 s%d, s%d, s%d\ns_cselect_b32 s%d, 392, 0\ns_cselect_b32 s%d, 4096, 0"
          % (t2, S_PW1, S_PW3, S_PW1, S_PW1 + 1, S_PW3 + 1, S_PW1 + 1, t0, sD))
        a("s_sub_u32 s%d, s%d, s%d" % (u, t2, t0))
        a("s_lshr_b32 s%d, s%d, 2" % (x, u))
        a("s_mul_i32 s%d, s%d, 9363" % (x, x))
        a("s_lshr_b32 s%d, s%d, 16" % (x, x))
        a("s_mul_i32 s%d, s%d, 28" % (y, x))
        a("s_sub_u32 s%d, s%d, s%d" % (y, u, y))
        a("s_mul_i32 s%d, s%d, %d" % (sS, x, 32 * 3584))
        a("s_lshl_b32 s%d, s%d, 7" % (t0, y))
        a("s_add_u32 s%d, s%d, s%d" % (sS, sS, t0))
        a("s_mul_i32 s%d, s%d, %d" % (t0, y, WBLK // 2))
        a("s_add_u32 s%d, s%d, s%d" % (sD, sD, t0))
        a("s_lshl_b32 s%d, s%d, 13" % (t0, x))
        a("s_add_u32 s%d, s%d, s%d" % (sD, sD, t0))
        a("s_add_u32 s%d, s%d, %d" % (sD, sD, W13P))
        prim = (S_PW1, 448 * 3584, 3584)
    if slot < 2:
        a("s_lshl_b32 s%d, s%d, 3" % (u, S_HEAD))
        a("s_add_u32 s%d, s%d, s49" % (u, u))
        a("s_add_u32 s%d, s%d, %d" % (u, u, (240, 368)[slot] - 56))
    else:
        a("s_sub_u32 s%d, s%d, 784" % (u, t2))
        a("s_max_i32 s%d, s%d, 0" % (u, u))
    a("s_mul_i32 s%d, s%d, 9363" % (x, u))
    a("s_lshr_b32 s%d, s%d, 16" % (x, x))
    a("s_mul_i32 s%d, s%d, 7" % (y, x))
    a("s_sub_u32 s%d, s%d, s%d" % (y, u, y))
    a("s_mul_i32 s%d, s%d, %d" % (t0, x, 32 * 896))
    a("s_lshl_b32 s%d, s%d, 7" % (t1, y))
    a("s_add_u32 s%d, s%d, s%d" % (t0, t0, t1))
    a("s_mul_i32 s%d, s%d, %d" % (t1, y, WBLK))
    a("s_bfe_u32 s%d, s%d, 0x10001" % (y, x))
    a("s_mul_i32 s%d, s%d, %d" % (y, y, 28 * 4096))
    a("s_add_u32 s%d, s%d, s%d" % (t1, t1, y))
    a("s_and_b32 s%d, s%d, 1" % (y, x))
    a("s_lshr_b32 s%d, s%d, 2" % (x, x))
    a("s_lshl_b32 s%d, s%d, 1" % (x, x))
    a("s_add_u32 s%d, s%d, s%d" % (x, x, y))
    a("s_lshl_b32 s%d, s%d, 12" % (x, x))
    a("s_add_u32 s%d, s%d, s%d" % (t1, t1, x))
    a("s_add_u32 s%d, s%d, %d" % (t1, t1, W2P))
    if slot == 1:
        a("s_cmp_ge_u32 s%d, 392\ns_cselect_b32 s%d, 0, s%d\ns_cselect_b32 s%d, %d, s%d" % (u, t0, t0, t1, WSZ, t1))
    a("s_mov_b32 s%d, %d" % (R + 2, prim[1]))
    a("s_mov_b32 s%d, %d" % (sT, prim[2]))
    c = "s_cmp_ge_u32 s49, 56" if slot < 2 else "s_cmp_ge_u32 s%d, 784" % t2
    a(c + "\ns_cselect_b32 s%d, s%d, s%d\ns_cselect_b32 s%d, s%d, s%d" % (R, S_PW2, prim[0], R + 1, S_PW2 + 1, prim[0] + 1))
    a(c + "\ns_cselect_b32 s%d, %d, s%d\ns_cselect_b32 s%d, 896, s%d" % (R + 2, 1792 * 896, R + 2, sT, sT))
    a(c + "\ns_cselect_b32 s%d, s%d, s%d\ns_cselect_b32 s%d, s%d, s%d\ns_cselect_b64 vcc, -1, 0" % (sS, t0, sS, sD, t1, sD))
    a("s_mov_b32 s%d, 0x00020000" % (R + 3))
    a("v_mul_lo_u32 v%d, v28, s%d" % (U_VOFF[slot], sT))
    a("v_cndmask_b32 v24, v30, v29, vcc")
    a("v_add_u32 v%d, v%d, v24" % (U_VOFF[slot], U_VOFF[slot]))

def unit_loads(slot):
    it = [("s_mul_i32 s70, s%d, 13" % U_STR[slot], 1)]
    for e in range(8):
        it.append(("buffer_load_dwordx2 %s, v%d, s[%d:%d], s%d offen nt @U%d" % (vr(U_L(slot, e), 2), U_VOFF[slot], U_SRD[slot], U_SRD[slot] + 3, U_SRC[slot], slot), 2))
        if e < 7: it.append(("s_add_u32 s%d, s%d, s%d" % (U_SRC[slot], U_SRC[slot], 70 if e == 3 else U_STR[slot]), 1))
    return it
def unit_finish(slot, e0=0, e1=4):
    it = [("WAITVM U%d" % slot, 1)] if e0 == 0 else []
    for e in range(e0, e1):
        o = 8 + 4 * (e & 1)
        for d in range(4):
            it.append(("v_perm_b32 v%d, v%d, v%d, s%d" % (o + d, U_L(slot, 2 * d + 1) + (e >> 1), U_L(slot, 2 * d) + (e >> 1), 76 + (e & 1)), 1))
        it.append(("buffer_store_dwordx4 %s, v1, s[12:15], s%d offen offset:%d sc1 @PK" % (vr(o), U_DST[slot], e * 1024), 2))
    return it

S_PDST = 78
NPRE = int(os.environ.get("NPRE", 4))
TOUCH = "touch" in E
TLEAD = int(os.environ.get("TLEAD", 3))
def touch_items(h):
    if not TOUCH: return []
    it = [("s_cmp_eq_u32 s52, %d\ns_cselect_b32 s1, 0, s62" % h, 2), ("buffer_load_dword v7, v6, s[60:63], s1 offen%s" % (" nt" if "tnt" in E else ""), 2)]
    if h == 3: it.append(("v_add_u32 v6, s53, v6", 1))
    return it
def unit_items():
    L = 208
    ld = []
    for e in range(8):
        ld.append([("buffer_load_dwordx2 %s, v%d, s[%d:%d], s%d offen nt" % (vr(L + 2 * e, 2), U_VOFF[1], U_SRD[1], U_SRD[1] + 3, U_SRC[1]), 2)])
        if e == 3: ld[-1] += [("s_mul_i32 s70, s%d, 13" % U_STR[1], 1), ("s_add_u32 s%d, s%d, s70" % (U_SRC[1], U_SRC[1]), 1)]
        elif e < 7: ld[-1].append(("s_add_u32 s%d, s%d, s%d" % (U_SRC[1], U_SRC[1], U_STR[1]), 1))
    perm = [("v_perm_b32 v%d, v%d, v%d, s%d" % (8 + 4 * e + d, L + 2 * (2 * d + 1) + (e >> 1), L + 4 * d + (e >> 1), 76 + (e & 1)), 1)
            for d in range(4) for e in range(4)]
    stv = [("buffer_store_dwordx4 %s, v1, s[12:15], s%d offen offset:%d sc1" % (vr(8 + 4 * e), S_PDST, e * 1024), 2) for e in range(4)]
    rot = [("s_mov_b32 s%d, s%d" % (U_SRD[1] + w, U_SRD[2] + w), 1) for w in range(3)]
    rot += [("s_mov_b32 s%d, s%d" % (U_SRC[1], U_SRC[2]), 1), ("s_mov_b32 s%d, s%d" % (U_STR[1], U_STR[2]), 1), ("v_mov_b32 v%d, v%d" % (U_VOFF[1], U_VOFF[2]), 1)]
    rot += [("s_mov_b32 s%d, 0" % (U_SRD[2] + 2), 1), ("s_mov_b32 s%d, 0" % U_SRC[2], 1), ("s_mov_b32 s%d, 0" % U_STR[2], 1)]
    rd = [("s_mov_b32 s%d, s%d" % (S_PDST, U_DST[0]), 1), ("s_mov_b32 s%d, s%d" % (U_DST[0], U_DST[1]), 1),
          ("s_mov_b32 s%d, s%d" % (U_DST[1], U_DST[2]), 1), ("s_mov_b32 s%d, %d" % (U_DST[2], WSZ), 1)]
    pad = [("", 2)] * 6
    h0 = perm[:8] + ld[0] + perm[8:12] + ld[1] + perm[12:] + ld[2] + ld[3]
    G = int(os.environ.get("STG", 60))
    fx = {h: [(G, stv[h][0], 2)] for h in range(4)}
    fx[3] += [(61 + (k >> 1), x, 1) for k, (x, c) in enumerate(rd)]
    if G < 40: fx[0] = [(58, stv[0][0], 2)]
    return {0: touch_items(0) + h0, 1: touch_items(1) + ld[4] + ld[5] + ld[6] + ld[7] + rot, 2: touch_items(2), 3: touch_items(3)}, fx

def x_own_off(a, vt, t):
    a("v_and_b32 v%d, 7, v0" % vt)
    a("v_mul_u32_u24 v%d, 896, v%d" % (vt, vt))
    a("v_lshrrev_b32 v%d, 5, v0" % t)
    a("v_lshl_add_u32 v%d, v%d, 6, v%d" % (vt, t, vt))
    a("v_bfe_u32 v%d, v0, 3, 2" % t)
    a("v_lshl_add_u32 v%d, v%d, 3, v%d" % (vt, t, vt))
def frag8_voff(a, vt, t):
    a("v_lshrrev_b32 v%d, 3, v0" % vt)
    a("v_lshlrev_b32 v%d, 8, v%d" % (vt, vt))
    a("v_and_b32 v%d, 7, v0" % t)
    a("v_lshl_add_u32 v%d, v%d, 4, v%d" % (vt, t, vt))
def frag8_soff(a, row8, base, sD1, sD2):
    a("s_lshr_b32 s%d, s%d, 1" % (sD1, row8))
    a("s_mul_i32 s%d, s%d, 14336" % (sD1, sD1))
    a("s_and_b32 s3, s%d, 1" % row8)
    a("s_lshl_b32 s3, s3, 7")
    a("s_add_u32 s%d, s%d, s3" % (sD1, sD1))
    a("s_add_u32 s%d, s%d, %d" % (sD1, sD1, base))
    a("s_add_u32 s%d, s%d, 8192" % (sD2, sD1))
    a("s_cmp_eq_u32 s66, 3\ns_cselect_b32 s%d, %d, s%d" % (sD2, WSZ, sD2))

def ln1_items():
    a = Items()
    t = 12; S = [14, 15]; Q = [16, 17]
    a("v_mov_b32 v%d, 0x3f803f80" % t)
    for d in range(4):
        for r in range(2):
            x = 160 + 4 * r + d
            a("v_dot2_f32_bf16 v%d, v%d, v%d, %s" % (S[r], x, t, "v%d" % S[r] if d else "0"))
            a("v_dot2_f32_bf16 v%d, v%d, v%d, %s" % (Q[r], x, x, "v%d" % Q[r] if d else "0"))
    a("v_and_b32 v9, 3, v2")
    a("v_and_b32 v10, 60, v2")
    a("v_and_b32 v11, 1, v9")
    for sh in (1, 2, 4, 8):
        for x in S + Q: a("v_add_f32_dpp v%d, v%d, v%d row_ror:%d row_mask:0xf bank_mask:0xf" % (x, x, x, sh))
    n0 = len(a.it)
    xlane_reduce2(a, "v_add_f32", S[0], S[1], t)
    xlane_reduce2(a, "v_add_f32", Q[0], Q[1], t)
    for r in range(2):
        a("v_mul_f32 v%d, 0x%x, v%d" % (S[r], f2u(1.0 / 448), S[r]))
        a("v_mul_f32 v%d, 0x%x, v%d" % (Q[r], f2u(1.0 / 448), Q[r]))
        a("v_fma_f32 v%d, -v%d, v%d, v%d" % (Q[r], S[r], S[r], Q[r]))
        a("v_max_f32 v%d, 0, v%d" % (Q[r], Q[r]))
        a("v_add_f32 v%d, 0x%x, v%d" % (Q[r], f2u(1e-5), Q[r]))
        a("v_rsq_f32 v%d, v%d" % (Q[r], Q[r]))
    a("v_lshl_add_u32 v10, v11, 1, v10")
    for r in range(2):
        a("v_mul_f32 v%d, 0x%x, v%d" % (Q[r], f2u(QSCALE), Q[r]))
        a("v_mul_f32 v%d, v%d, v%d" % (S[r], S[r], Q[r]))
    n1 = len(a.it)
    a("v_lshrrev_b32 v9, 1, v9")
    a("v_mul_u32_u24 v11, 4682, v10")
    a("v_lshrrev_b32 v11, 16, v11")
    a("v_min_u32 v11, 3, v11")
    a("v_mul_u32_u24 v11, %d, v11" % (8192 - 14 * 144))
    a("v_mul_u32_u24 v10, 144, v10")
    a("v_add_u32 v18, v10, v11")
    a("v_lshl_add_u32 v18, v9, 3, v18")
    a("s_lshl_b32 s3, s66, 5")
    a("s_add_u32 s3, s3, %d" % (LN_LDS + 4096))
    a("v_add_u32 v18, s3, v18")
    for r in range(2):
        for d in range(4):
            x = 160 + 4 * r + d
            a("v_lshlrev_b32 v%d, 16, v%d" % (t, x))
            a("v_and_b32 v%d, 0xffff0000, v%d" % (t + 1, x))
            a("v_fma_f32 v%d, v%d, v%d, -v%d" % (t, t, Q[r], S[r]))
            a("v_fma_f32 v%d, v%d, v%d, -v%d" % (t + 1, t + 1, Q[r], S[r]))
            a("v_cvt_pk_bf16_f32 v%d, v%d, v%d" % (x, t, t + 1))
        a("ds_write_b64 v18, %s offset:%d" % (vr(160 + 4 * r, 2), 16 * r))
        a("ds_write_b64 v18, %s offset:%d" % (vr(162 + 4 * r, 2), 16 * r + 144))
    a("v_lshrrev_b32 v11, 3, v2")
    a("v_add_lshl_u32 v11, v11, v2, 4")
    a("v_add_u32 v11, s29, v11")
    a("v_add_u32 v11, %d, v11" % LN_LDS)
    return a.it[:n0], a.it[n0:n1], a.it[n1:]
def xn_store_items():
    a = Items()
    a("v_lshrrev_b32 v9, 3, v2")
    a("v_lshlrev_b32 v9, 8, v9")
    a("v_and_b32 v10, 7, v2")
    a("v_lshl_add_u32 v9, v10, 4, v9")
    a("v_cmp_gt_u32 vcc, 48, v2")
    a("v_mov_b32 v10, %d" % WSZ)
    a("s_lshr_b32 s36, s2, 1")
    a("s_mul_i32 s36, s36, 14336")
    a("v_cndmask_b32 v10, v10, v9, vcc")
    a("s_and_b32 s3, s2, 1")
    a("s_lshl_b32 s3, s3, 7")
    a("s_add_u32 s36, s36, s3")
    a("s_mul_i32 s3, s66, %d" % (14 * 256))
    a("s_add_u32 s36, s36, s3")
    a("s_add_u32 s36, s36, %d" % XN)
    a("buffer_store_dwordx4 v[160:163], v9, s[12:15], s36 offen sc1")
    a("buffer_store_dwordx4 v[164:167], v10, s[12:15], s36 offen offset:2048 sc1")
    a("s_getreg_b32 s39, hwreg(HW_REG_XCC_ID, 0, 4)")
    a("s_mul_i32 s3, s2, %d" % FB)
    a("s_add_u32 s39, s39, 1")
    a("s_add_u32 s3, s3, %d" % FLG)
    a("v_cmp_gt_u32 vcc, 16, v0")
    a("v_mov_b32 v9, %d" % WSZ)
    a("v_mov_b32 v12, 0")
    a("v_cndmask_b32 v9, v9, v1, vcc")
    a("v_mov_b32 v13, 0")
    a("v_mov_b32 v14, 0")
    a("v_mov_b32 v15, 0")
    a("v_writelane_b32 v12, s39, 0")
    a("buffer_store_dwordx4 v[12:15], v9, s[12:15], s3 offen sc1")
    a("s_lshl_b32 s3, s2, 2")
    a("s_add_u32 s3, s3, %d" % PKA)
    a("buffer_store_dword v13, v31, s[12:15], s3 offen sc1")
    return a.it
def fast_items():
    a = Items()
    a("s_mul_i32 s%d, s2, %d" % (S_MYF, FB))
    a("s_add_u32 s%d, s%d, %d" % (S_MYF, S_MYF, FLG))
    a("s_mul_i32 s3, s67, %d" % FB)
    a("s_add_u32 s3, s3, %d" % FLG)
    a("v_and_b32 v9, 31, v2")
    a("v_mul_u32_u24 v9, %d, v9" % (8 * FB))
    a("buffer_load_dword v28, v9, s[12:15], s3 offen sc1 @XC")
    a("s_and_b32 s%d, s2, 15" % S_GRPF)
    a("s_mul_i32 s%d, s%d, %d" % (S_GRPF, S_GRPF, FB))
    a("s_add_u32 s%d, s%d, %d" % (S_GRPF, S_GRPF, FLG))
    b = Items()
    b("s_getreg_b32 s3, hwreg(HW_REG_XCC_ID, 0, 4)")
    b("WAITVM XC")
    b("s_add_u32 s3, s3, 1")
    b("v_cmp_ne_u32 vcc, s3, v28")
    b("v_mov_b32 v28, %d" % WSZ)
    b("s_nop 0")
    if "slow" in E: b("s_mov_b64 vcc, -1")
    b("s_cmp_eq_u64 vcc, 0\ns_cselect_b32 s%d, 1, 0\ns_cselect_b64 vcc, -1, 0" % S_FAST)
    b("v_cndmask_b32 v30, v28, v31, vcc")
    b("v_cndmask_b32 v29, v31, v28, vcc")
    return a.it, b.it
def misc_items():
    a = Items()
    a("s_bfe_u32 s%d, s68, 0x30001" % S_I)
    a("s_lshr_b32 s%d, s68, 4" % S_ROLE)
    a("s_sub_u32 s3, 15, s%d" % S_I)
    a("s_cmp_eq_u32 s%d, 1\ns_cselect_b32 s%d, s3, s%d" % (S_ROLE, S_QB, S_I))
    a("s_mul_i32 s34, s30, %d" % KHS)
    a("s_add_u32 s34, s34, %d" % KV)
    a("s_mul_i32 s3, s27, %d" % (8 * KTS))
    a("s_add_u32 s34, s34, s3")
    a("s_lshr_b32 s3, s66, 1")
    a("s_mul_i32 s3, s3, %d" % (4 * KTS))
    a("s_add_u32 s34, s34, s3")
    a("s_lshl_b32 s3, s28, 14")
    a("s_add_u32 s34, s34, s3")
    a("v_cmp_eq_u32 vcc, 0, v0")
    a("v_mov_b32 v31, %d" % WSZ)
    a("s_and_b32 s79, s68, 7")
    a("v_cndmask_b32 v31, v31, 0, vcc")
    a("s_add_u32 s79, s79, 18")
    a("s_mov_b32 s%d, %d" % (S_PDST, WSZ))
    a("s_lshl_b32 s79, s79, 18")
    a("s_mov_b32 s76, 0x05040100")
    a("s_mov_b32 s77, 0x07060302")
    a("v_add_u32 v%d, s24, v1" % V_DMA)
    return a.it

def acc(i, j): return ar(4 * (8 * i + j))
def fa(buf, i): return vr(V_F[buf] + 4 * i)
def fw(buf, j): return V_F[buf] + 32 + 4 * j
def reads(t):
    buf = t & 1; r = []; ws = (t & 3) * 16384
    for j in range(8):
        b = fw(buf, j)
        r.append("ds_read_b64_tr_b16 v[%d:%d], v%d offset:%d" % (b, b + 1, V_RW + j, ws))
        r.append("ds_read_b64_tr_b16 v[%d:%d], v%d offset:%d" % (b + 2, b + 3, V_RW + j, ws + 2048))
        r.append("ds_read_b128 %s, v%d offset:%d" % (fa(buf, j), V_RAC + (t & 1), 2048 * j))
    return r
def dmaW(t):
    return (["s_add_u32 m0, s24, %d" % ((t & 3) * 16384)],
            ["buffer_load_dwordx4 v%d, s[8:11], s20 offen offset:%d%s lds @W%d" % (V_VW + j, j * 1024, WFL, t) for j in range(4)],
            ["s_add_u32 s20, s20, 262144"])
def dmaA(j, half):
    post = []
    if half == 1:
        post = ["s_add_u32 s21, s21, 128", "s_add_u32 s22, s22, 32768",
                "s_cmp_eq_u32 s22, %d\ns_cselect_b32 s22, %d, s22" % (LDS_END, LDS_A)]
    return (["s_add_u32 m0, s22, s%d" % (37 if half == 0 else 29)],
            ["buffer_load_dwordx4 v%d, s[4:7], s21 offen offset:%d%s lds @A%d" % (V_VA + 4 * half + k, k * 1024, AFL, j) for k in range(4)], post)
def dmaQ(k):
    return (["s_add_u32 s39, s38, %d" % (k * 16384), "s_add_u32 m0, s24, %d" % (QUNIT[k] * 1024)],
            ["buffer_load_dwordx4 v%d, s[12:15], s39 offen offset:%d lds%s @Q%d" % (V_DMA, j * 1024, DMAFL, k) for j in range(4)], [])
def xn_load(m):
    s_, qb = m >> 1, m & 1
    return ("buffer_load_dwordx4 %s, v%d, s[12:15], s%d offen offset:%d sc1 @X%d" % (xn_reg(qb, s_), 5 if qb else 1, (36, 35, 72, 73)[s_ >> 2], (s_ & 3) * 1024, m), 2)

def half_step(a, t, isK, vm, groups, doR=True, first=False, inject=(), wait=None, pre=(), fixed=(), rng=None):
    buf = t & 1
    mf = []
    for i in range(8):
        for j in (range(8) if i & 1 == 0 or "nochain" in E else range(7, -1, -1)):
            ws = vr(fw(buf, j)); c = acc(i, j); src = "0" if first else c
            mf.append(MF(c, ws, fa(buf, i), src) if isK else MF(c, fa(buf, i), ws, src))
    sc = Sched(mf)
    sc.at(-1, wait if wait else "WAITVM W%d,A%d lgkmcnt(0)" % (t + 1, (t + 1) // 2))
    sc.at(-1, "s_barrier")
    sc.free[63] -= 2
    for s, c in pre: sc.at(2, s, c)
    if doR:
        if (t + 1) & 1 == 0:
            sc.at(0, "s_add_u32 s25, s25, 32768")
            sc.at(1, "s_cmp_eq_u32 s25, %d\ns_cselect_b32 s25, %d, s25" % (LDS_END, LDS_A), 2)
            sc.at(5, "v_add_u32 v%d, s25, v%d" % (V_RAC, V_RA))
            sc.at(6, "v_add_u32 v%d, s25, v%d" % (V_RAC + 1, V_RA + 1))
        for n, s in enumerate(reads(t + 1)): sc.at(3 + 2 * n, s)
    ng = len(groups)
    if ng:
        span = 56 // ng
        step = (span // 4) & ~1
        for gi, (p0, ld, post) in enumerate(groups):
            pos = 4 + ((gi * span) & ~1)
            for s in p0: sc.at(pos - 1, s)
            for n in range(4): sc.at(pos + step * n, ld[n], 2)
            g = pos + step * 3 + 1
            for s in post:
                c = 1 + s.count("\n")
                g = sc.first_free(g, c); sc.at(g, s, c)
    for g, s, c in fixed: sc.at(g, s, c)
    if not rng: rng = (3 if not fixed else max(g for g, _, _ in fixed) + 1, 62)
    if inject: sc.flow(list(inject), rng[0], rng[1], vd=1)
    for s in sc.seq():
        s = vm.see(s)
        if s: a(s)
    return sc.overflow()

def std_groups(t):
    g = []
    if t + 4 <= 31: g.append(dmaW(t + 4))
    if t <= 26: g.append(dmaA((t + 5) // 2, (t + 1) & 1))
    return g

def emit_group(a, vm, g):
    for s in g[0]: a(s)
    a("s_nop 0")
    for s in g[1] + g[2]: a(vm.see(s))

def prologue(a, st, endlabel):
    a.label("M_begin")
    if st.on: a("s_memrealtime s[98:99]")
    a("s_cmp_ge_u32 s2, 256")
    a("s_cbranch_scc1 %s" % endlabel)
    a("""
    s_load_dwordx16 s[40:55], s[0:1], 0
    s_load_dwordx8 s[56:63], s[0:1], 64
    s_load_dwordx2 s[64:65], s[0:1], 96
    v_lshrrev_b32 v5, 6, v0
    v_and_b32 v2, 63, v0
    v_readfirstlane_b32 s66, v5
    v_lshlrev_b32 v1, 4, v2
    s_and_b32 s67, s2, 7
    s_lshr_b32 s68, s2, 3
    s_and_b32 s3, s68, 1
    s_lshl_b32 s30, s67, 1
    s_add_u32 s30, s30, s3
    s_bfe_u32 s28, s68, 0x10001
    s_lshr_b32 s27, s68, 2
    """)
    if st.on: a("v_mov_b32 v3, 0")
    if WARM:
        code_srd(a, 20, 24, 0)
        a("buffer_load_dword v8, v1, s[20:23], s24 offen")
    a("v_lshrrev_b32 v9, 3, v2")
    a("v_lshrrev_b32 v10, 4, v2")
    a("v_and_b32 v11, 7, v2")
    a("s_lshl_b32 s3, s66, 6")
    a("v_add_u32 v9, s3, v9")
    a("v_lshlrev_b32 v9, 11, v9")
    a("v_xor_b32 v12, v11, v10")
    a("v_xor_b32 v13, 4, v12")
    a("v_lshl_add_u32 v12, v12, 4, v9")
    a("v_lshl_add_u32 v13, v13, 4, v9")
    for j in range(8):
        a("v_add_u32 v%d, %d, v%d" % (V_VA + j, j * 8 * 2048 - (j & 3) * 1024, 12 + (j & 1)))
    a("v_lshrrev_b32 v9, 5, v2")
    a("v_and_b32 v11, 31, v2")
    a("s_and_b32 s3, s66, 1")
    a("s_lshl_b32 s3, s3, 3")
    a("s_lshl_b32 s38, s66, 3")
    for j in range(4):
        a("v_add_u32 v12, %d, v9" % (2 * j))
        a("v_and_b32 v13, 3, v12")
        a("v_lshlrev_b32 v13, 1, v13")
        a("v_or_b32 v13, s3, v13")
        a("v_xor_b32 v13, v13, v11")
        a("v_add_u32 v12, s38, v12")
        a("v_lshlrev_b32 v12, 13, v12")
        a("v_lshl_add_u32 v12, v13, 4, v12")
        a("v_subrev_u32 v%d, %d, v12" % (V_VW + j, j * 1024))
    a("""
    s_mov_b32 s20, 0
    s_mov_b32 s21, 0
    s_mov_b32 s22, %d
    s_lshl_b32 s37, s66, 13
    s_add_u32 s29, s37, 4096
    s_lshl_b32 s24, s66, 12
    s_waitcnt lgkmcnt(0)
    s_lshl_b32 s3, s27, 19
    s_add_u32 s4, s42, s3
    s_addc_u32 s5, s43, 0
    s_mov_b32 s6, 524288
    s_mov_b32 s7, 0x00020000
    s_cmp_eq_u32 s28, 0
    s_cselect_b32 s8, s46, s48
    s_cselect_b32 s9, s47, s49
    s_lshl_b32 s3, s30, 9
    s_add_u32 s8, s8, s3
    s_addc_u32 s9, s9, 0
    s_sub_u32 s10, 8388608, s3
    s_mov_b32 s11, 0x00020000
    """ % LDS_A)
    if st.on: a("v_writelane_b32 v3, s98, %d" % st.idx("entry"))
    st.rt(a, "start")
    vm = VM()
    a("s_mov_b32 s72, s40\ns_mov_b32 s73, s41\ns_mov_b32 s74, 1835008\ns_mov_b32 s75, 0x00020000")
    a("s_lshl_b32 s3, s2, 2")
    a("s_add_u32 s3, s3, s66")
    a("s_mul_i32 s3, s3, %d" % (2 * 896))
    a("v_cmp_gt_u32 vcc, 56, v2")
    a("v_mov_b32 v12, 0x7fffffff")
    a("s_nop 0")
    a("v_cndmask_b32 v12, v12, v1, vcc")
    a(vm.see("buffer_load_dwordx4 v[160:163], v12, s[72:75], s3 offen @X"))
    a(vm.see("buffer_load_dwordx4 v[164:167], v12, s[72:75], s3 offen offset:896 @X"))
    for g in (dmaA(0, 0), dmaW(0), dmaA(0, 1)): emit_group(a, vm, g)
    if "pst" in E: st.rt(a, "p16")
    a("s_mov_b32 s12, s64\ns_mov_b32 s13, s65\ns_mov_b32 s14, %d\ns_mov_b32 s15, 0x00020000" % WSZ)
    a("v_and_b32 v11, 15, v2")
    a("v_lshrrev_b32 v12, 2, v11")
    a("v_and_b32 v13, 1, v10")
    a("v_lshl_or_b32 v13, v13, 2, v12")
    a("v_lshl_add_u32 v12, v10, 3, v12")
    a("v_lshlrev_b32 v12, 9, v12")
    a("v_and_b32 v14, 3, v11")
    a("v_lshl_add_u32 v12, v14, 3, v12")
    a("s_and_b32 s3, s66, 1")
    a("s_lshl_b32 s3, s3, 8")
    a("v_add_u32 v12, s3, v12")
    for nb in range(8):
        a("v_xor_b32 v14, %d, v13" % nb)
        a("v_lshl_add_u32 v%d, v14, 5, v12" % (V_RW + nb))
    a("v_lshrrev_b32 v12, 1, v11")
    a("v_xor_b32 v12, v12, v10")
    a("v_lshlrev_b32 v12, 4, v12")
    a("v_lshl_add_u32 v12, v11, 7, v12")
    a("s_lshr_b32 s3, s66, 1")
    a("s_lshl_b32 s3, s3, 14")
    a("v_add_u32 v%d, s3, v12" % V_RA)
    a("v_xor_b32 v%d, 64, v%d" % (V_RA + 1, V_RA))
    a("s_mov_b32 s25, %d" % LDS_A)
    a("v_add_u32 v%d, s25, v%d" % (V_RAC, V_RA))
    a("v_add_u32 v%d, s25, v%d" % (V_RAC + 1, V_RA + 1))
    a("v_lshlrev_b32 v28, 2, v10")
    a("v_lshlrev_b32 v29, 3, v11")
    a("v_and_b32 v12, 3, v11")
    a("v_lshlrev_b32 v12, 5, v12")
    a("v_lshrrev_b32 v11, 2, v11")
    a("v_lshl_add_u32 v30, v11, 3, v12")
    a("s_mov_b32 s0, s49")
    a("s_lshr_b32 s49, s68, 1")
    a("s_lshl_b32 s49, s49, 2")
    a("s_add_u32 s49, s49, s66")
    a("s_mov_b32 s16, s62\ns_mov_b32 s17, s63\ns_mov_b32 s18, 256\ns_mov_b32 s19, 0x00020000\ns_mov_b32 s64, s60\ns_mov_b32 s65, s61")
    if TOUCH:
        a("s_bitcmp1_b32 s68, 4")
        a("s_cselect_b32 s60, s48, s46")
        a("s_cselect_b32 s61, s0, s47")
        a("s_and_b32 s36, s68, 15")
        a("s_lshl_b32 s36, s36, 16")
        a("s_lshl_b32 s39, s67, 10")
        a("s_add_u32 s36, s36, s39")
        a("s_add_u32 s36, s36, %d" % (TLEAD * 128 * 8192))
        a("s_lshl_b32 s39, s68, 1")
        a("s_add_u32 s39, s39, s66")
        a("s_lshl_b32 s39, s39, 16")
        a("s_add_u32 s39, s39, %d" % (TLEAD * 256))
        a("v_lshrrev_b32 v6, 3, v2")
        a("v_lshlrev_b32 v6, 13, v6")
        a("v_and_b32 v7, 7, v2")
        a("v_lshl_add_u32 v6, v7, 7, v6")
        a("v_lshrrev_b32 v7, 1, v2")
        a("v_lshlrev_b32 v7, 11, v7")
        a("v_and_b32 v12, 1, v2")
        a("v_lshl_add_u32 v7, v12, 7, v7")
        a("s_mov_b32 s53, %d" % (128 * 8192))
        a("s_mov_b32 s62, 8388608")
        a("s_cmp_lt_u32 s66, 2")
        a("s_cselect_b32 s60, s42, s60")
        a("s_cselect_b32 s61, s43, s61")
        a("s_cselect_b32 s62, 4194304, s62")
        a("s_cselect_b32 s36, s39, s36")
        a("s_cselect_b32 s53, 256, s53")
        a("s_cselect_b64 vcc, -1, 0")
        a("s_mov_b32 s63, 0x00020000")
        a("v_cndmask_b32 v6, v6, v7, vcc")
        a("v_add_u32 v6, s36, v6")
        a("s_and_b32 s52, s68, 3")
        a("s_cmp_eq_u32 s66, 3")
        a("s_cselect_b32 s52, 7, s52")
        if "tw" in E: a("s_cmp_lt_u32 s66, 2\ns_cselect_b32 s52, 7, s52")
    pack_decode(a, 0)
    code_srd(a, 44, 48, 1)
    if "pst" in E: st.rt(a, "p28")
    for g in (dmaW(1), dmaA(1, 0), dmaA(1, 1), dmaW(2))[:NPRE]: emit_group(a, vm, g)
    if "pst" in E: st.rt(a, "p36")
    a(vm.see("WAITVM W0,A0"))
    a("s_barrier")
    for s in reads(0): a(s)
    st.rt(a, "gemm_start")
    return vm

def kv_off(isK, n):
    x, y = n >> 2, n & 3
    if isK: return 4 * (8 * x + 2 * y), 4 * (8 * x + 2 * y + 1), (x >> 1) * KTS + (x & 1) * 8192 + y * 1024
    ip, j = x >> 1, (x & 1) * 4 + y
    return 4 * (8 * (2 * ip) + j), 4 * (8 * (2 * ip + 1) + j), ip * KTS + j * 1024
def kv_hold(n): return 208 + 4 * (n % 12)
def kv_store(isK, n):
    off = kv_off(isK, n)[2]
    it = [("s_add_u32 s90, s91, %d" % off, 1)] if (n & 3) == 0 else []
    return it + [("buffer_store_dwordx4 %s, v1, s[12:15], s90 offen offset:%d sc1 @KV%d" % (vr(kv_hold(n)), (n & 3) * 1024, 1 if n < 16 else 2), 2)]
def kv_conv(isK, n, r):
    t0, t1, off = kv_off(isK, n)
    it = [("v_accvgpr_read_b32 v%d, a%d" % (r + q, t0 + q), 1) for q in range(4)]
    it += [("v_accvgpr_read_b32 v%d, a%d" % (r + 4 + q, t1 + q), 1) for q in range(4)]
    it += [("v_cvt_pk_bf16_f32 v%d, v%d, v%d" % (kv_hold(n) + q, r + 2 * q, r + 2 * q + 1), 1) for q in range(4)]
    return it

def gemm(a, st, vm0, stubs, qproj):
    import copy
    a("s_cmp_eq_u32 s28, 0")
    a("s_cbranch_scc0 G_V")
    l0, l1, l2 = ln1_items()
    d1 = Items(); pack_decode(d1, 1)
    d2 = Items(); pack_decode(d2, 2)
    ui, ufx = unit_items()
    cnt = {h: 9 + sum(1 for x in ui[h] if x[0].startswith("buffer_") or x[0].startswith("global_")) for h in range(4)}
    vmq = None
    for isK in (True, False):
        nm = "G_K" if isK else "G_V"
        a.label(nm)
        ov = []
        vm = copy.deepcopy(vm0)
        ul = unit_loads(0)
        hinj = {0: l0 + misc_items(), 1: d1.it + l1[:8], 2: l1[8:] + d2.it[:28], 3: l2, 4: xn_store_items() + d2.it[28:40], 5: d2.it[40:] + ul}
        for t in hinj: hinj[t] = touch_items(t & 3) + hinj[t]
        for t in range(0, 6):
            fx = [(0, "ds_read_b128 v[160:163], v11", 1), (0, "ds_read_b128 v[164:167], v11 offset:1152", 1), (12, "s_waitcnt lgkmcnt(5)", 1)] if t == 4 else []
            if "hst" in E and t > 0: st.rt(a, "t%d" % t)
            if NPRE == 4: hg = {0: [dmaW(3), dmaA(2, 0), dmaA(2, 1)], 1: [dmaW(4), dmaW(5), dmaA(3, 0)]}
            else: hg = {0: [dmaW(2), dmaW(3), dmaA(2, 0)], 1: [dmaA(2, 1), dmaW(4), dmaW(5)], 2: [dmaA(3, 0), dmaA(3, 1), dmaW(6)]}
            ov.append(half_step(a, t, isK, vm, hg.get(t) or std_groups(t), first=(t == 0), inject=hinj[t], fixed=fx))
        if HEADST: st.rt(a, "t6")
        for k in range(3):
            if "nold" in E and k: a("s_mov_b32 s%d, 0\ns_mov_b32 s%d, 0\ns_mov_b32 s%d, 0" % (U_SRD[k] + 2, U_SRC[k], U_STR[k]))
            if "nost" in E: a("s_mov_b32 s%d, %d" % (U_DST[k], WSZ))
        a("s_mov_b32 s35, 5")
        a("s_branch %s_mid" % nm)
        a(".p2align 4")
        a.label(nm + "_loop")
        vm = VM()
        for t in range(20, 24):
            h = t & 3
            if h == 2: a.label(nm + "_mid")
            pre = [("s_cmp_eq_u32 s20, s79\ns_cbranch_scc1 %s_sig%d\n%s_sigback%d:" % (nm, h, nm, h), 2)]
            stubs.append("%s_sig%d:\nv_mov_b32 v24, 1\nbuffer_atomic_add v24, v31, s[16:19], 0 offen sc1\ns_branch %s_sigback%d" % (nm, h, nm, h))
            ov.append(half_step(a, t, isK, vm, std_groups(t), wait="s_waitcnt vmcnt(%d) lgkmcnt(0)" % (cnt[(h - 1) & 3] + cnt[(h - 2) & 3]), pre=pre, inject=ui[h], fixed=ufx[h], rng=(3, 56)))
        if st.on and "itst" in E:
            for k in range(1, 7): st.idx("it%d" % k)
            a("s_memrealtime s[100:101]")
            a("s_sub_u32 s3, %d, s35" % (st.idx("it1") + 6))
            a("s_waitcnt lgkmcnt(0)")
            a("s_mov_b32 m0, s3")
            a("v_writelane_b32 v3, s100, m0")
        a("s_sub_u32 s35, s35, 1")
        a("s_cmp_lg_u32 s35, 0")
        a("s_cbranch_scc1 %s_loop" % nm)
        st.rt(a, "t24")
        sp = Asm(); sp.uid = 1000 + (0 if isK else 50)
        sp.label(nm + "_spin"); poll(sp, "off", "0", 0, 9, nm + "cnt", val=256, srd="s[16:19]"); sp("s_branch %s_spinback" % nm)
        stubs.append(sp.text())
        su = Items()
        su("s_mul_i32 s38, s%d, %d" % (S_HEAD, WBLK))
        su("s_add_u32 s38, s38, %d" % WQP)
        su("s_sub_u32 s36, 3, s66")
        su("s_cmp_lt_u32 s68, 14\ns_cselect_b32 s26, s36, s66")
        su("s_lshl_b32 s36, s%d, 2" % S_QB)
        su("s_add_u32 s26, s26, s36")
        su("s_mul_i32 s36, s26, %d" % (2 * 14336))
        su("s_add_u32 s36, s36, %d" % XN)
        su("s_add_u32 s35, s36, 4096")
        su("s_add_u32 s72, s36, 8192")
        su("s_add_u32 s73, s36, 12288")
        su("v_add_u32 v5, 14336, v1")
        su("s_and_b32 s3, s66, 1")
        su("s_lshl_b32 s3, s3, %d" % (12 if isK else 13))
        su("s_add_u32 s91, s34, s3")
        k31 = []
        for n in range(6): k31 += kv_conv(isK, n, 8) + (kv_store(isK, n >> 1) if n & 1 else [])
        xl = [xn_load(m) for m in range(28)]
        touch = [("s_and_b32 s3, s49, 7", 1), ("s_lshl_b32 s3, s3, 13", 1), ("s_add_u32 s3, s3, s38", 1), ("s_add_u32 s3, s3, %d" % (10 * 16384), 1),
                 ("v_lshlrev_b32 v24, 3, v1", 1), ("buffer_load_dword v24, v24, s[12:15], s3 offen", 2)]
        def mix(x, y):
            out = []; k = 0
            for n, it in enumerate(x):
                out.append(it)
                while k < len(y) and (k + 1) * len(x) <= (n + 1) * len(y): out.append(y[k]); k += 1
            return out
        tinj = {24: [(code_warm("v24"), 2)] + su.it + [("buffer_load_dword v9, off, s[16:19], 0 sc1 @cnt", 2)],
                26: [("", 2)] * 10 + [("WAITVM cnt", 1), ("v_cmp_gt_u32 vcc, 0x100, v9", 1), ("s_nop 0", 1), ("s_nop 0", 1),
                     ("s_cbranch_vccnz %s_spin\n%s_spinback:" % (nm, nm), 1)] + fast_items()[0],
                28: xl[0:10], 29: xl[10:12] + fast_items()[1] + touch, 31: k31}
        tfix = {30: [(8 * i + 8 + (6 if i < 6 else 4), xl[12 + i][0], 2) for i in range(7)],
                31: [(19, xl[19][0], 2)]}
        tq = {27: [dmaQ(0), dmaQ(1)], 28: [dmaQ(2)], 29: [dmaQ(3), dmaQ(4)], 30: [dmaQ(5), dmaQ(6)], 31: [dmaQ(7), dmaQ(8)]}
        for t in range(24, 32):
            if "tst" in E and t > 24: st.rt(a, "t%d" % t)
            ov.append(half_step(a, t, isK, vm, std_groups(t) + tq.get(t, []), doR=(t < 31), inject=tinj.get(t, []), fixed=tfix.get(t, [])))
        if isK: print("gemm overflow", ov)
        st.rt(a, "gemm_end")
        for n in range(6, 16):
            for s_, c_ in kv_conv(isK, n, 96 + 8 * (n & 3)) + (kv_store(isK, {8: 3, 13: 4}[n]) if n in (8, 13) else []): a(vm.see(s_))
        qproj(a, st, vm, isK, stubs)
        if isK: a("s_branch G_done")
        vmq = vm
    a.label("G_done")
    return vmq
```

```python
from common import *
from gemm import x_own_off, frag8_voff, frag8_soff
from attn import *
import os

def publish(a, off):
    sk = a.newlabel("pub")
    a("s_cmp_eq_u32 s%d, 1" % S_FAST)
    a("s_waitcnt vmcnt(0)")
    a("s_barrier")
    a("s_cbranch_scc1 %s" % sk)
    a("buffer_wbl2 sc1")
    a("s_waitcnt vmcnt(0)")
    a.label(sk)
    for x in sig(off): a(x)
def acquire(a, n, off, name):
    sk = a.newlabel("acq")
    grp_voff(a, 12, n)
    poll(a, "v12", "s%d" % S_GRPF, off, 13, name)
    a("s_cmp_eq_u32 s%d, 1" % S_FAST)
    a("s_cbranch_scc1 %s" % sk)
    a("buffer_inv sc1")
    a("s_waitcnt vmcnt(0)")
    a.label(sk)

KD = int(os.environ.get('KD', 6)); NPRE_ = int(os.environ.get('NPRE_', 1)); GLN = eval(os.environ.get('GLN', '[3]'))
W3E = int(os.environ.get('W3E', 1))
NWO = 2; WR1 = (8, 9, 10)[:int(os.environ.get('WR1', 0))]
R1_X = 16; R1_X0 = 112; R1_ACC = 32; R1_L = 128
XLDS = 131072 + 1024
def r1_x_items():
    a = Items()
    a("s_lshl_b32 s25, s%d, 4" % S_R)
    a("s_add_u32 s25, s25, s%d" % S_M)
    for x in ("s_mov_b32 s8, s%d" % S_PX, "s_mov_b32 s9, s%d" % (S_PX + 1), "s_mov_b32 s10, %d" % (2048 * 896), "s_mov_b32 s11, 0x00020000"): a(x)
    a("v_cmp_gt_u32 vcc, 56, v2")
    a("v_mov_b32 v10, 0x7fffffff")
    a("s_lshl_b32 s3, s25, 2")
    a("s_add_u32 s3, s3, s66")
    a("v_cndmask_b32 v10, v10, v1, vcc")
    a("s_mul_i32 s3, s3, %d" % (2 * 896))
    a("buffer_load_dwordx4 %s, v10, s[8:11], s3 offen @X" % vr(R1_X0))
    a("buffer_load_dwordx4 %s, v10, s[8:11], s3 offen offset:896 @X" % vr(R1_X0 + 4))
    b = Items()
    b("v_and_b32 v10, 60, v2")
    b("v_and_b32 v11, 1, v2")
    b("v_lshl_add_u32 v10, v11, 1, v10")
    b("v_bfe_u32 v11, v2, 1, 1")
    b("v_mul_u32_u24 v10, 144, v10")
    b("v_lshl_add_u32 v10, v11, 3, v10")
    b("s_lshl_b32 s3, s66, 5")
    b("s_add_u32 s3, s3, %d" % XLDS)
    b("v_add_u32 v10, s3, v10")
    b("WAITVM X")
    for r in range(2):
        b("ds_write_b64 v10, %s offset:%d" % (vr(R1_X0 + 4 * r, 2), 16 * r))
        b("ds_write_b64 v10, %s offset:%d" % (vr(R1_X0 + 4 * r + 2, 2), 16 * r + 144))
    c = Items()
    c("v_lshrrev_b32 v10, 3, v0")
    c("v_add_lshl_u32 v10, v10, v0, 4")
    c("s_cmp_eq_u32 s66, 3\ns_cselect_b32 s3, %d, 0\ns_cselect_b32 s87, %d, 0" % (24 * 144, 8 * 144))
    c("v_add_u32 v10, %d, v10" % XLDS)
    c("v_add_u32 v11, s87, v10")
    c("v_add_u32 v10, s3, v10")
    c("ds_read_b128 %s, v10" % vr(R1_X0))
    c("ds_read_b128 %s, v11 offset:%d" % (vr(R1_X0 + 4), 24 * 144))
    return a.it, b.it, c.it
def r1_pre(a):
    frag8_voff(a, 9, 11)
    a("s_lshr_b32 s38, s25, 1")
    a("s_mul_i32 s38, s38, %d" % B16S)
    a("s_and_b32 s3, s25, 1")
    a("s_lshl_b32 s3, s3, 7")
    a("s_add_u32 s38, s38, s3")
    a("s_add_u32 s39, s38, %d" % (24 * 256))
    a("s_cmp_eq_u32 s66, 3\ns_cselect_b32 s38, s39, s38\ns_cselect_b32 s3, 2048, 0")
    a("s_add_u32 s39, s39, s3")
    a("s_mov_b32 s%d, %d" % (S_B6, ALT))
    a("s_cmp_eq_u32 s%d, 1\ns_cselect_b32 s%d, %d, s%d" % (S_FAST, S_B6, PO + 2 * POH, S_B6))
    a("s_sub_u32 s3, 23, s%d" % S_R)
    a("s_cmp_ge_u32 s%d, 8\ns_cselect_b32 s28, s3, s%d" % (S_R, S_R))
    a("s_mul_i32 s28, s28, %d" % (16 * FB))
    a("s_add_u32 s28, s28, %d" % FLG)
    a("v_min_u32 v12, 15, v2")
    a("v_mul_u32_u24 v12, %d, v12" % FB)

def r1_unpack_x(a):
    for d in range(8):
        a("v_lshlrev_b32 v%d, 16, v%d" % (R1_ACC + 2 * d, R1_X0 + d))
        a("v_and_b32 v%d, 0xffff0000, v%d" % (R1_ACC + 2 * d + 1, R1_X0 + d))
def oproj(a, st, stubs):
    vm = VM(); vm.ops = ["T1"] * 8 + ["T2"] * 8
    chk = "v_and_b32 v124, v124, v125\nv_and_b32 v126, v126, v127\nv_and_b32 v124, v124, v126\nv_cmp_ne_u32 vcc, 1, v124\n"
    a("s_waitcnt vmcnt(8)")
    a(chk)
    p4_wbase(a)
    a("s_cbranch_vccnz OP_pk")
    a.label("OP_pkback")
    stubs.append("OP_pk:\ns_mov_b32 s3, 0x20000\ns_mov_b32 s29, %d\nOP_pkl:\nbuffer_load_dwordx4 v[124:127], v1, s[12:15], s29 offen sc1\ns_waitcnt vmcnt(0)\n" % PKA
                 + chk + "s_sub_u32 s3, s3, 1\ns_cbranch_scc1 OP_pkback\ns_nop 1\ns_cbranch_vccnz OP_pkl\ns_branch OP_pkback")
    xa, xb, xc = r1_x_items()
    i0 = Items()
    ex_base(i0, 80)
    i0("s_add_u32 s81, s80, %d" % (32 * 17408))
    i0("s_sub_u32 s3, s80, %d" % (32 * 17408))
    i0("s_bitcmp1_b32 s%d, 0\ns_cselect_b32 s81, s3, s81\ns_cselect_b32 s3, 2048, 0" % S_HEAD)
    i0("s_mul_i32 s%d, s67, %d" % (S_ST, POH))
    i0("s_add_u32 s%d, s%d, s3" % (S_ST, S_ST))
    i0("s_mul_i32 s3, s%d, %d" % (S_RW, 2 * B16S))
    i0("s_add_u32 s%d, s%d, s3" % (S_ST, S_ST))
    i0("s_add_u32 s%d, s%d, %d" % (S_ST, S_ST, PO + 12288))
    i0("v_add_u32 v%d, %d, v1" % (V_T2, B16S))
    i2 = Items()
    i2("s_xor_b32 s29, s2, 8")
    i2("s_mul_i32 s29, s29, %d" % FB)
    i2("s_lshl_b32 s3, s66, 2")
    i2("s_add_u32 s29, s29, s3")
    i2("s_add_u32 s29, s29, %d" % FLG)
    i2("s_add_u32 s3, s3, s%d" % S_MYF)
    i2("s_cmp_eq_u32 s%d, 1\ns_cselect_b32 s34, s3, %d" % (S_FAST, WSZ))
    i2("s_cmp_eq_u32 s%d, 1\ns_cselect_b32 s35, %d, s3" % (S_FAST, WSZ))
    i2("v_cmp_eq_u32 vcc, 0, v2")
    i2("v_mov_b32 v28, %d" % WSZ)
    i2("s_nop 0")
    i2("v_cndmask_b32 v28, v28, 0, vcc")
    cost2 = lambda it: [(x, 2 if x.startswith("buffer_") else c) for x, c in it]
    W = p4_wload_items
    wl = [x for t in range(NWO) for x in W(t)]
    for k in range(7):
        p = (k + 1) & 1
        mf = []
        for s_ in range(8):
            for e in range(4):
                for qb in range(2):
                    d = vr(op_acc(p, e, qb))
                    mf.append(MF(d, Fr(4 * s_ + e), vr(V_CTX + 4 * (8 * qb + s_)), "0" if s_ == 0 else d))
        sc = Sched(mf)
        ring_fixed(sc, p, vm="WAITVM T%d" % (k + 1) if k < 6 else "WAITVM S3", tag=" @T%d" % (k + 3), dma=(k < KD), nxt=(k < 6),
                   kpos=(5, 13, 21, 29) if k == 0 else (5, 9, 13, 17) if k < 4 else (25, 33, 41, 43), vpos=(49, 53, 57, 61))
        if 4 <= k <= 6:
            m = k - 4
            sc.at(1, "WAITVM L%d" % m); sc.at(1, "v_cmp_gt_u32 vcc, %d, v13" % (m + 1))
            sc.at(3, "s_cmp_eq_u32 s%d, 1\ns_cbranch_scc0 OP_x%d\ns_cbranch_vccnz OP_x%d\nOP_xb%d:" % (S_FAST, m, m, m), 3)
            sp = Asm(); sp.uid = 8000 + 10 * m
            sp.label("OP_x%d" % m); sp("s_mov_b32 s87, s3")
            poll(sp, "off", "s29", O_X, 13, "opx", val=-(m + 1))
            sp("s_mov_b32 s3, s87\ns_cmp_eq_u32 s%d, 1\ns_cbranch_scc1 OP_xb%d\nbuffer_inv sc1\ns_waitcnt vmcnt(0)\ns_branch OP_xb%d" % (S_FAST, m, m))
            stubs.append(sp.text())
            for n, g in enumerate((5, 9, 13, 17)):
                sc.at(g, "buffer_load_dwordx4 %s, v1, s[12:15], s81 offen offset:%d sc1 @D%d" % (vr(192 + 16 * (k & 1) + 4 * n), n * 1024, m), 2)
            if k < 6: sc.at(23, "s_add_u32 s81, s81, 4096")
        if 3 <= k <= 5: sc.at(19, flag_load("off", "s29", O_X, 13) + " @L%d" % (k - 3), 2)
        if 2 <= k <= 4:
            m = k - 2
            g = 11
            sc.at(g - 1, "v_mov_b32 v15, %d" % (m + 1))
            sc.at(g, "WAITVM S%d" % m)
            sc.at(g, "s_cmp_eq_u32 s%d, 1\ns_cbranch_scc0 OP_w%d\nOP_wb%d:" % (S_FAST, m, m), 2)
            stubs.append("OP_w%d:\nbuffer_wbl2 sc1\ns_waitcnt vmcnt(0)\ns_branch OP_wb%d" % (m, m))
            sc.at(g, "buffer_store_dword v15, v28, s[12:15], s34 offen offset:%d" % O_X)
            sc.at(g, "buffer_store_dword v15, v28, s[12:15], s35 offen offset:%d sc1" % O_X)
        for g in ((3, 9, 17, 25, 33, 37, 41, 45) if k == 0 else ()):
            if not wl: break
            if not wl[0][0].startswith("buffer_"): sc.at(g - 2, wl.pop(0)[0])
            sc.at(g, wl.pop(0)[0], 2)
        if k:
            fl = op_flush_items(1 - p, k - 1)
            sp_ = {1: [21, 29, 37, 45], 2: [25, 33, 41, 51], 3: [25, 33, 41, 51], 4: [29, 45, 55, 63]}.get(k, [21, 37, 51, 63])
            if k >= 5:
                for g in range(4, 64, 2 if k < KD else 4): sc.free[g] += 1
            for x, g in zip([x for x, c in fl if x.startswith("buffer_")], sp_): sc.at(g, x, 2, last=True)
            g = 1
            for x, c in fl:
                if x.startswith("buffer_"): sp_.pop(0)
                else: g = sc.at(sc.first_free(max(g, 3 if x.startswith("v_") else 2), 1, sp_[0]), x)
        if k == 0: sc.flow(i0.it + i2.it, 1, 62)
        if k == 1: sc.flow(xa[:-2], 46, 63)
        if k == 2: sc.at(1, xa[-2][0], 2)
        if k == 2: sc.at(59, xa[-1][0], 2)
        if W3E and k == 6:
            sc.at(49, "buffer_store_dword v14, v31, s[12:15], s%d offen offset:%d sc1" % (S_MYF, O_PO1), 2)
        print("oproj overflow", k, sc.overflow())
        sc.emit(a, vm)
        if "ost" in E: st.rt(a, "o%d" % (k + 1))
    a("s_nop 5")
    for x, c in op_flush_items(1, 6): a(vm.see(x))
    st.rt(a, "oproj_end")
    for x, c in xb: a(vm.see(x))
    r1_pre(a)
    pre = [c for c in range(KD - 4, 4) if c < 3][:NPRE_]
    for c in pre: g_tile(a, c)
    a("s_waitcnt vmcnt(%d) lgkmcnt(0)" % (8 * len(pre)))
    a("s_barrier")
    a("buffer_store_dword v14, v31, s[12:15], s%d offen offset:%d sc1" % (S_MYF, O_PO))
    st.rt(a, "po_pub")
    for x, c in xc: a(x)
    for c in range(KD - 4, 4):
        if c not in pre and c not in GLN: g_tile(a, c)
    a("s_waitcnt lgkmcnt(0)")
    r1_unpack_x(a)
    if W3E:
        a("s_cmp_eq_u32 s66, 3")
        a("s_cselect_b32 s3, 4, 0")
        a("s_add_u32 s28, s28, s3")

def r1_main(a, lds_off):
    vm = VM()
    a("s_add_u32 s34, s38, %d" % PO)
    a("s_add_u32 s35, s39, %d" % PO)
    for h in range(8):
        for n in range(2):
            a(vm.see("buffer_load_dwordx4 %s, v9, s[12:15], s%d offen sc1 @P%d" % (vr(128 + 8 * h + 4 * n), 34 + n, 2 * h + n)))
            if h < 7: a("s_add_u32 s%d, s%d, %d" % (34 + n, 34 + n, POH))
    a("s_add_u32 s38, s38, s%d" % S_B6)
    a("s_add_u32 s39, s39, s%d" % S_B6)
    a("s_add_u32 s38, s38, %d" % (4 * POH))
    a("s_add_u32 s39, s39, %d" % (4 * POH))
    a("s_cmp_eq_u32 s66, 3")
    a("s_cselect_b32 s39, %d, s39" % WSZ)
    for h in range(16):
        a(vm.see("WAITVM P%d" % h))
        for d in range(4):
            r = 128 + 4 * h + d
            a("v_lshlrev_b32 v%d, 16, v%d" % (48 + 2 * d, r))
            a("v_and_b32 v%d, 0xffff0000, v%d" % (49 + 2 * d, r))
        for d in range(4):
            o = R1_ACC + 8 * (h & 1) + 2 * d
            a("v_pk_add_f32 %s, %s, %s" % (vr(o, 2), vr(o, 2), vr(48 + 2 * d, 2)))
    a("s_cbranch_scc0 R1_nomerge")
    for d in range(4):
        o = R1_ACC + 2 * d
        a("v_pk_add_f32 %s, %s, %s" % (vr(o, 2), vr(o, 2), vr(o + 8, 2)))
        a("v_mov_b64 %s, 0" % vr(o + 8, 2))
    a.label("R1_nomerge")
    for c in GLN: g_tile(a, c)
    vS, vQ, t = 56, 57, 58
    for d in range(8):
        a("v_cvt_pk_bf16_f32 v%d, v%d, v%d" % (R1_X + d, R1_ACC + 2 * d, R1_ACC + 2 * d + 1))
    a("buffer_store_dwordx4 %s, v9, s[12:15], s38 offen" % vr(R1_X))
    a("buffer_store_dwordx4 %s, v9, s[12:15], s39 offen" % vr(R1_X + 4))
    a("v_mov_b32 v%d, 0x3f803f80" % t)
    a("v_mov_b32 v%d, 0" % vS)
    a("v_mov_b32 v%d, 0" % vQ)
    for d in range(8):
        a("v_dot2_f32_bf16 v%d, v%d, v%d, v%d" % (vS, R1_X + d, t, vS))
        a("v_dot2_f32_bf16 v%d, v%d, v%d, v%d" % (vQ, R1_X + d, R1_X + d, vQ))
    a("v_and_b32 v10, 7, v2")
    a("v_lshlrev_b32 v10, 3, v10")
    a("s_lshl_b32 s3, s66, 6")
    a("v_add_u32 v10, %d, v10" % lds_off)
    a("v_add_u32 v11, s3, v10")
    a("v_add_f32_dpp v%d, v%d, v%d row_ror:8 row_mask:0xf bank_mask:0xf" % (vS, vS, vS))
    a("v_add_f32_dpp v%d, v%d, v%d row_ror:8 row_mask:0xf bank_mask:0xf" % (vQ, vQ, vQ))
    xlane_reduce2(a, "v_add_f32", vS, vQ, t)
    a("ds_write_b64 v11, %s" % vr(vS, 2))
    a("s_waitcnt lgkmcnt(0)")
    a("s_barrier")
    for w in range(4): a("ds_read_b64 %s, v10 offset:%d" % (vr(60 + 2 * w, 2), 64 * w))
    for d in range(8):
        a("v_lshlrev_b32 v%d, 16, v%d" % (R1_ACC + 2 * d, R1_X + d))
        a("v_and_b32 v%d, 0xffff0000, v%d" % (R1_ACC + 2 * d + 1, R1_X + d))
    a("s_add_u32 s38, s38, %d" % POH)
    a("s_cmp_eq_u32 s66, 3")
    a("s_cselect_b32 s36, 0, %d" % POH)
    a("s_add_u32 s39, s39, s36")
    a("s_waitcnt lgkmcnt(0)")
    for k, x in enumerate((vS, vQ)):
        a("v_add_f32 v%d, v%d, v%d" % (x, 60 + k, 62 + k))
        a("v_add_f32 v%d, v%d, v%d" % (64 + k, 64 + k, 66 + k))
        a("v_add_f32 v%d, v%d, v%d" % (x, x, 64 + k))
    a("v_mul_f32 v%d, 0x%x, v%d" % (vS, f2u(1.0 / 448), vS))
    a("v_mul_f32 v%d, 0x%x, v%d" % (vQ, f2u(1.0 / 448), vQ))
    a("v_fma_f32 v%d, -v%d, v%d, v%d" % (vQ, vS, vS, vQ))
    a("v_max_f32 v%d, 0, v%d" % (vQ, vQ))
    a("v_add_f32 v%d, 0x%x, v%d" % (vQ, f2u(1e-5), vQ))
    a("v_rsq_f32 v%d, v%d" % (vQ, vQ))
    a("s_nop 0")
    a("v_mul_f32 v%d, v%d, v%d" % (vS, vS, vQ))
    for d in range(8):
        a("v_fma_f32 v%d, v%d, v%d, -v%d" % (R1_ACC + 2 * d, R1_ACC + 2 * d, vQ, vS))
        a("v_fma_f32 v%d, v%d, v%d, -v%d" % (R1_ACC + 2 * d + 1, R1_ACC + 2 * d + 1, vQ, vS))
        a("v_cvt_pk_bf16_f32 v%d, v%d, v%d" % (72 + d, R1_ACC + 2 * d, R1_ACC + 2 * d + 1))
        if d == 3: a("buffer_store_dwordx4 %s, v9, s[12:15], s38 offen" % vr(72))
    a("buffer_store_dwordx4 %s, v9, s[12:15], s39 offen" % vr(76))

def hn_reg(qb, s): return ar(8 * s + 4 * qb)
def p3_pre(a):
    a("s_lshl_b32 s25, s%d, 2" % S_R)
    a("s_add_u32 s25, s25, s66")
    a("s_mul_i32 s25, s25, %d" % (2 * B16S))
    a("s_add_u32 s25, s25, s%d" % S_B6)
    a("s_cmp_ge_u32 s%d, 7" % S_M)
    a("s_cselect_b32 s3, %d, 0" % (POH - 14 * 1024))
    a("s_add_u32 s96, s25, s3")
    a("s_lshl_b32 s3, s%d, 11" % S_M)
    a("s_add_u32 s96, s96, s3")
    a("s_add_u32 s97, s96, %d" % (2 * POH))
    a("s_add_u32 s25, s25, %d" % (5 * POH))
    for k in range(1, 4): a("s_add_u32 s%d, s25, %d" % (34 + k, 4096 * k))
    a("v_add_u32 v11, %d, v1" % B16S)
    a("s_mov_b32 s98, 0x%x" % f2u(-math.log2(math.e)))
def hn_load(s, qb):
    return "buffer_load_dwordx4 %s, v%d, s[12:15], s%d offen offset:%d sc1 @H%d" % (hn_reg(qb, s), 11 if qb else 1, (25, 35, 36, 37)[s >> 2], (s & 3) * 1024, s)

def swiglu_items(cb, qb, pk=False):
    G = [Ot(4 * cb + e, qb) for e in range(4)]; U = [Ot(8 + 4 * cb + e, qb) for e in range(4)]
    it = []
    if pk:
        two = lambda r: vr(r, 2)
        for e in range(4):
            for j in (0, 2): it.append(("v_pk_mul_f32 %s, %s, %s" % (two(U[e] + j), two(G[e] + j), two(U[e] + j)), 1))
        for e in range(4):
            for j in (0, 2): it.append(("v_pk_mul_f32 %s, %s, s[98:99] op_sel_hi:[1,0]" % (two(G[e] + j), two(G[e] + j)), 1))
        for e in range(4):
            for j in range(4): it.append(("v_exp_f32 v%d, v%d" % (G[e] + j, G[e] + j), 2))
        for e in range(4):
            for j in (0, 2): it.append(("v_pk_add_f32 %s, %s, 1.0 op_sel_hi:[1,0]" % (two(G[e] + j), two(G[e] + j)), 1))
        for e in range(4):
            for j in range(4): it.append(("v_rcp_f32 v%d, v%d" % (G[e] + j, G[e] + j), 2))
        for e in range(4):
            for j in (0, 2): it.append(("v_pk_mul_f32 %s, %s, %s" % (two(U[e] + j), two(G[e] + j), two(U[e] + j)), 1))
    else:
        el = [(G[e] + j, U[e] + j) for e in range(4) for j in range(4)]
        st_ = [lambda g, u: ("v_mul_f32 v%d, v%d, v%d" % (u, g, u), 1), lambda g, u: ("v_mul_f32 v%d, s98, v%d" % (g, g), 1),
               lambda g, u: ("v_exp_f32 v%d, v%d" % (g, g), 2), lambda g, u: ("v_add_f32 v%d, 1.0, v%d" % (g, g), 1),
               lambda g, u: ("v_rcp_f32 v%d, v%d" % (g, g), 2), lambda g, u: ("v_mul_f32 v%d, v%d, v%d" % (u, g, u), 1)]
        off = (0, 0, 1, 2, 3, 4)
        for k in range(16 + 4):
            for stg in (2, 0, 1, 4, 3, 5):
                n = k - off[stg]
                if 0 <= n < 16: it.append(st_[stg](*el[n]))
    for sp in range(2):
        for d in range(4):
            j = 2 * sp + (d >> 1); e = 2 * (d & 1)
            it.append(("v_cvt_pk_bf16_f32 v%d, v%d, v%d" % (G[sp] + d, U[e] + j, U[e + 1] + j), 1))
        it.append(("buffer_store_dwordx4 %s, v%d, s[12:15], s%d offen offset:%d @AS%d" % (vr(G[sp]), 11 if qb else 1, 96 + cb, sp * 1024, cb), 2))
    return it

P4_ACC = 192
def p4_act(t, rb):
    if t < 4: return ar(48 + 16 * t + 4 * rb)
    if t < 7: return ar(192 + 16 * (t - 4) + 4 * rb)
    if t < 11: return vr(128 + 16 * (t - 7) + 4 * rb)
    if t == 11: return ar(240 + 4 * rb)
    return ar(48 + 16 * (t - 12) + 4 * rb)
def p4_w(t, e):
    if t < 5: return ar(112 + 16 * t + 4 * e)
    if t < 11: return vr(32 + 16 * (t - 5) + 4 * e)
    return ar(16 * (t - 11) + 4 * e)
def p4_wbase(a):
    a("s_min_u32 s86, s%d, 13" % S_M)
    a("s_lshr_b32 s86, s86, 1")
    a("s_mul_i32 s86, s86, %d" % WBLK)
    a("s_mul_i32 s3, s66, %d" % (7 * 4096))
    a("s_add_u32 s86, s86, s3")
    a("s_add_u32 s86, s86, %d" % W2P)
def p4_wload_items(t):
    it = [("s_add_u32 s89, s86, %d" % ((t if t < 7 else t + 21) * 4096), 1)]
    return it + [("buffer_load_dwordx4 %s, v1, s[12:15], s89 offen offset:%d sc1 @W%d" % (p4_w(t, e), e * 1024, t), 2) for e in range(4)]

def g_tile(a, c):
    a("s_sub_u32 s3, s%d, %d" % (S_G3, 3 - c))
    a("v_readlane_b32 s%d, v%d, s3" % (S_KO, V_TABK))
    a("v_readlane_b32 s%d, v%d, s3" % (S_VO, V_TABV))
    a("s_add_u32 m0, s24, %d" % (((2 + c) & 3) * 16384))
    a("s_nop 3")
    for j in range(4): a("buffer_load_dwordx4 v%d, s[12:15], s%d offen offset:%d lds" % (V_DMA, S_KO, j * 1024))
    a("s_add_u32 m0, s24, %d" % (((2 + c) & 3) * 16384 + 65536))
    a("s_nop 0")
    for j in range(4): a("buffer_load_dwordx4 v%d, s[12:15], s%d offen offset:%d lds" % (V_DMA, S_VO, j * 1024))

def gateup(a, st, vm, stubs, hloads):
    sw = swiglu_items(0, 0) + swiglu_items(0, 1)
    lq = [hn_load(s_, qb) for s_ in range(5, 14) for qb in range(2)] + [x for t in range(NWO, 11) if t not in WR1 for x, c_ in p4_wload_items(t)] + hloads
    lq += [None] + [x for t in (11, 12, 13) for x, c_ in p4_wload_items(t)]
    pos = 0
    for c in range(7):
        mf = []
        for n in range(32):
            q = 4 * c + (n >> 3); cb, s = divmod(q, 14)
            for qb in range(2):
                d = vr(Ot(8 * ((n >> 2) & 1) + 4 * cb + (n & 3), qb))
                mf.append(MF(d, Fr(n), hn_reg(qb, s), "0" if s == 0 else d))
        sc = Sched(mf)
        ring_fixed(sc, c & 1, vm="WAITVM T%d" % (c + 1) if c < 6 else "WAITVM AS0", dma=(1 <= c < 4), nxt=(c < 6), tag=" @T%d" % (c + 3), paired=(c >= 4), kpos=(5, 13, 21, 29), vpos=(49, 53, 57, 61))
        for k in range(4):
            q = 4 * c + k
            if q < 14: sc.at(16 * k - 1, "WAITVM H%d" % q, last=True)
        if c == 6:
            sc.at(48, "s_cmp_eq_u32 s%d, 1\ns_cbranch_scc0 GU_wb\nGU_wbback:" % S_FAST, 2)
            stubs.append("GU_wb:\nbuffer_wbl2 sc1\ns_waitcnt vmcnt(0)\ns_branch GU_wbback")
            for k in range(2): sc.at(49 + k, sig(O_A0)[k], 2)
        slots = {0: range(1, 62, 4), 1: (1, 9, 17, 25, 33, 37, 41, 45), 2: (1, 9, 17, 25, 33, 37, 41, 45), 3: (1, 9, 17, 25, 33, 37, 41, 45),
                 4: range(1, 62, 4), 5: range(1, 62, 4), 6: (53, 57, 61, 63)}[c]
        for g in slots:
            if not lq or (lq[0] is None and c < 5): break
            if lq[0] is None: lq.pop(0)
            if c == 5 and len(lq) <= 5: break
            if not lq[0].startswith("buffer_"): sc.at(max(g - 1, 0) if c < 4 else g + 0, lq.pop(0))
            sc.at(g, lq.pop(0), 2)
        if c >= 3:
            g = 36 if c == 3 else 0
            lim = 63 if c < 6 else 44
            if c >= 4:
                for gg in range(7, lim, 8): sc.free[gg] += 1
                for gg in range(0, lim, 4): sc.free[gg] += 2 if (c < 6 or gg % 8 == 4) else 0
            while pos < len(sw):
                x, cost = sw[pos]
                g2 = sc.first_free(g, cost, lim)
                if g2 >= lim and c < 6: break
                sc.at(g2, x, cost); g = g2; pos += 1
        print("gateup overflow", c, sc.overflow(), pos, len(sw))
        sc.emit(a, vm)
        if "gst" in E and c < 6: st.rt(a, "g%d" % (c + 1))
    assert not lq, lq

def _unused(): pass
def p4_hloads(a):
    a("s_and_b32 s3, s%d, 1" % S_M)
    a("s_lshl_b32 s3, s3, 2")
    a("s_lshl_b32 s87, s%d, 3" % S_R)
    a("s_add_u32 s87, s87, s3")
    a("s_add_u32 s88, s87, s66")
    a("s_mul_i32 s39, s88, %d" % B16S)
    a("s_lshr_b32 s3, s%d, 1" % S_M)
    a("s_lshl_b32 s3, s3, 11")
    a("s_add_u32 s39, s39, s3")
    a("s_add_u32 s39, s39, s%d" % S_B6)
    a("s_add_u32 s39, s39, %d" % (4 * POH))
    a("v_lshrrev_b32 v9, 5, v2")
    a("v_lshlrev_b32 v9, 10, v9")
    a("v_bfe_u32 v10, v2, 4, 1")
    a("v_lshl_add_u32 v9, v10, 3, v9")
    a("v_and_b32 v10, 15, v2")
    a("v_lshl_add_u32 v9, v10, 4, v9")
    return ["buffer_load_dwordx2 %s, v9, s[12:15], s39 offen offset:%d sc1" % (vr(16 + 2 * gp, 2), gp * 256) for gp in range(4)]
def p4_pre(a):
    a("s_mul_i32 s90, s87, %d" % B16S)
    a("s_lshr_b32 s3, s66, 1")
    a("s_mul_i32 s3, s3, %d" % POH)
    a("s_add_u32 s90, s90, s3")
    a("s_and_b32 s3, s66, 1")
    a("s_mul_i32 s3, s3, 7168")
    a("s_add_u32 s90, s90, s3")
    a("s_add_u32 s90, s90, s%d" % S_B6)
    for rb in range(4):
        a("s_add_u32 s3, s66, %d" % rb)
        a("s_and_b32 s3, s3, 3")
        if rb: a("s_mul_i32 s%d, s3, 12288" % (69 + rb))
        a("s_mul_i32 s3, s3, %d" % B16S)
        a("v_add_u32 v%d, s3, v1" % (24 + rb))
    a("s_mov_b32 s8, s%d\ns_mov_b32 s9, s%d\ns_mov_b32 s10, %d\ns_mov_b32 s11, 0x00020000" % (S_POUT, S_POUT + 1, 2048 * 896))
    a("s_mul_i32 s38, s88, %d" % (16 * 896))
    a("s_lshr_b32 s3, s%d, 1" % S_M)
    a("s_lshl_b32 s3, s3, 7")
    a("s_add_u32 s38, s38, s3")
    a("v_and_b32 v10, 15, v2")
    a("v_mul_u32_u24 v10, 896, v10")
    a("v_lshrrev_b32 v15, 4, v2")
    a("v_lshl_add_u32 v10, v15, 5, v10")
    a("s_mul_i32 s3, s66, 12288")
    a("v_add_u32 v15, s3, v1")
def act_load_items(t):
    k = t % 7
    it = [("s_add_u32 s91, s90, %d" % ((k & 4) * 1024 + (2 * POH if t >= 7 else 0)), 1)] if k in (0, 4) else []
    return it + [("buffer_load_dwordx4 %s, v%d, s[12:15], s91 offen offset:%d sc1 @A%d" % (p4_act(t, rb), 24 + rb, (k & 3) * 1024, t), 2) for rb in range(4)]
def p4_step(a, vm, t, fill=(), per=4):
    order = [(e, rb) for e in range(4) for rb in range(4)] if t < 13 else [(e, rb) for rb in (1, 2, 3, 0) for e in range(4)]
    fill = list(fill)
    a(vm.see("WAITVM A%d" % t))
    for n, (e, rb) in enumerate(order):
        d = vr(P4_ACC + 4 * (4 * rb + e))
        a(MF(d, p4_w(t, e), p4_act(t, rb), "0" if t == 0 else d))
        if n % per == 0 and fill:
            a(vm.see(fill.pop(0)))
        elif n % per == per - 1 and fill and not fill[0].startswith("buffer_load_dwordx4"): a(vm.see(fill.pop(0)))
    for x in fill: a(vm.see(x))
def check_flag(a, stubs, off, name):
    a("v_cmp_ne_u32 vcc, 1, v13")
    a("s_cmp_eq_u32 s%d, 1" % S_FAST)
    a("s_cbranch_scc0 %s_slow" % name)
    a("s_cbranch_vccnz %s_slow" % name)
    a.label(name + "_back")
    sp = Asm(); sp.uid = 7000 + off
    sp.label(name + "_slow"); acquire(sp, 14, off, name); sp("s_branch %s_back" % name)
    stubs.append(sp.text())
def p4_main(a, st, vm, stubs):
    grp_voff(a, 12, 14)
    sw = swiglu_items(1, 0, True)
    for n, (x, c) in enumerate(sw):
        if n == 24: a(vm.see(flag_load("v12", "s%d" % S_GRPF, O_A0, 13) + " @F0"))
        a(vm.see(x))
    a(vm.see("WAITVM F0"))
    check_flag(a, stubs, O_A0, "P4a0")
    st.rt(a, "a0_ready")
    LEAD = int(os.environ.get("LEAD", 4))
    ld = [x for t in range(LEAD) for x, c in act_load_items(t)]
    N1_ = int(os.environ.get("P4A", 6)); N2_ = len(ld) - N1_
    k = 0
    for n, (x, c) in enumerate(swiglu_items(1, 1, True)):
        if n % 10 == 0 and k < N1_: a(vm.see(ld.pop(0))); k += 1
        a(vm.see(x))
    for k in range(N2_): a(vm.see(ld.pop(0)))
    a("s_cmp_eq_u32 s%d, 1" % S_FAST)
    a(vm.see("WAITVM AS1"))
    a("s_barrier")
    a("s_cbranch_scc0 P4_wb")
    a.label("P4_wbback")
    stubs.append("P4_wb:\nbuffer_wbl2 sc1\ns_waitcnt vmcnt(0)\ns_branch P4_wbback")
    for x in sig(O_A): a(vm.see(x))
    st.rt(a, "act_pub")
    hu = []
    for j in range(4):
        for e in range(4):
            src = 16 + 2 * j + (e >> 1)
            hu.append(("v_and_b32 v%d, 0xffff0000, v%d" if e & 1 else "v_lshlrev_b32 v%d, 16, v%d") % (32 + 4 * e + j, src))
    for t in range(12):
        f = [x for x, c in act_load_items(t + LEAD)] if t + LEAD < 14 else []
        if f and not f[0].startswith("buffer_"): a(f.pop(0))
        if t == 5 - LEAD: f.insert(1, flag_load("v12", "s%d" % S_GRPF, O_A, 13) + " @F1")
        if t == 7 - LEAD:
            a(vm.see("WAITVM F1"))
            check_flag(a, stubs, O_A, "P4a1")
            st.rt(a, "act_ready")
        if t == 11: p4_step(a, vm, t, ["v_add_u32 v%d, s%d, v1" % (24 + rb, 69 + rb) for rb in range(1, 4)] + hu, per=1)
        else: p4_step(a, vm, t, f)
    a(vm.see("WAITVM A13"))
    wr = []
    n = 0
    for rb in (1, 2, 3, 0):
        for e in range(4):
            for t in (12, 13):
                d = vr(P4_ACC + 4 * (4 * rb + e))
                a(MF(d, p4_w(t, e), p4_act(t, rb), d))
                n += 1
                if wr and wr[0][0] + 7 <= n and n % 2 == 0: a(wr.pop(0)[1])
            if rb: wr.append((n, "ds_write_b128 v%d, %s offset:%d" % (24 + rb, vr(P4_ACC + 4 * (4 * rb + e)), (rb - 1) * 4096 + e * 1024)))
    st.rt(a, "p4_mfma")
    for n_, x in wr: a(x)
    a("s_nop 7")
    for k in range(0, 16, 2): a("v_pk_add_f32 %s, %s, %s" % (vr(32 + k, 2), vr(32 + k, 2), vr(P4_ACC + k, 2)))
    a("s_waitcnt lgkmcnt(0)")
    a("s_barrier")
    for w in range(3):
        for e in range(4):
            a("ds_read_b128 %s, v15 offset:%d" % (vr(48 + 16 * w + 4 * e), w * 4096 + e * 1024))
    for w in range(3):
        a("s_waitcnt lgkmcnt(%d)" % (8 - 4 * w))
        for k in range(0, 16, 2): a("v_pk_add_f32 %s, %s, %s" % (vr(32 + k, 2), vr(32 + k, 2), vr(48 + 16 * w + k, 2)))
    for j in range(4):
        a("v_cvt_pk_bf16_f32 v%d, v%d, v%d" % (112 + 2 * j, 32 + j, 36 + j))
        a("v_cvt_pk_bf16_f32 v%d, v%d, v%d" % (113 + 2 * j, 40 + j, 44 + j))
        if j == 1: a("buffer_store_dwordx4 %s, v10, s[8:11], s38 offen" % vr(112))
    a("buffer_store_dwordx4 %s, v10, s[8:11], s38 offen offset:16" % vr(116))

def tail(a, st, stubs):
    oproj(a, st, stubs)
    poll(a, "v12", "s28", O_PO, 13, "fpo")
    st.rt(a, "po_ready")
    r1_main(a, 131072)
    st.rt(a, "r1_done")
    publish(a, O_H)
    a("s_cmp_ge_u32 s%d, 14" % S_M)
    a("s_cbranch_scc1 M_fin")
    first_reads(a, V_RDK, 0)
    p3_pre(a)
    hl = p4_hloads(a)
    p4_pre(a)
    acquire(a, 16, O_H, "fh")
    st.rt(a, "h_ready")
    vm = VM()
    for s_ in range(5):
        for qb in range(2): a(vm.see(hn_load(s_, qb)))
    gateup(a, st, vm, stubs, hl)
    st.rt(a, "p3_end")
    a("s_nop 7")
    p4_main(a, st, vm, stubs)
```

```python
import sys
from common import *
import gemm, attn, tail
def mega(stamp=False):
    a = Asm(); st = Stamps(stamp); stubs = []
    vm = gemm.prologue(a, st, "M_end")
    gemm.gemm(a, st, vm, stubs, attn.qproj)
    attn.attention(a, st, stubs)
    tail.tail(a, st, stubs)
    a.label("M_fin")
    a("s_waitcnt vmcnt(0) lgkmcnt(0)")
    st.rt(a, "end")
    st.flush(a)
    a.label("M_end")
    a("s_endpgm")
    for s in stubs: a(s)
    attn.subroutines(a)
    a.label("M_codeend")
    return a.text(), st.names
def write(path, stamp):
    body, names = mega(stamp)
    import os, re
    E = os.environ.get("EXP", "").split("+")
    if "plainkv" in E: body = re.sub(r"(s90 offen offset:\d+) sc1", r"\1", body)
    if "plainq" in E: body = re.sub(r"(buffer_store_dwordx4 \S+ v1, s\[12:15\], s25 offen( offset:\d+)?) sc1", r"\1", body)
    if "plainh" in E: body = re.sub(r"(buffer_store_dwordx4 \S+ v9, s\[12:15\], s3[89] offen) sc1", r"\1", body)
    if "plainf" in E: body = re.sub(r"(buffer_store_dword v\d+, v31, s\[12:15\], s2[58] offen( offset:\d+)?) sc1", r"\1", body)
    if "ntw2" in E: body = re.sub(r"(s89 offen offset:\d+) sc1", r"\1 sc1 nt", body)
    if "ntg" in E:
        i = body.index("OP_pkback:"); j = body.index("M_fin:")
        body = body[:i] + body[i:j].replace(" lds", " nt lds") + body[j:]
    if "ntr1" in E:
        n = [0]
        def f(m):
            r = int(m.group(2)); h = (r - 128) // 4 % 16
            return m.group(1) + (" sc1 nt" if h < 10 else " sc1")
        body = re.sub(r"(buffer_load_dwordx4 v\[(\d+):\d+\], v9, s\[12:15\], s3[89] offen) sc1", f, body)
    if "noact" in E: body = re.sub(r"(s91 offen offset:\d+) sc1", r"\1", body)
    hdr = "".join(open("cdna_kernels/" + NAME + ".s.ref").readlines()[:14])
    kn = NAME + "_kernel"
    out = hdr + "; @launch grid=(256,1,1) block=(256,1,1) lds=163840\n.amdgcn_target \"amdgcn-amd-amdhsa--gfx950\"\n"
    out += kernel_header(kn) + body + kernel_desc(kn, 512, 102, 256)
    open(path, "w").write(out)
    if stamp: open(path.replace(".s", ".names"), "w").write(" ".join(names))
if __name__ == "__main__":
    tag = sys.argv[1] if len(sys.argv) > 1 else "m"
    write("exp/%s.s" % tag, False)
    write("exp/%s_st.s" % tag, True)
```

```python
from common import *
import os
from gemm import E, S_HEAD, S_I, S_ROLE, S_QB, V_DMA, xn_reg, QUNIT, dmaQ, DMAFL, Items, kv_store, kv_conv, xn_load

V_RDK, V_RDV, V_TABK, V_TABV = 5, 6, 7, 8
V_T = 9
V_NEGM, V_L, V_TS = 16, 18, 20
V_R = 26
V_T2 = 22
V_S = [32, 48]; V_P = [64, 72]; V_E = 80; V_C = 96; V_X = 112
V_O = 128
V_CTX = 32; A_SP = 64; A_Q = 128; A_F = 192
S_G3, S_END, S_WQ, S_KO, S_VO = 20, 21, 22, 23, 27
S_RW = 26
S_RET, S_RET2 = 82, 84
S_MASK = 70
S_N1, S_N2, S_ST, S_THR = 34, 35, 36, 37
S_R, S_M = 78, 79
NEG = 0xff3fffff
XA = 36
EXP = set()

def St(buf, kb, qb): return V_S[buf] + 4 * (2 * kb + qb)
def Ct(kb, qb): return V_C + 4 * (2 * kb + qb)
def Ot(db, qb): return V_O + 4 * (2 * db + qb)
def Fr(n): return ar(A_F + 4 * (n % 16))
def Qf(qb, s): return ar(A_Q + 4 * (8 * qb + s))

def FrV(n): return vr(96 + 4 * (n % 16))
def frag_reads(sc, rdK, rdV, rdN, bar, Fr=Fr, paired=False):
    out = [0, 0, 0, 0, 1, 1, 1, 1]
    def wait_for(grp):
        if grp not in out: return None
        idx = max(i for i, x in enumerate(out) if x == grp)
        n = len(out) - 1 - idx
        del out[:idx + 1]
        return n
    for gam in range(8):
        need = (gam < 4 and rdK) or (gam >= 4 and rdV)
        n = wait_for(gam) if need else None
        if gam == 0 and not rdK:
            n = 0; del out[:]
        lg = "" if n is None else "lgkmcnt(%d)" % n
        if gam == 6 and bar is not None:
            if bar or lg: sc.at(47, ((bar if bar else "s_waitcnt") + " " + lg).strip(), last=True)
            sc.at(47, "s_barrier", last=True)
        elif n is not None:
            sc.at(8 * gam - 1, "s_waitcnt " + lg, last=True)
        t = gam + 2
        src = rdK if t < 4 else rdV if t < 8 else rdN
        if not src: continue
        for k in range(4):
            sc.at(8 * gam + (4 * (k >> 1) if paired else 2 * k), "ds_read_b128 %s, v%d offset:%d" % (Fr(4 * t + k), src[0], src[1] + (4 * (t % 4) + k) * 1024))
            out.append(t if t < 8 else 100 + t)
    sc.free[63] -= 1

def ring_fixed(sc, p, useK=True, useV=True, vm=12, loop=None, dma=True, nxt=True, tag="", paired=False, kpos=(21, 25, 27, 29), vpos=(53, 57, 59, 61)):
    frag_reads(sc, (V_RDK, p * 16384) if useK else None, (V_RDV, p * 16384) if useV else None,
               (V_RDK, (1 - p) * 16384) if nxt else None, vm if isinstance(vm, str) else "s_waitcnt vmcnt(%d)" % vm, paired=paired)
    nomf0 = sc.mf[0] is None; nomf1 = sc.mf[63] is None
    if p == 1:
        if dma or not paired: sc.at(0, "s_xor_b32 s%d, s%d, 0x8000" % (S_WQ, S_WQ))
        sc.at(31 if paired else 30, "v_xor_b32 v%d, 0x8000, v%d" % (V_RDK, V_RDK))
        sc.at(55 if paired else 48, "v_xor_b32 v%d, 0x8000, v%d" % (V_RDV, V_RDV))
    if dma:
        sc.at(0 if p == 0 else 2, "v_readlane_b32 s%d, v%d, s%d" % (S_KO, V_TABK, S_G3))
        sc.at(kpos[0] - 1, "s_add_u32 m0, s%d, %d" % (S_WQ, (1 - p) * 16384))
        if nomf0: sc.at(kpos[0] - 1, "s_nop 3")
        for k, g in enumerate(kpos):
            sc.at(g, "buffer_load_dwordx4 v%d, s[12:15], s%d offen offset:%d lds%s" % (V_DMA, S_KO, k * 1024, DMAFL + tag), 2)
        sc.at(36, "v_readlane_b32 s%d, v%d, s%d" % (S_VO, V_TABV, S_G3))
        sc.at(vpos[0] - 1 if vpos[0] > 49 else 46, "s_add_u32 m0, s%d, %d" % (S_WQ, (1 - p) * 16384 + 65536))
        if nomf1: sc.at(vpos[0] - 1, "s_nop 3")
        for k, g in enumerate(vpos):
            sc.at(g, "buffer_load_dwordx4 v%d, s[12:15], s%d offen offset:%d lds%s" % (V_DMA, S_VO, k * 1024, DMAFL + tag), 2)
    if not paired: sc.at(60, "s_add_u32 s%d, s%d, 1" % (S_G3, S_G3))
    if loop:
        sc.at(62, "s_cmp_eq_u32 s%d, s%d" % (S_G3, S_END), last=True)
        sc.at(63, loop, last=True)

def ring_restart(a):
    a("v_readlane_b32 s%d, v%d, 2" % (S_KO, V_TABK))
    a("v_readlane_b32 s%d, v%d, 2" % (S_VO, V_TABV))
    a("s_mov_b32 m0, s24")
    a("v_add_u32 v%d, 0x8000, v1" % V_RDK)
    a("v_add_u32 v%d, 0x18000, v1" % V_RDV)
    a("s_mov_b32 s%d, s24" % S_WQ)
    a("s_mov_b32 s%d, 3" % S_G3)
    for j in range(4): a("buffer_load_dwordx4 v%d, s[12:15], s%d offen offset:%d lds%s" % (V_DMA, S_KO, j * 1024, DMAFL))
    a("s_add_u32 m0, s24, 65536")
    a("s_nop 0")
    for j in range(4): a("buffer_load_dwordx4 v%d, s[12:15], s%d offen offset:%d lds%s" % (V_DMA, S_VO, j * 1024, DMAFL))

def first_reads(a, vreg, imm, Fr=Fr):
    for n in range(8): a("ds_read_b128 %s, v%d offset:%d" % (Fr(n), vreg, imm + n * 1024))

def sm_ops(buf, kb):
    ex, pl = [], []
    for qb in range(2):
        s = St(buf, kb, qb); e = V_E + 8 * kb + 4 * qb; ts = V_TS + qb; P = V_P[buf] + 4 * qb + 2 * kb
        ex += ["v_exp_f32 v%d, v%d" % (e + j, s + j) for j in range(4)]
        b = 4 * qb
        if kb == 0: pl.append(("v_add_f32 v%d, v%d, v%d" % (ts, e, e + 1), b + 1))
        else: pl += [("v_add_f32 v%d, v%d, v%d" % (ts, ts, e), b), ("v_add_f32 v%d, v%d, v%d" % (ts, ts, e + 1), b + 1)]
        pl.append(("v_cvt_pk_bf16_f32 v%d, v%d, v%d" % (P, e, e + 1), b + 1))
        pl += [("v_add_f32 v%d, v%d, v%d" % (ts, ts, e + 2), b + 2), ("v_add_f32 v%d, v%d, v%d" % (ts, ts, e + 3), b + 3)]
        pl.append(("v_cvt_pk_bf16_f32 v%d, v%d, v%d" % (P + 1, e + 2, e + 3), b + 3))
    return ex, pl
def sm_serial(buf, kb):
    ex, pl = sm_ops(buf, kb)
    return ex + [s for s, _ in pl]
def place_sm(sc, buf, kb, exgaps, g0, g1, pre=(), post=()):
    ex, pl = sm_ops(buf, kb)
    for s, g in zip(ex, exgaps):
        if g is not None: sc.at(g, s, 2)
    exgaps = [-1 if g is None else g for g in exgaps]
    g = g0
    for s in pre: g = sc.at(sc.first_free(g, 1, g1), s)
    for s, d in pl: g = sc.at(sc.first_free(max(g, exgaps[d] + 1), 1, g1), s)
    for s in post: g = sc.at(sc.first_free(g, 1, g1), s)

def qk_mfmas(buf):
    mf = []
    for kb in range(2):
        order = [(s, 0) for s in range(4)] + [(s, 1) for s in range(8)] + [(s, 0) for s in range(4, 8)]
        if "nochain" in E: order = [(s, qb) for s in range(8) for qb in range(2)]
        for s, qb in order:
            d = vr(St(buf, kb, qb))
            mf.append(MF(d, Fr(8 * kb + s), Qf(qb, s), vr(Ct(kb, qb)) if s == 0 else d))
    return mf
def pv_mfmas(buf):
    return [MF(vr(Ot(db, qb)), Fr(16 + db), vr(V_P[buf] + 4 * qb), vr(Ot(db, qb))) for db in range(16) for qb in ((0, 1) if db & 1 == 0 or "nochain" in E else (1, 0))]
CHECK = ["v_max_f32 v%d, v%d, v%d" % (V_T, V_TS, V_TS + 1), "v_cmp_lt_f32 vcc, s%d, v%d" % (S_THR, V_T)]
LACC = ["v_add_f32 v%d, v%d, v%d" % (V_L + qb, V_L + qb, V_TS + qb) for qb in range(2)]

def body_full(a, p, loop, stubs):
    sc = Sched(qk_mfmas(p) + pv_mfmas(1 - p))
    sp4 = "sp4" in E
    ring_fixed(sc, p, loop=loop, kpos=(17, 21, 25, 29) if sp4 else (21, 25, 27, 29), vpos=(49, 53, 57, 61) if sp4 else (53, 57, 59, 61))
    back = "AT_full%d_back" % p
    sc.at(31, "s_cbranch_vccnz AT_full%d_stub\n%s:" % (p, back))
    stubs.append(("AT_full%d_stub" % p, p, back))
    if sp4:
        place_sm(sc, 1 - p, 1, (None, 1, 3, 5, 9, 11, 13, 19), 0, 30, post=CHECK)
        place_sm(sc, p, 0, (27, 33, 35, 37, 41, 43, 45, 51), 32, 63, pre=LACC)
        sc.at(59, sm_ops(p, 1)[0][0], 2)
    else:
        place_sm(sc, 1 - p, 1, (1, 3, 5, 9, 11, 13, 17, 19), 0, 30, post=CHECK)
        place_sm(sc, p, 0, (33, 35, 37, 41, 43, 45, 49, 51), 32, 63, pre=LACC)
    sc.emit(a)
    return sc.overflow()

def body_pvlast(a, p, stubs):
    sc = Sched([None] * 32 + pv_mfmas(1 - p))
    ring_fixed(sc, p, useK=False)
    for g in range(16, 31):
        rd = [s for s in sc.items[g] if s.startswith("ds_read")]
        sc.items[g] = [s for s in sc.items[g] if not s.startswith("ds_read")]
        sc.tail[-1] += rd
    back = "AT_pv%d_back" % p
    for s in sm_serial(1 - p, 1) + CHECK: sc.at(10, s)
    sc.at(31, "s_cbranch_vccnz AT_pv%d_stub\n%s:" % (p, back))
    stubs.append(("AT_pv%d_stub" % p, p, back))
    for k, s in enumerate(LACC): sc.at(33, s)
    sc.emit(a)

def body_qkfirst(a, p):
    sc = Sched(qk_mfmas(p) + [None] * 32)
    ring_fixed(sc, p, useV=False)
    t = Asm()
    m = V_T
    for qb in range(2):
        s0 = St(p, 0, qb)
        sc.at(23, "v_max3_f32 v%d, v%d, v%d, v%d" % (m + qb, s0, s0 + 1, s0 + 2))
        sc.at(24, "v_mov_b32 v%d, 0" % (V_L + qb))
    t("s_nop 6")
    for qb in range(2):
        s0, s1 = St(p, 0, qb), St(p, 1, qb)
        t("v_max3_f32 v%d, v%d, v%d, v%d" % (m + qb, m + qb, s0 + 3, s1))
        t("v_max3_f32 v%d, v%d, v%d, v%d" % (m + qb, m + qb, s1 + 1, s1 + 2))
        t("v_max_f32 v%d, v%d, v%d" % (m + qb, m + qb, s1 + 3))
    xlane_reduce2(t, "v_max_f32", m, m + 1, m + 2)
    for qb in range(2):
        t("v_sub_f32 v%d, 0, v%d" % (V_NEGM + qb, m + qb))
        for j in range(4): t("v_sub_f32 v%d, v%d, v%d" % (St(p, 0, qb) + j, St(p, 0, qb) + j, m + qb))
    for l in t.lines: sc.at(37, l.strip())
    t = Asm()
    for s in sm_serial(p, 0): t(s)
    for qb in range(2):
        for j in range(4): t("v_sub_f32 v%d, v%d, v%d" % (St(p, 1, qb) + j, St(p, 1, qb) + j, m + qb))
        for kb in range(2):
            for j in range(4): t("v_mov_b32 v%d, v%d" % (Ct(kb, qb) + j, V_NEGM + qb))
    t(sm_ops(p, 1)[0][0])
    for l in t.lines: sc.at(63, l.strip())
    sc.emit(a)

def body_idle(a, p, loop):
    sc = Sched([None] * 64)
    ring_fixed(sc, p, useK=False, useV=False, loop=loop)
    sc.emit(a)

def rescale_sub(a, p):
    cur, nxt = 1 - p, p
    a.label("AT_rescale%d" % p)
    a("s_nop 7")
    for qb in range(2):
        m = V_T; f = V_T + 1
        s0, s1 = St(cur, 0, qb), St(cur, 1, qb)
        a("v_max3_f32 v%d, v%d, v%d, v%d" % (m, s0, s0 + 1, s0 + 2))
        a("v_max3_f32 v%d, v%d, v%d, v%d" % (m, m, s0 + 3, s1))
        a("v_max3_f32 v%d, v%d, v%d, v%d" % (m, m, s1 + 1, s1 + 2))
        a("v_max3_f32 v%d, v%d, v%d, 0" % (m, m, s1 + 3))
        xlane_reduce(a, "v_max_f32", m, V_T + 2)
        a("v_exp_f32 v%d, -v%d" % (f, m))
        a("v_sub_f32 v%d, v%d, v%d" % (V_NEGM + qb, V_NEGM + qb, m))
        a("v_mul_f32 v%d, v%d, v%d" % (V_L + qb, V_L + qb, f))
        for kb in range(2):
            for j in range(4):
                for r in (St(cur, kb, qb), St(nxt, kb, qb), Ct(kb, qb)):
                    a("v_sub_f32 v%d, v%d, v%d" % (r + j, r + j, m))
        for db in range(16):
            for j in range(4):
                a("v_mul_f32 v%d, v%d, v%d" % (Ot(db, qb) + j, Ot(db, qb) + j, f))
    for kb in range(2):
        for s in sm_serial(cur, kb): a(s)
    a(sm_ops(nxt, 0)[0][0])
    a("s_nop 1")
    a("s_setpc_b64 s[%d:%d]" % (S_RET2, S_RET2 + 1))

def op_acc(buf, e, qb): return V_O + 32 * buf + 4 * (2 * e + qb)
def op_flush_items(buf, k):
    it = [("s_add_u32 s%d, s%d, 2048" % (S_ST, S_ST), 1)] if k else []
    for qb in range(2):
        for sp in range(2):
            r = V_C + 4 * (2 * qb + sp)
            for e in range(4):
                o = op_acc(buf, e, qb) + 2 * sp
                if k < 6: it += [("v_mul_f32 v%d, v%d, v%d" % (o + j, o + j, V_R + qb), 1) for j in range(2)]
                else:
                    t = Items(); pkmul(t, o, o, V_R + qb); it += t.it
            for d in range(4):
                j = 2 * sp + (d >> 1); e = 2 * (d & 1)
                it.append(("v_cvt_pk_bf16_f32 v%d, v%d, v%d" % (r + d, op_acc(buf, e, qb) + j, op_acc(buf, e + 1, qb) + j), 1))
            it.append(("buffer_store_dwordx4 %s, v%d, s[12:15], s%d offen offset:%d sc1 @S%d" % (vr(r), V_T2 if qb else 1, S_ST, sp * 1024, k), 2))
    if "nopo" in E: it = [x for x in it if not x[0].startswith("buffer_store")]
    if "plainpo" in E: it = [(x.replace(" sc1", ""), c) for x, c in it]
    return it

def subroutines(a):
    stubs = []
    ret = "s_setpc_b64 s[%d:%d]" % (S_RET, S_RET + 1)
    def looped(name, fn):
        a.label("AT_%s" % name)
        a("s_bitcmp1_b32 s%d, 0" % S_G3)
        a("s_cbranch_scc0 AT_%s_odd" % name)
        a(".p2align 4")
        a.label("AT_%s_even" % name)
        fn(0, "s_cbranch_scc1 AT_%s_ret" % name)
        a.label("AT_%s_odd" % name)
        fn(1, "s_cbranch_scc0 AT_%s_even" % name)
        a.label("AT_%s_ret" % name)
        a(ret)
    def single(name, fn):
        a.label("AT_%s" % name)
        a("s_bitcmp1_b32 s%d, 0" % S_G3)
        a("s_cbranch_scc0 AT_%s_odd" % name)
        fn(0); a(ret)
        a.label("AT_%s_odd" % name)
        fn(1); a(ret)
    single("qkfirst", lambda p: body_qkfirst(a, p))
    looped("full", lambda p, l: print("full overflow", body_full(a, p, l, stubs)))
    single("pvlast", lambda p: body_pvlast(a, p, stubs))
    looped("idle", lambda p, l: body_idle(a, p, l))
    for lab, p, back in stubs:
        a.label(lab)
        a("s_call_b64 s[%d:%d], AT_rescale%d" % (S_RET2, S_RET2 + 1, p))
        a("s_branch %s" % back)
    rescale_sub(a, 0); rescale_sub(a, 1)

def call(a, name):
    if name == "pvlast":
        a("s_mov_b32 s3, %d" % PKA)
        a("buffer_load_dwordx4 v[124:127], v1, s[12:15], s3 offen sc1")
    a("s_call_b64 s[%d:%d], AT_%s" % (S_RET, S_RET + 1, name))
def run_k(a, name, k):
    a("s_add_u32 s%d, s%d, %d" % (S_END, S_G3, k))
    call(a, name)
def run_n(a, name, cnt):
    sk = a.newlabel("skip")
    a("s_cmp_lt_i32 s%d, 1" % cnt)
    a("s_cbranch_scc1 %s" % sk)
    a("s_add_u32 s%d, s%d, s%d" % (S_END, S_G3, cnt))
    call(a, name)
    a.label(sk)

def cinit(a, masked, zero):
    if masked: a("v_mov_b32 v%d, 0x%x" % (V_T, NEG))
    for kb in range(2):
        for qb in range(2):
            base = "0" if zero else "v%d" % (V_NEGM + qb)
            for j in range(4):
                r = Ct(kb, qb) + j
                if masked and kb == qb: a("v_cndmask_b32 v%d, %s, v%d, s[%d:%d]" % (r, base, V_T, S_MASK + 2 * j, S_MASK + 2 * j + 1))
                elif masked and kb > qb: a("v_mov_b32 v%d, v%d" % (r, V_T))
                elif zero: a("v_mov_b32 v%d, 0" % r)
def zero_o(a):
    for k in range(64): a("v_mov_b64 %s, 0" % vr(V_O + 2 * k, 2))

def tab_seg(a, startK, startV, base, stride, cnt1, lag, first=False):
    t = V_T
    a("v_subrev_u32 v%d, %s, v2" % (t, startK))
    a("v_min_i32 v%d, %s, v%d" % (t + 1, cnt1, t))
    a("v_subrev_u32 v%d, %d, v%d" % (t + 2, lag, t))
    a("v_max_i32 v%d, 0, v%d" % (t + 2, t + 2))
    a("v_min_i32 v%d, %s, v%d" % (t + 2, cnt1, t + 2))
    a("v_mul_i32_i24 v%d, %d, v%d" % (t + 1, stride, t + 1))
    a("v_mul_i32_i24 v%d, %d, v%d" % (t + 2, stride, t + 2))
    a("v_add_u32 v%d, %s, v%d" % (t + 1, base, t + 1))
    a("v_add_u32 v%d, %s, v%d" % (t + 2, base, t + 2))
    a("v_add_u32 v%d, 0x4000, v%d" % (t + 2, t + 2))
    if first:
        a("v_mov_b32 v%d, v%d" % (V_TABK, t + 1))
        a("v_mov_b32 v%d, v%d" % (V_TABV, t + 2))
    else:
        a("v_cmp_le_i32 vcc, 0, v%d" % t)
        a("s_nop 1")
        a("v_cndmask_b32 v%d, v%d, v%d, vcc" % (V_TABK, V_TABK, t + 1))
        a("v_cmp_le_i32 vcc, %d, v%d" % (startV, t))
        a("s_nop 1")
        a("v_cndmask_b32 v%d, v%d, v%d, vcc" % (V_TABV, V_TABV, t + 2))

def tables(a):
    a("s_lshl_b32 s86, s%d, 2" % S_I)
    a("s_sub_u32 s%d, %d, s86" % (S_N1, 64 - XA))
    a("s_add_u32 s%d, s86, 4" % S_N2)
    a("s_cmp_eq_u32 s%d, 1\ns_cselect_b32 s87, %d, 32" % (S_ROLE, XA))
    a("s_cmp_lt_u32 s68, 14\ns_cselect_b32 s%d, s%d, s87\ns_cselect_b32 s%d, s%d, 0\ns_cselect_b32 s87, %d, 0" % (S_N1, S_N1, S_N2, S_N2, XA * KTS))
    a("s_mov_b32 s%d, 0x%x" % (S_THR, f2u(65536.0)))
    a("s_mul_i32 s88, s%d, %d" % (S_HEAD, KHS))
    if KV: a("s_add_u32 s88, s88, %d" % KV)
    a("s_add_u32 s25, s88, s87")
    a("s_sub_u32 s89, s%d, 1" % S_N1)
    tab_seg(a, "0", 0, "s25", KTS, "s89", 1, first=True)
    a("s_add_u32 s86, s86, 3")
    a("s_mul_i32 s86, s86, %d" % KTS)
    a("s_add_u32 s25, s88, s86")
    a("s_sub_u32 s89, s%d, 1" % S_N2)
    tab_seg(a, "s%d" % S_N1, 1, "s25", -KTS, "s89", 1)
    a("s_add_u32 s69, s%d, s%d" % (S_N1, S_N2))
    a("s_add_u32 s69, s69, 1")
    a("s_mul_i32 s25, s%d, %d" % (S_HEAD, WBLK))
    a("s_add_u32 s25, s25, %d" % WOP)
    tab_seg(a, "s69", 0, "s25", 32768, "6", 0)
    a("s_and_b32 s86, s68, 1")
    a("s_lshl_b32 s%d, s67, 1" % S_R)
    a("s_add_u32 s%d, s%d, s86" % (S_R, S_R))
    a("s_lshr_b32 s%d, s68, 1" % S_M)
    a("s_add_u32 s69, s69, 7")
    a("s_min_u32 s25, s%d, 13" % S_M)
    a("s_mul_i32 s25, s25, %d" % WBLK)
    a("s_add_u32 s25, s25, %d" % W13P)
    tab_seg(a, "s69", 0, "s25", 32768, "6", 0)
    a("v_lshrrev_b32 v%d, 4, v2" % V_T)
    a("v_lshlrev_b32 v%d, 2, v%d" % (V_T, V_T))
    a("v_and_b32 v%d, 15, v2" % (V_T + 1))
    for j in range(4):
        a("v_add_u32 v%d, %d, v%d" % (V_T + 2, j, V_T))
        a("v_cmp_gt_u32 s[%d:%d], v%d, v%d" % (S_MASK + 2 * j, S_MASK + 2 * j + 1, V_T + 2, V_T + 1))

def qproj(a, st, vm, isK, stubs):
    a("v_add_u32 v%d, 0x10000, v1" % V_RDV)
    a("v_add_u32 v13, 0x20000, v1")
    a("v_mov_b32 v14, 1")
    a("s_cmp_lt_u32 s68, 14")
    a("s_cselect_b32 s3, %d, 0" % (2 * (XA >> 3)))
    a("v_min_u32 v15, 1, v2")
    a("v_add_u32 v15, s3, v15")
    a("v_mul_u32_u24 v15, %d, v15" % (16 * FB))
    def src(c, h):
        if c > 6: return None
        u = QUNIT[2 * c + h]
        return ((1, V_RDV, 13)[u >> 6], (u & 63) * 1024)
    a(vm.see("WAITVM X18,Q6"))
    a("s_barrier")
    first_reads(a, src(0, 0)[0], src(0, 0)[1], FrV)
    st.rt(a, "q_start")
    nm = "QK" if isK else "QV"
    def place_group(sc, g, g0, offs=(0, 2, 6, 10)):
        p0, ld, _ = g
        for x in p0: sc.at(g0 - 2, x)
        for k in range(4): sc.at(g0 + offs[k], ld[k], 2)
    def kv_group(entry, isV, slot):
        so = S_VO if isV else S_KO
        return (["v_readlane_b32 s%d, v%d, %d" % (so, V_TABV if isV else V_TABK, entry), "s_add_u32 m0, s24, %d" % (slot * 16384 + (65536 if isV else 0))],
                ["buffer_load_dwordx4 v%d, s[12:15], s%d offen offset:%d lds%s" % (V_DMA, so, j * 1024, DMAFL) for j in range(4)], [])
    tb = Items(); tables(tb)
    for c in range(7):
        mf = []
        for h in range(2):
            s = 2 * c + h
            for n in range(16):
                for qb in range(2):
                    d = ar(4 * (2 * n + qb))
                    mf.append(MF(d, FrV(16 * h + n), xn_reg(qb, s), "0" if s == 0 else d))
        sc = Sched(mf)
        bar = {4: "WAITVM Q11,KV1", 5: "WAITVM Q13", 6: "WAITVM KV2,F1"}.get(c)
        frag_reads(sc, src(c, 0), src(c, 1), src(c + 1, 0), bar, FrV)
        if c == 0:
            place_group(sc, dmaQ(9), 3, (0, 8, 16, 24))
            for k in range(8): sc.at(5 + 8 * k - (2 if k == 7 else 0), xn_load(20 + k)[0], 2)
        if c in (2, 3):
            sc.at(-1, "WAITVM X19,Q8" if c == 2 else "WAITVM X27,Q9", last=True)
            sc.at(-1, "s_barrier", last=True)
            for h in range(2): place_group(sc, dmaQ(2 * c + 6 + h), 3 + 32 * h, (0, 8, 16, 24))
        if c == 4:
            for k in range(2): sc.at(49 + 2 * k, sig(O_KV1)[k], 2)
        if c == 6:
            sc.at(29, flag_load("v15", "s%d" % S_GRPF, O_KV1, 12) + " @F1", 2)
            for k in range(2): sc.at(48 + 2 * k, sig(O_KV2)[k], 2)
            sc.at(49, "v_cmp_ne_u32 vcc, 1, v12")
            sc.at(51, "s_cbranch_vccnz %s_spin\n%s_spinback:" % (nm, nm))
            sp = Asm(); sp.label(nm + "_spin"); poll(sp, "v15", "s%d" % S_GRPF, O_KV1, 12, nm + "f1"); sp("s_branch %s_spinback" % nm)
            stubs.append(sp.text())
            g = kv_group(0, False, 2)
            sc.at(45, g[0][0]); sc.at(45, g[0][1])
            for k in range(4): sc.at(52 + k, g[1][k], 2)
            g = kv_group(1, True, 3)
            sc.at(43, g[0][0]); sc.at(56, g[0][1])
            sc.at(56, kv_group(1, False, 3)[0][0])
            for k in range(4): sc.at(57 + k, g[1][k], 2)
            g = kv_group(1, False, 3)
            sc.at(61, g[0][1])
            for k in range(4): sc.at(62 + min(k, 1), g[1][k], 2)
        it = []
        ntb = {0: (0, 24), 1: (24, 84), 6: (84, 999)}.get(c, (0, 0))
        tbi = tb.it[ntb[0]:ntb[1]]
        ns = list({0: range(5, 9), 1: range(9, 14), 2: range(14, 18), 3: range(18, 23), 4: range(23, 27), 5: range(27, 32)}.get(c, ()))
        for k, n in enumerate(ns):
            if n >= 16: it += kv_conv(isK, n, 16)
            elif c == 2: it += [("", 1)] * 12
            it += kv_store(isK, n) + tbi[k * len(tbi) // len(ns):(k + 1) * len(tbi) // len(ns)]
        if c == 6: it = tbi
        if it: sc.flow(it, 0, {6: 40}.get(c, 62))
        if isK: print("qproj overflow", c, sc.overflow())
        sc.emit(a, vm)
        if "qst" in E and c < 6: st.rt(a, "q%d" % (c + 1))

def pair_off(a, dst, base, per_wave):
    a("s_lshl_b32 s%d, s%d, 3" % (dst, S_HEAD))
    a("s_add_u32 s%d, s%d, s%d" % (dst, dst, S_I))
    a("s_lshl_b32 s%d, s%d, 2" % (dst, dst))
    a("s_add_u32 s%d, s%d, s66" % (dst, dst))
    a("s_mul_i32 s%d, s%d, %d" % (dst, dst, per_wave))
    a("s_add_u32 s%d, s%d, %d" % (dst, dst, base))
def partner_flags(a, dst):
    a("s_xor_b32 s%d, s2, 128" % dst)
    a("s_mul_i32 s%d, s%d, %d" % (dst, dst, FB))
    a("s_add_u32 s%d, s%d, %d" % (dst, dst, FLG))

def q_epilogue(a, qb, dst, store):
    for sd in range(8):
        cb, sp = sd >> 1, sd & 1
        r = 32 + 12 * (sd % 4)
        f = 8 * qb + sd
        for d in range(4):
            j = 2 * sp + (d >> 1); e = 2 * (d & 1)
            a("v_accvgpr_read_b32 v%d, a%d" % (r + 2 * d, 4 * (2 * (4 * cb + e) + qb) + j))
            a("v_accvgpr_read_b32 v%d, a%d" % (r + 2 * d + 1, 4 * (2 * (4 * cb + e + 1) + qb) + j))
        for d in range(4): a("v_cvt_pk_bf16_f32 v%d, v%d, v%d" % (r + 8 + d, r + 2 * d, r + 2 * d + 1))
        if store:
            if f % 4 == 0 and f: a("s_add_u32 s25, s25, s39")
            a("buffer_store_dwordx4 %s, v1, s[12:15], s25 offen offset:%d sc1" % (vr(r + 8), (f % 4) * 1024))
        for d in range(4): a("v_accvgpr_write_b32 a%d, v%d" % (dst + 4 * f + d, r + 8 + d))

def l_total(a): xlane_reduce2(a, "v_add_f32", V_L, V_L + 1, V_T)

def pkmul(a, d, x, sc):
    if "nopk" in E:
        a("v_mul_f32 v%d, v%d, v%d\nv_mul_f32 v%d, v%d, v%d" % (d, x, sc, d + 1, x + 1, sc)); return
    lo = sc & ~1; h = sc & 1
    a("v_pk_mul_f32 %s, %s, %s op_sel:[0,%d] op_sel_hi:[1,%d]" % (vr(d, 2), vr(x, 2), vr(lo, 2), h, h))
def pkfma(a, d, x, sc, c):
    lo = sc & ~1; h = sc & 1
    a("v_pk_fma_f32 %s, %s, %s, %s op_sel:[0,%d,0] op_sel_hi:[1,%d,1]" % (vr(d, 2), vr(x, 2), vr(lo, 2), vr(c, 2), h, h))

def normalize(a, soff=None, f0=0, f1=16, rcp=True):
    if soff is None and rcp:
        for qb in range(2): a("v_rcp_f32 v%d, v%d" % (V_R + qb, V_L + qb))
    for f in range(f0, f1):
        qb, s = f >> 3, f & 7
        r = V_CTX + 4 * f
        if soff is not None:
            for h in range(2):
                o = Ot(2 * s + h, qb)
                pkmul(a, o, o, V_T2 + qb); pkmul(a, o + 2, o + 2, V_T2 + qb)
        for h in range(2):
            o = Ot(2 * s + h, qb)
            a("v_cvt_pk_bf16_f32 v%d, v%d, v%d" % (r + 2 * h, o, o + 1))
            a("v_cvt_pk_bf16_f32 v%d, v%d, v%d" % (r + 2 * h + 1, o + 2, o + 3))
        if soff is not None:
            if f % 4 == 0 and f: a("s_add_u32 s%d, s%d, 4096" % (soff, soff))
            a("buffer_store_dwordx4 %s, v1, s[12:15], s%d offen offset:%d sc1" % (vr(r), soff, (f % 4) * 1024))

def partner_loads(a):
    pair_off(a, 25, OPX, 17408)
    for f in range(17):
        if f % 4 == 0 and f: a("s_add_u32 s25, s25, 4096")
        a("buffer_load_dwordx4 %s, v1, s[12:15], s25 offen offset:%d sc1" % (ar(A_SP + 4 * f) if f < 16 else vr(V_X), (f % 4) * 1024))

def combine(a):
    al, be = V_T2, V_T2 + 2
    for qb in range(2):
        t = V_T
        a("v_min_f32 v%d, v%d, v%d" % (t, V_NEGM + qb, V_X + qb))
        a("v_sub_f32 v%d, v%d, v%d" % (t + 1, t, V_NEGM + qb))
        a("v_sub_f32 v%d, v%d, v%d" % (t + 2, t, V_X + qb))
        a("v_exp_f32 v%d, v%d" % (t + 1, t + 1))
        a("v_exp_f32 v%d, v%d" % (t + 2, t + 2))
        a("s_nop 0")
        a("v_mul_f32 v%d, v%d, v%d" % (t, t + 2, V_X + 2 + qb))
        a("v_fma_f32 v%d, v%d, v%d, v%d" % (t, t + 1, V_L + qb, t))
        a("v_rcp_f32 v%d, v%d" % (t, t))
        a("s_nop 0")
        a("v_mul_f32 v%d, v%d, v%d" % (al + qb, t + 1, t))
        a("v_mul_f32 v%d, v%d, v%d" % (be + qb, t + 2, t))
        a("v_mov_b32 v%d, 1.0" % (V_R + qb))
    for f in range(16):
        qb, s = f >> 3, f & 7
        for d in range(4): a("v_accvgpr_read_b32 v%d, a%d" % (V_C + 2 * d + 1, A_SP + 4 * f + d))
        for d in range(4):
            o = Ot(2 * s + (d >> 1), qb) + 2 * (d & 1)
            pkmul(a, o, o, al + qb)
        for d in range(4):
            a("v_lshlrev_b32 v%d, 16, v%d" % (V_C + 2 * d, V_C + 2 * d + 1))
            a("v_and_b32 v%d, 0xffff0000, v%d" % (V_C + 2 * d + 1, V_C + 2 * d + 1))
        for d in range(4):
            o = Ot(2 * s + (d >> 1), qb) + 2 * (d & 1)
            pkfma(a, o, V_C + 2 * d, be + qb, o)
        for d in range(4):
            o = Ot(2 * s + (d >> 1), qb) + 2 * (d & 1)
            a("v_cvt_pk_bf16_f32 v%d, v%d, v%d" % (V_CTX + 4 * f + d, o, o + 1))

def attention(a, st, stubs):
    st.rt(a, "q_end")
    a("s_xor_b32 s87, s%d, 1" % S_ROLE)
    a("s_cmp_eq_u32 s%d, 7" % S_I)
    a("s_cselect_b32 s86, 0, s%d" % S_ROLE)
    a("s_cselect_b32 s87, 0, s87")
    pair_off(a, 25, QX, 17408)
    a("s_cmp_eq_u32 s86, 1")
    a("s_cselect_b32 s25, s25, %d" % WSZ)
    a("s_cselect_b32 s39, 4096, 0")
    grp_voff(a, V_T, 16)
    partner_flags(a, 29)
    q_epilogue(a, 0, A_Q, True)
    a(flag_load("v%d" % V_T, "s%d" % S_GRPF, O_KV2, V_T + 1))
    q_epilogue(a, 1, A_Q, True)
    zero_o(a)
    cinit(a, False, True)
    a("s_waitcnt vmcnt(8)")
    a("v_cmp_ne_u32 vcc, 1, v%d" % (V_T + 1))
    a("s_nop 2")
    a("s_cbranch_vccz AT_kvok")
    poll(a, "v%d" % V_T, "s%d" % S_GRPF, O_KV2, V_T + 1, "fkv")
    a.label("AT_kvok")
    st.rt(a, "kv_ready")
    ring_restart(a)
    a("s_lshl_b32 s3, s2, 2")
    a("s_add_u32 s3, s3, %d" % PKA)
    a("buffer_store_dword v14, v31, s[12:15], s3 offen sc1")
    a("s_cmp_eq_u32 s86, 1")
    a("s_cbranch_scc0 AT_notA")
    a("s_waitcnt vmcnt(9)")
    a("s_barrier")
    for x in sig(O_Q): a(x)
    first_reads(a, V_RDK, 0)
    st.rt(a, "at_start")
    call(a, "qkfirst")
    a("s_add_u32 s25, s25, 4096")
    a("buffer_store_dwordx2 %s, v1, s[12:15], s25 offen sc1" % vr(V_NEGM, 2))
    run_k(a, "full", 2)
    for x in sig(O_M): a(x)
    if st.on and "fcyc" in E:
        run_k(a, "full", XA - 6 - 28)
        st.cyc(a, "f0_c")
        run_k(a, "full", 28)
        st.cyc(a, "f1_c")
    else:
        run_k(a, "full", XA - 6)
    a(code_warm("v%d" % (V_X + 8)))
    a("s_lshl_b32 s3, s66, 2")
    a("s_add_u32 s29, s29, s3")
    a(flag_load("off", "s29", O_O, V_X + 4))
    run_k(a, "full", 2)
    a("v_readfirstlane_b32 s39, v%d" % (V_X + 4))
    a("s_cmp_eq_u32 s39, 1")
    a("s_cbranch_scc0 AT_A_late")
    partner_loads(a)
    run_k(a, "full", 1)
    a("s_branch AT_A_last")
    a.label("AT_A_late")
    a(flag_load("off", "s29", O_O, V_X + 4))
    run_k(a, "full", 1)
    a("s_waitcnt vmcnt(8)")
    a("v_readfirstlane_b32 s39, v%d" % (V_X + 4))
    a("s_cmp_eq_u32 s39, 1")
    a("s_cbranch_scc0 AT_A_last")
    partner_loads(a)
    a.label("AT_A_last")
    call(a, "pvlast")
    st.rt(a, "seg_done")
    a("s_cmp_eq_u32 s39, 1")
    a("s_cbranch_scc1 AT_A_have")
    poll(a, "off", "s29", O_O, V_T, "fo")
    partner_loads(a)
    a("s_waitcnt vmcnt(0)")
    a.label("AT_A_have")
    l_total(a)
    a("v_lshrrev_b32 v%d, 4, v2" % V_T)
    a("v_and_b32 v%d, 15, v2" % (V_T + 1))
    a("v_lshlrev_b32 v%d, 2, v%d" % (V_T, V_T))
    a("v_sub_u32 v%d, v%d, v%d" % (V_T, V_T + 1, V_T))
    a("v_and_b32 v%d, 1, v%d" % (V_T + 1, V_T))
    a("v_lshlrev_b32 v%d, 4, v%d" % (V_T + 1, V_T + 1))
    a("v_mov_b32 v%d, 0x3f80" % (V_T + 2))
    a("v_lshlrev_b32 v%d, v%d, v%d" % (V_T + 1, V_T + 1, V_T + 2))
    a("v_lshrrev_b32 v%d, 1, v%d" % (V_T, V_T))
    a("v_cmp_eq_u32 vcc, 0, v%d" % V_T)
    a("v_mov_b64 %s, 0" % vr(V_C, 2))
    a("v_mov_b64 %s, 0" % vr(V_C + 4, 2))
    a("v_cndmask_b32 v%d, 0, v%d, vcc" % (V_C + 2, V_T + 1))
    a("v_cmp_eq_u32 vcc, 1, v%d" % V_T)
    a("s_waitcnt vmcnt(9)")
    a("v_add_f32 v%d, v%d, v%d" % (V_R, V_L, V_X + 2))
    a("v_cndmask_b32 v%d, 0, v%d, vcc" % (V_C + 3, V_T + 1))
    a("v_cmp_ne_u64 vcc, %s, %s" % (vr(V_NEGM, 2), vr(V_X, 2)))
    a("v_add_f32 v%d, v%d, v%d" % (V_R + 1, V_L + 1, V_X + 3))
    if "nopva" in E: a("s_mov_b64 vcc, -1")
    for qb in range(2): a("v_rcp_f32 v%d, v%d" % (V_R + qb, V_R + qb))
    a("s_cbranch_vccnz AT_A_gen")
    D = int(os.environ.get('AD', 3))
    for f in range(16 + D):
        nz = []
        if f >= D:
            t = Asm(); normalize(t, None, f - D, f - D + 1, rcp=False); nz = [l.strip() for l in t.lines]
        for h in range(2):
            if f < 16:
                o = vr(Ot(2 * (f & 7) + h, f >> 3))
                a(MF(o, vr(V_C + 2 - 2 * h), ar(A_SP + 4 * f), o))
            if f == D and h == 0: a("s_nop 1")
            for x in nz[2 * h:2 * h + 2]: a(x)
    a("s_branch AT_oproj_start")
    a.label("AT_A_gen")
    combine(a)
    a("s_branch AT_oproj_start")
    a.label("AT_notA")
    a("s_cmp_eq_u32 s87, 1")
    a("s_cbranch_scc1 AT_B")
    a("s_barrier")
    first_reads(a, V_RDK, 0)
    st.rt(a, "at_start")
    a("s_branch AT_seg1")
    a.label("AT_B")
    for k in range(64): a("v_accvgpr_mov_b32 a%d, a%d" % (A_SP + k, A_Q + k))
    poll(a, "off", "s29", O_Q, V_T, "fq")
    pair_off(a, 25, QX, 17408)
    for f in range(16):
        if f % 4 == 0 and f: a("s_add_u32 s25, s25, 4096")
        a("buffer_load_dwordx4 %s, v1, s[12:15], s25 offen offset:%d sc1" % (ar(A_Q + 4 * f), (f % 4) * 1024))
    a("s_barrier")
    first_reads(a, V_RDK, 0)
    a("s_waitcnt vmcnt(0)")
    st.rt(a, "at_start")
    a.label("AT_seg1")
    a("s_add_u32 s25, s%d, s66" % S_N1)
    a("s_cmp_eq_u32 s25, 4")
    a("s_cbranch_scc1 AT_s1_single")
    call(a, "qkfirst")
    a("s_sub_u32 s25, s25, 5")
    run_n(a, "full", 25)
    cinit(a, True, False)
    run_k(a, "full", 1)
    a("s_branch AT_s1_last")
    a.label("AT_s1_single")
    cinit(a, True, True)
    call(a, "qkfirst")
    a.label("AT_s1_last")
    pair_off(a, 25, QX + 16384, 17408)
    a(flag_load("off", "s29", O_M, V_X + 2))
    a("buffer_load_dwordx2 %s, v1, s[12:15], s25 offen sc1" % vr(V_X, 2))
    call(a, "pvlast")
    a("s_nop 3")
    l_total(a)
    a("s_cmp_eq_u32 s87, 1")
    a("s_cbranch_scc1 AT_B_gap")
    st.rt(a, "seg_done")
    a(code_warm("v%d" % (V_X + 8)))
    normalize(a)
    a("s_sub_u32 s25, 3, s66")
    run_n(a, "idle", 25)
    a("s_branch AT_oproj_start")
    a.label("AT_B_gap")
    pair_off(a, 25, OPX, 17408)
    a("s_waitcnt vmcnt(9)")
    a("s_mov_b32 s3, 0x42700000")
    a("v_cmp_eq_u32 s[88:89], 1, v%d" % (V_X + 2))
    for qb in range(2):
        a("v_sub_f32 v%d, v%d, v%d" % (V_T, V_X + qb, V_NEGM + qb))
        a("v_cmp_ge_f32 vcc, s3, abs(v%d)" % V_T)
        a("s_nop 1")
        a("s_and_b64 vcc, vcc, s[88:89]")
        a("v_cndmask_b32 v%d, 0, v%d, vcc" % (V_T, V_T))
        a("v_cndmask_b32 v%d, v%d, v%d, vcc" % (V_NEGM + qb, V_NEGM + qb, V_X + qb))
        a("v_exp_f32 v%d, v%d" % (V_T2 + qb, V_T))
        a("s_nop 0")
        a("v_mul_f32 v%d, v%d, v%d" % (V_L + qb, V_L + qb, V_T2 + qb))
    normalize(a, 25)
    a("s_add_u32 s25, s25, 4096")
    a("buffer_store_dwordx4 %s, v1, s[12:15], s25 offen sc1" % vr(V_NEGM))
    run_k(a, "idle", 1)
    for k in range(64): a("v_accvgpr_mov_b32 a%d, a%d" % (A_Q + k, A_SP + k))
    zero_o(a)
    a("s_lshl_b32 s3, s66, 2")
    a("s_add_u32 s3, s3, s%d" % S_MYF)
    a("s_cmp_eq_u32 s%d, 1" % S_FAST)
    a("s_cselect_b32 s25, s3, %d" % WSZ)
    a("s_cselect_b32 s3, %d, s3" % WSZ)
    a("s_waitcnt vmcnt(8)")
    a("s_mov_b64 exec, 1")
    a("buffer_store_dword v14, off, s[12:15], s25 offset:%d" % O_O)
    a("buffer_store_dword v14, off, s[12:15], s3 offset:%d sc1" % O_O)
    a("s_mov_b64 exec, -1")
    run_k(a, "idle", 1)
    a.label("AT_seg2")
    cinit(a, True, True)
    call(a, "qkfirst")
    a("s_sub_u32 s25, s%d, s66" % S_N2)
    a("s_sub_u32 s25, s25, 1")
    run_n(a, "full", 25)
    a(code_warm("v%d" % (V_X + 8)))
    call(a, "pvlast")
    st.rt(a, "seg_done")
    l_total(a)
    normalize(a)
    a.label("AT_oproj_start")
    st.rt(a, "oproj_start")
```

```python
from asmlib import *
import struct, math
def f2u(x): return struct.unpack("<I", struct.pack("<f", x))[0]

import os
KTS = 32768 + int(os.environ.get('KPAD', 1280)); KHS = 64 * KTS + int(os.environ.get('HPAD', 2304))
KV   = 0x7000000
XN   = 0x2000000
WQP  = 0x2200000
WOP  = 0x2600000
W13P = 0x2A00000
W2P  = 0x2E00000
QX   = 0x0000000
OPX  = 0x3800000
PO   = 0x4200000
FLG  = 0x6A00000
STAMP = 0x0F000000
WSZ  = 0x10000000
WBLK = 229376

FB = 384
O_XCC, O_KV1, O_KV2, O_Q, O_O, O_H, O_A, O_A0, O_M, O_PO, O_PO1 = 0, 4, 8, 12, 48, 20, 24, 28, 32, 128, 132
PKA = FLG + 0x20000
ALT = 0x5E00000
POH = 2048 * 896
S_FAST, S_MYF, S_GRPF, S_B6 = 92, 93, 94, 95

S_PX, S_PC, S_PWQ, S_PWUK, S_PWUV, S_PWO, S_PBX, S_PW1, S_PW3, S_PW2, S_POUT, S_PDBG, S_PWS = range(40, 66, 2)
S_POUT = 64
def vr(b, n=4): return "v[%d:%d]" % (b, b + n - 1)
def ar(b, n=4): return "a[%d:%d]" % (b, b + n - 1)
def MF(d, a_, b_, c): return "v_mfma_f32_16x16x32_bf16 %s, %s, %s, %s" % (d, a_, b_, c)

class Stamps:
    def __init__(self, on):
        self.on = on; self.names = []
    def idx(self, name):
        if name not in self.names: self.names.append(name)
        assert len(self.names) <= 32, self.names
        return self.names.index(name)
    def rt(self, a, name, op="s_memrealtime"):
        if not self.on: return
        a("%s s[100:101]" % op)
        a("s_waitcnt lgkmcnt(0)")
        a("v_writelane_b32 v3, s100, %d" % self.idx(name))
    def cyc(self, a, name): self.rt(a, name, "s_memtime")
    def flush(self, a):
        if not self.on: return
        a("s_lshl_b32 s3, s2, 2")
        a("s_add_u32 s3, s3, s66")
        a("s_lshl_b32 s3, s3, 7")
        a("s_add_u32 s3, s3, %d" % STAMP)
        a("v_lshlrev_b32 v4, 2, v2")
        a("s_mov_b32 exec_hi, 0")
        a("buffer_store_dword v3, v4, s[12:15], s3 offen")
        a("s_mov_b64 exec, -1")

def xlane_reduce(a, op, x, t):
    a("v_mov_b32 v%d, v%d" % (t, x))
    a("s_nop 1")
    a("v_permlane16_swap_b32 v%d, v%d" % (x, t))
    a("s_nop 1")
    a("%s v%d, v%d, v%d" % (op, x, x, t))
    a("v_mov_b32 v%d, v%d" % (t, x))
    a("s_nop 1")
    a("v_permlane32_swap_b32 v%d, v%d" % (x, t))
    a("s_nop 1")
    a("%s v%d, v%d, v%d" % (op, x, x, t))

def xlane_reduce2(a, op, x, y, t):
    for pl in ("v_permlane16_swap_b32", "v_permlane32_swap_b32"):
        a("v_mov_b32 v%d, v%d" % (t, x))
        a("v_mov_b32 v%d, v%d" % (t + 1, y))
        a("s_nop 0")
        a("%s v%d, v%d" % (pl, x, t))
        a("%s v%d, v%d" % (pl, y, t + 1))
        a("s_nop 0")
        a("%s v%d, v%d, v%d" % (op, x, x, t))
        a("%s v%d, v%d, v%d" % (op, y, y, t + 1))

def code_warm(dst):
    return "buffer_load_dword %s, v1, s[44:47], s48 offen" % dst
def code_srd(a, r, off, uid):
    a("s_getpc_b64 s[%d:%d]" % (r, r + 1))
    a.label("M_pc%d" % uid)
    a("s_sub_u32 s%d, s%d, M_pc%d-M_begin" % (r, r, uid))
    a("s_subb_u32 s%d, s%d, 0" % (r + 1, r + 1))
    a("s_mov_b32 s%d, M_codeend-M_begin" % (r + 2))
    a("s_mov_b32 s%d, 0x00020000" % (r + 3))
    a("s_lshl_b32 s%d, s68, 2" % off)
    a("s_add_u32 s%d, s%d, s66" % (off, off))
    a("s_lshl_b32 s%d, s%d, 10" % (off, off))

def poll(a, voff, soff, imm, vt, name, val=1, srd="s[12:15]"):
    lp = a.newlabel(name + "_poll"); dn = a.newlabel(name + "_pdone")
    a("s_mov_b32 s3, 0x20000")
    a.label(lp)
    a(flag_load(voff, soff, imm, vt, srd))
    a("s_waitcnt vmcnt(0)")
    a("%s vcc, %d, v%d" % ("v_cmp_ne_u32" if val == 1 else "v_cmp_gt_u32", val, vt))
    a("s_sub_u32 s3, s3, 1")
    a("s_cbranch_scc1 %s" % dn)
    a("s_nop 1")
    a("s_cbranch_vccnz %s" % lp)
    a.label(dn)
def flag_load(voff, soff, imm, vt, srd="s[12:15]"):
    return "buffer_load_dword v%d, %s, %s, %s%s offset:%d sc1" % (vt, voff, srd, soff, "" if voff == "off" else " offen", imm)
def sig(off):
    return ["buffer_store_dword v14, v30, s[12:15], s%d offen offset:%d" % (S_MYF, off),
            "buffer_store_dword v14, v29, s[12:15], s%d offen offset:%d sc1" % (S_MYF, off)]
def grp_voff(a, vt, n):
    a("v_min_u32 v%d, %d, v2" % (vt, n - 1))
    a("v_mul_u32_u24 v%d, %d, v%d" % (vt, 16 * FB, vt))

def only_wave(a, w, fn):
    sk = a.newlabel("ow")
    a("s_cmp_lg_u32 s66, %d" % w)
    a("s_cbranch_scc1 %s" % sk)
    fn()
    a.label(sk)

class Sched:
    def __init__(self, mf):
        self.mf = mf
        self.items = {g: [] for g in range(-1, 64)}
        self.tail = {g: [] for g in range(-1, 64)}
        self.free = {g: (2 if (g >= 0 and mf[g] is not None) else 99) for g in range(-1, 64)}
    def vm_ok(self, g, d):
        return not any(x.startswith("buffer_") for k in range(max(-1, g - d), min(63, g + d) + 1) for x in self.items[k] + self.tail[k])
    def at(self, g, s, cost=1, last=False):
        (self.tail if last else self.items)[g].append(s)
        self.free[g] -= cost
        return g
    def first_free(self, g0, cost=1, g1=63):
        g = g0
        while g < g1 and self.free[g] < cost: g += 1
        return g
    def flow(self, stream, g0, g1, vd=0):
        tot = float(sum(c for _, c in stream)); done = 0; pos = g0
        for s, c in stream:
            while pos < g1:
                if self.free[pos] >= c and (not vd or not s.startswith("buffer_") or self.vm_ok(pos, vd)) and (pos - g0) / float(g1 - g0 + 1) + 1e-9 >= done / tot - 0.06: break
                pos += 1
            self.at(pos, s, c)
            done += c
    def seq(self):
        out = []
        for g in range(-1, 64):
            if g >= 0 and self.mf[g] is not None: out.append(self.mf[g])
            out += self.items[g] + self.tail[g]
        return out
    def emit(self, a, vm=None):
        for s in self.seq():
            if vm is not None: s = vm.see(s)
            if s: a(s)
    def overflow(self):
        return sum(-f for f in self.free.values() if f < 0)

class VM:
    def __init__(self): self.ops = []
    def see(self, s):
        if s.startswith("WAITVM"):
            p = s.split(None, 2)
            tags = p[1].split(",")
            idx = [i for i, t in enumerate(self.ops) if t in tags]
            extra = " " + p[2] if len(p) > 2 else ""
            if not idx: return ("s_waitcnt" + extra) if extra else ""
            n = len(self.ops) - 1 - max(idx)
            assert n <= 63, n
            return "s_waitcnt vmcnt(%d)%s" % (n, extra)
        if s.startswith("buffer_") or s.startswith("global_"):
            tag = None
            if "@" in s:
                s, tag = s.split("@"); s = s.strip(); tag = tag.strip()
            self.ops.append(tag)
        return s
```

```python
from common import *
import os
E = os.environ.get("EXP", "").split("+")
WFL = " nt"
AFL = " nt" if "nta" in E else ""
QSCALE = math.log2(math.e) / 16.0
S_HEAD, S_I, S_ROLE, S_QB = 30, 31, 32, 33
V_DMA = 4
V_F = [32, 96]
V_VA, V_VW, V_RW, V_RA, V_RAC = 232, 240, 244, 252, 254
LDS_A = 65536; LDS_END = 163840; LN_LDS = LDS_A + 32768
U_SRD = [80, 84, 88]; U_SRC = [92, 93, 94]; U_DST = [95, 96, 97]; U_STR = [69, 98, 99]
U_VOFF = [25, 26, 27]
def U_L(slot, e):
    if slot < 2: return 208 + 2 * e
    return 16 + 2 * e if e < 4 else 224 + 2 * (e - 4)
SRD_X = 72
DMAFL = ""
WARM = True
HEADST = True

def xn_reg(qb, s):
    if s < 6: return vr(160 + 4 * (2 * s + qb))
    return vr(32 + 4 * (2 * (s - 6) + qb))
QUNIT = [96, 112, 0, 16, 128, 144, 32, 48, 64, 80, 0, 16, 128, 144]

class Items:
    def __init__(self): self.it = []
    def __call__(self, s): self.it.append((s, min(2, 1 + s.count("\n"))))

def pack_decode(a, slot):
    R = U_SRD[slot]; sS = U_SRC[slot]; sD = U_DST[slot]; sT = U_STR[slot]
    u, x, y, t0, t1, t2 = 70, 71, 72, 73, 74, 75
    if slot == 0:
        a("s_lshr_b32 s%d, s49, 2" % x)
        a("s_and_b32 s%d, s49, 3" % y)
        a("s_lshl_b32 s%d, s%d, 18" % (sS, x))
        a("s_lshl_b32 s%d, s%d, 9" % (t0, S_HEAD))
        a("s_add_u32 s%d, s%d, s%d" % (sS, sS, t0))
        a("s_lshl_b32 s%d, s%d, 7" % (t0, y))
        a("s_add_u32 s%d, s%d, s%d" % (sS, sS, t0))
        a("s_mul_i32 s%d, s%d, %d" % (sD, S_HEAD, WBLK))
        a("s_lshl_b32 s%d, s49, 12" % t0)
        a("s_add_u32 s%d, s%d, s%d" % (sD, sD, t0))
        a("s_add_u32 s%d, s%d, %d" % (sD, sD, WQP))
        prim = (S_PWQ, 448 * 8192, 8192)
    elif slot == 1:
        a("s_and_b32 s%d, s49, 7" % x)
        a("s_lshr_b32 s%d, s49, 3" % y)
        a("s_mul_i32 s%d, s%d, %d" % (sD, S_HEAD, WBLK))
        a("s_mul_i32 s%d, s%d, %d" % (t0, x, 32 * 896))
        a("s_add_u32 s%d, s%d, s%d" % (sS, sD, t0))
        a("s_lshl_b32 s%d, s%d, 7" % (t0, y))
        a("s_add_u32 s%d, s%d, s%d" % (sS, sS, t0))
        a("s_lshl_b32 s%d, s49, 12" % t0)
        a("s_add_u32 s%d, s%d, s%d" % (sD, sD, t0))
        a("s_add_u32 s%d, s%d, %d" % (sD, sD, WOP))
        prim = (S_PWO, 4096 * 896, 896)
    else:
        a("s_lshl_b32 s%d, s%d, 6" % (t2, S_HEAD))
        a("s_add_u32 s%d, s%d, s49" % (t2, t2))
        a("s_cmp_ge_u32 s%d, 392\ns_cselect_b32 s%d, s%d, s%d\ns_cselect_b32 s%d, s%d, s%d\ns_cselect_b32 s%d, 392, 0\ns_cselect_b32 s%d, 4096, 0"
          % (t2, S_PW1, S_PW3, S_PW1, S_PW1 + 1, S_PW3 + 1, S_PW1 + 1, t0, sD))
        a("s_sub_u32 s%d, s%d, s%d" % (u, t2, t0))
        a("s_lshr_b32 s%d, s%d, 2" % (x, u))
        a("s_mul_i32 s%d, s%d, 9363" % (x, x))
        a("s_lshr_b32 s%d, s%d, 16" % (x, x))
        a("s_mul_i32 s%d, s%d, 28" % (y, x))
        a("s_sub_u32 s%d, s%d, s%d" % (y, u, y))
        a("s_mul_i32 s%d, s%d, %d" % (sS, x, 32 * 3584))
        a("s_lshl_b32 s%d, s%d, 7" % (t0, y))
        a("s_add_u32 s%d, s%d, s%d" % (sS, sS, t0))
        a("s_mul_i32 s%d, s%d, %d" % (t0, y, WBLK // 2))
        a("s_add_u32 s%d, s%d, s%d" % (sD, sD, t0))
        a("s_lshl_b32 s%d, s%d, 13" % (t0, x))
        a("s_add_u32 s%d, s%d, s%d" % (sD, sD, t0))
        a("s_add_u32 s%d, s%d, %d" % (sD, sD, W13P))
        prim = (S_PW1, 448 * 3584, 3584)
    if slot < 2:
        a("s_lshl_b32 s%d, s%d, 3" % (u, S_HEAD))
        a("s_add_u32 s%d, s%d, s49" % (u, u))
        a("s_add_u32 s%d, s%d, %d" % (u, u, (240, 368)[slot] - 56))
    else:
        a("s_sub_u32 s%d, s%d, 784" % (u, t2))
        a("s_max_i32 s%d, s%d, 0" % (u, u))
    a("s_mul_i32 s%d, s%d, 9363" % (x, u))
    a("s_lshr_b32 s%d, s%d, 16" % (x, x))
    a("s_mul_i32 s%d, s%d, 7" % (y, x))
    a("s_sub_u32 s%d, s%d, s%d" % (y, u, y))
    a("s_mul_i32 s%d, s%d, %d" % (t0, x, 32 * 896))
    a("s_lshl_b32 s%d, s%d, 7" % (t1, y))
    a("s_add_u32 s%d, s%d, s%d" % (t0, t0, t1))
    a("s_mul_i32 s%d, s%d, %d" % (t1, y, WBLK))
    a("s_bfe_u32 s%d, s%d, 0x10001" % (y, x))
    a("s_mul_i32 s%d, s%d, %d" % (y, y, 28 * 4096))
    a("s_add_u32 s%d, s%d, s%d" % (t1, t1, y))
    a("s_and_b32 s%d, s%d, 1" % (y, x))
    a("s_lshr_b32 s%d, s%d, 2" % (x, x))
    a("s_lshl_b32 s%d, s%d, 1" % (x, x))
    a("s_add_u32 s%d, s%d, s%d" % (x, x, y))
    a("s_lshl_b32 s%d, s%d, 12" % (x, x))
    a("s_add_u32 s%d, s%d, s%d" % (t1, t1, x))
    a("s_add_u32 s%d, s%d, %d" % (t1, t1, W2P))
    if slot == 1:
        a("s_cmp_ge_u32 s%d, 392\ns_cselect_b32 s%d, 0, s%d\ns_cselect_b32 s%d, %d, s%d" % (u, t0, t0, t1, WSZ, t1))
    a("s_mov_b32 s%d, %d" % (R + 2, prim[1]))
    a("s_mov_b32 s%d, %d" % (sT, prim[2]))
    c = "s_cmp_ge_u32 s49, 56" if slot < 2 else "s_cmp_ge_u32 s%d, 784" % t2
    a(c + "\ns_cselect_b32 s%d, s%d, s%d\ns_cselect_b32 s%d, s%d, s%d" % (R, S_PW2, prim[0], R + 1, S_PW2 + 1, prim[0] + 1))
    a(c + "\ns_cselect_b32 s%d, %d, s%d\ns_cselect_b32 s%d, 896, s%d" % (R + 2, 1792 * 896, R + 2, sT, sT))
    a(c + "\ns_cselect_b32 s%d, s%d, s%d\ns_cselect_b32 s%d, s%d, s%d\ns_cselect_b64 vcc, -1, 0" % (sS, t0, sS, sD, t1, sD))
    a("s_mov_b32 s%d, 0x00020000" % (R + 3))
    a("v_mul_lo_u32 v%d, v28, s%d" % (U_VOFF[slot], sT))
    a("v_cndmask_b32 v24, v30, v29, vcc")
    a("v_add_u32 v%d, v%d, v24" % (U_VOFF[slot], U_VOFF[slot]))

def unit_loads(slot):
    it = [("s_mul_i32 s70, s%d, 13" % U_STR[slot], 1)]
    for e in range(8):
        it.append(("buffer_load_dwordx2 %s, v%d, s[%d:%d], s%d offen nt @U%d" % (vr(U_L(slot, e), 2), U_VOFF[slot], U_SRD[slot], U_SRD[slot] + 3, U_SRC[slot], slot), 2))
        if e < 7: it.append(("s_add_u32 s%d, s%d, s%d" % (U_SRC[slot], U_SRC[slot], 70 if e == 3 else U_STR[slot]), 1))
    return it
def unit_finish(slot, e0=0, e1=4):
    it = [("WAITVM U%d" % slot, 1)] if e0 == 0 else []
    for e in range(e0, e1):
        o = 8 + 4 * (e & 1)
        for d in range(4):
            it.append(("v_perm_b32 v%d, v%d, v%d, s%d" % (o + d, U_L(slot, 2 * d + 1) + (e >> 1), U_L(slot, 2 * d) + (e >> 1), 76 + (e & 1)), 1))
        it.append(("buffer_store_dwordx4 %s, v1, s[12:15], s%d offen offset:%d sc1 @PK" % (vr(o), U_DST[slot], e * 1024), 2))
    return it

S_PDST = 78
NPRE = int(os.environ.get("NPRE", 4))
TOUCH = "touch" in E
TLEAD = int(os.environ.get("TLEAD", 3))
def touch_items(h):
    if not TOUCH: return []
    it = [("s_cmp_eq_u32 s52, %d\ns_cselect_b32 s1, 0, s62" % h, 2), ("buffer_load_dword v7, v6, s[60:63], s1 offen%s" % (" nt" if "tnt" in E else ""), 2)]
    if h == 3: it.append(("v_add_u32 v6, s53, v6", 1))
    return it
def unit_items():
    L = 208
    ld = []
    for e in range(8):
        ld.append([("buffer_load_dwordx2 %s, v%d, s[%d:%d], s%d offen nt" % (vr(L + 2 * e, 2), U_VOFF[1], U_SRD[1], U_SRD[1] + 3, U_SRC[1]), 2)])
        if e == 3: ld[-1] += [("s_mul_i32 s70, s%d, 13" % U_STR[1], 1), ("s_add_u32 s%d, s%d, s70" % (U_SRC[1], U_SRC[1]), 1)]
        elif e < 7: ld[-1].append(("s_add_u32 s%d, s%d, s%d" % (U_SRC[1], U_SRC[1], U_STR[1]), 1))
    perm = [("v_perm_b32 v%d, v%d, v%d, s%d" % (8 + 4 * e + d, L + 2 * (2 * d + 1) + (e >> 1), L + 4 * d + (e >> 1), 76 + (e & 1)), 1)
            for d in range(4) for e in range(4)]
    stv = [("buffer_store_dwordx4 %s, v1, s[12:15], s%d offen offset:%d sc1" % (vr(8 + 4 * e), S_PDST, e * 1024), 2) for e in range(4)]
    rot = [("s_mov_b32 s%d, s%d" % (U_SRD[1] + w, U_SRD[2] + w), 1) for w in range(3)]
    rot += [("s_mov_b32 s%d, s%d" % (U_SRC[1], U_SRC[2]), 1), ("s_mov_b32 s%d, s%d" % (U_STR[1], U_STR[2]), 1), ("v_mov_b32 v%d, v%d" % (U_VOFF[1], U_VOFF[2]), 1)]
    rot += [("s_mov_b32 s%d, 0" % (U_SRD[2] + 2), 1), ("s_mov_b32 s%d, 0" % U_SRC[2], 1), ("s_mov_b32 s%d, 0" % U_STR[2], 1)]
    rd = [("s_mov_b32 s%d, s%d" % (S_PDST, U_DST[0]), 1), ("s_mov_b32 s%d, s%d" % (U_DST[0], U_DST[1]), 1),
          ("s_mov_b32 s%d, s%d" % (U_DST[1], U_DST[2]), 1), ("s_mov_b32 s%d, %d" % (U_DST[2], WSZ), 1)]
    pad = [("", 2)] * 6
    h0 = perm[:8] + ld[0] + perm[8:12] + ld[1] + perm[12:] + ld[2] + ld[3]
    G = int(os.environ.get("STG", 60))
    fx = {h: [(G, stv[h][0], 2)] for h in range(4)}
    fx[3] += [(61 + (k >> 1), x, 1) for k, (x, c) in enumerate(rd)]
    if G < 40: fx[0] = [(58, stv[0][0], 2)]
    return {0: touch_items(0) + h0, 1: touch_items(1) + ld[4] + ld[5] + ld[6] + ld[7] + rot, 2: touch_items(2), 3: touch_items(3)}, fx

def x_own_off(a, vt, t):
    a("v_and_b32 v%d, 7, v0" % vt)
    a("v_mul_u32_u24 v%d, 896, v%d" % (vt, vt))
    a("v_lshrrev_b32 v%d, 5, v0" % t)
    a("v_lshl_add_u32 v%d, v%d, 6, v%d" % (vt, t, vt))
    a("v_bfe_u32 v%d, v0, 3, 2" % t)
    a("v_lshl_add_u32 v%d, v%d, 3, v%d" % (vt, t, vt))
def frag8_voff(a, vt, t):
    a("v_lshrrev_b32 v%d, 3, v0" % vt)
    a("v_lshlrev_b32 v%d, 8, v%d" % (vt, vt))
    a("v_and_b32 v%d, 7, v0" % t)
    a("v_lshl_add_u32 v%d, v%d, 4, v%d" % (vt, t, vt))
def frag8_soff(a, row8, base, sD1, sD2):
    a("s_lshr_b32 s%d, s%d, 1" % (sD1, row8))
    a("s_mul_i32 s%d, s%d, 14336" % (sD1, sD1))
    a("s_and_b32 s3, s%d, 1" % row8)
    a("s_lshl_b32 s3, s3, 7")
    a("s_add_u32 s%d, s%d, s3" % (sD1, sD1))
    a("s_add_u32 s%d, s%d, %d" % (sD1, sD1, base))
    a("s_add_u32 s%d, s%d, 8192" % (sD2, sD1))
    a("s_cmp_eq_u32 s66, 3\ns_cselect_b32 s%d, %d, s%d" % (sD2, WSZ, sD2))

def ln1_items():
    a = Items()
    t = 12; S = [14, 15]; Q = [16, 17]
    a("v_mov_b32 v%d, 0x3f803f80" % t)
    for d in range(4):
        for r in range(2):
            x = 160 + 4 * r + d
            a("v_dot2_f32_bf16 v%d, v%d, v%d, %s" % (S[r], x, t, "v%d" % S[r] if d else "0"))
            a("v_dot2_f32_bf16 v%d, v%d, v%d, %s" % (Q[r], x, x, "v%d" % Q[r] if d else "0"))
    a("v_and_b32 v9, 3, v2")
    a("v_and_b32 v10, 60, v2")
    a("v_and_b32 v11, 1, v9")
    for sh in (1, 2, 4, 8):
        for x in S + Q: a("v_add_f32_dpp v%d, v%d, v%d row_ror:%d row_mask:0xf bank_mask:0xf" % (x, x, x, sh))
    n0 = len(a.it)
    xlane_reduce2(a, "v_add_f32", S[0], S[1], t)
    xlane_reduce2(a, "v_add_f32", Q[0], Q[1], t)
    for r in range(2):
        a("v_mul_f32 v%d, 0x%x, v%d" % (S[r], f2u(1.0 / 448), S[r]))
        a("v_mul_f32 v%d, 0x%x, v%d" % (Q[r], f2u(1.0 / 448), Q[r]))
        a("v_fma_f32 v%d, -v%d, v%d, v%d" % (Q[r], S[r], S[r], Q[r]))
        a("v_max_f32 v%d, 0, v%d" % (Q[r], Q[r]))
        a("v_add_f32 v%d, 0x%x, v%d" % (Q[r], f2u(1e-5), Q[r]))
        a("v_rsq_f32 v%d, v%d" % (Q[r], Q[r]))
    a("v_lshl_add_u32 v10, v11, 1, v10")
    for r in range(2):
        a("v_mul_f32 v%d, 0x%x, v%d" % (Q[r], f2u(QSCALE), Q[r]))
        a("v_mul_f32 v%d, v%d, v%d" % (S[r], S[r], Q[r]))
    n1 = len(a.it)
    a("v_lshrrev_b32 v9, 1, v9")
    a("v_mul_u32_u24 v11, 4682, v10")
    a("v_lshrrev_b32 v11, 16, v11")
    a("v_min_u32 v11, 3, v11")
    a("v_mul_u32_u24 v11, %d, v11" % (8192 - 14 * 144))
    a("v_mul_u32_u24 v10, 144, v10")
    a("v_add_u32 v18, v10, v11")
    a("v_lshl_add_u32 v18, v9, 3, v18")
    a("s_lshl_b32 s3, s66, 5")
    a("s_add_u32 s3, s3, %d" % (LN_LDS + 4096))
    a("v_add_u32 v18, s3, v18")
    for r in range(2):
        for d in range(4):
            x = 160 + 4 * r + d
            a("v_lshlrev_b32 v%d, 16, v%d" % (t, x))
            a("v_and_b32 v%d, 0xffff0000, v%d" % (t + 1, x))
            a("v_fma_f32 v%d, v%d, v%d, -v%d" % (t, t, Q[r], S[r]))
            a("v_fma_f32 v%d, v%d, v%d, -v%d" % (t + 1, t + 1, Q[r], S[r]))
            a("v_cvt_pk_bf16_f32 v%d, v%d, v%d" % (x, t, t + 1))
        a("ds_write_b64 v18, %s offset:%d" % (vr(160 + 4 * r, 2), 16 * r))
        a("ds_write_b64 v18, %s offset:%d" % (vr(162 + 4 * r, 2), 16 * r + 144))
    a("v_lshrrev_b32 v11, 3, v2")
    a("v_add_lshl_u32 v11, v11, v2, 4")
    a("v_add_u32 v11, s29, v11")
    a("v_add_u32 v11, %d, v11" % LN_LDS)
    return a.it[:n0], a.it[n0:n1], a.it[n1:]
def xn_store_items():
    a = Items()
    a("v_lshrrev_b32 v9, 3, v2")
    a("v_lshlrev_b32 v9, 8, v9")
    a("v_and_b32 v10, 7, v2")
    a("v_lshl_add_u32 v9, v10, 4, v9")
    a("v_cmp_gt_u32 vcc, 48, v2")
    a("v_mov_b32 v10, %d" % WSZ)
    a("s_lshr_b32 s36, s2, 1")
    a("s_mul_i32 s36, s36, 14336")
    a("v_cndmask_b32 v10, v10, v9, vcc")
    a("s_and_b32 s3, s2, 1")
    a("s_lshl_b32 s3, s3, 7")
    a("s_add_u32 s36, s36, s3")
    a("s_mul_i32 s3, s66, %d" % (14 * 256))
    a("s_add_u32 s36, s36, s3")
    a("s_add_u32 s36, s36, %d" % XN)
    a("buffer_store_dwordx4 v[160:163], v9, s[12:15], s36 offen sc1")
    a("buffer_store_dwordx4 v[164:167], v10, s[12:15], s36 offen offset:2048 sc1")
    a("s_getreg_b32 s39, hwreg(HW_REG_XCC_ID, 0, 4)")
    a("s_mul_i32 s3, s2, %d" % FB)
    a("s_add_u32 s39, s39, 1")
    a("s_add_u32 s3, s3, %d" % FLG)
    a("v_cmp_gt_u32 vcc, 16, v0")
    a("v_mov_b32 v9, %d" % WSZ)
    a("v_mov_b32 v12, 0")
    a("v_cndmask_b32 v9, v9, v1, vcc")
    a("v_mov_b32 v13, 0")
    a("v_mov_b32 v14, 0")
    a("v_mov_b32 v15, 0")
    a("v_writelane_b32 v12, s39, 0")
    a("buffer_store_dwordx4 v[12:15], v9, s[12:15], s3 offen sc1")
    a("s_lshl_b32 s3, s2, 2")
    a("s_add_u32 s3, s3, %d" % PKA)
    a("buffer_store_dword v13, v31, s[12:15], s3 offen sc1")
    return a.it
def fast_items():
    a = Items()
    a("s_mul_i32 s%d, s2, %d" % (S_MYF, FB))
    a("s_add_u32 s%d, s%d, %d" % (S_MYF, S_MYF, FLG))
    a("s_mul_i32 s3, s67, %d" % FB)
    a("s_add_u32 s3, s3, %d" % FLG)
    a("v_and_b32 v9, 31, v2")
    a("v_mul_u32_u24 v9, %d, v9" % (8 * FB))
    a("buffer_load_dword v28, v9, s[12:15], s3 offen sc1 @XC")
    a("s_and_b32 s%d, s2, 15" % S_GRPF)
    a("s_mul_i32 s%d, s%d, %d" % (S_GRPF, S_GRPF, FB))
    a("s_add_u32 s%d, s%d, %d" % (S_GRPF, S_GRPF, FLG))
    b = Items()
    b("s_getreg_b32 s3, hwreg(HW_REG_XCC_ID, 0, 4)")
    b("WAITVM XC")
    b("s_add_u32 s3, s3, 1")
    b("v_cmp_ne_u32 vcc, s3, v28")
    b("v_mov_b32 v28, %d" % WSZ)
    b("s_nop 0")
    if "slow" in E: b("s_mov_b64 vcc, -1")
    b("s_cmp_eq_u64 vcc, 0\ns_cselect_b32 s%d, 1, 0\ns_cselect_b64 vcc, -1, 0" % S_FAST)
    b("v_cndmask_b32 v30, v28, v31, vcc")
    b("v_cndmask_b32 v29, v31, v28, vcc")
    return a.it, b.it
def misc_items():
    a = Items()
    a("s_bfe_u32 s%d, s68, 0x30001" % S_I)
    a("s_lshr_b32 s%d, s68, 4" % S_ROLE)
    a("s_sub_u32 s3, 15, s%d" % S_I)
    a("s_cmp_eq_u32 s%d, 1\ns_cselect_b32 s%d, s3, s%d" % (S_ROLE, S_QB, S_I))
    a("s_mul_i32 s34, s30, %d" % KHS)
    a("s_add_u32 s34, s34, %d" % KV)
    a("s_mul_i32 s3, s27, %d" % (8 * KTS))
    a("s_add_u32 s34, s34, s3")
    a("s_lshr_b32 s3, s66, 1")
    a("s_mul_i32 s3, s3, %d" % (4 * KTS))
    a("s_add_u32 s34, s34, s3")
    a("s_lshl_b32 s3, s28, 14")
    a("s_add_u32 s34, s34, s3")
    a("v_cmp_eq_u32 vcc, 0, v0")
    a("v_mov_b32 v31, %d" % WSZ)
    a("s_and_b32 s79, s68, 7")
    a("v_cndmask_b32 v31, v31, 0, vcc")
    a("s_add_u32 s79, s79, 18")
    a("s_mov_b32 s%d, %d" % (S_PDST, WSZ))
    a("s_lshl_b32 s79, s79, 18")
    a("s_mov_b32 s76, 0x05040100")
    a("s_mov_b32 s77, 0x07060302")
    a("v_add_u32 v%d, s24, v1" % V_DMA)
    return a.it

def acc(i, j): return ar(4 * (8 * i + j))
def fa(buf, i): return vr(V_F[buf] + 4 * i)
def fw(buf, j): return V_F[buf] + 32 + 4 * j
def reads(t):
    buf = t & 1; r = []; ws = (t & 3) * 16384
    for j in range(8):
        b = fw(buf, j)
        r.append("ds_read_b64_tr_b16 v[%d:%d], v%d offset:%d" % (b, b + 1, V_RW + j, ws))
        r.append("ds_read_b64_tr_b16 v[%d:%d], v%d offset:%d" % (b + 2, b + 3, V_RW + j, ws + 2048))
        r.append("ds_read_b128 %s, v%d offset:%d" % (fa(buf, j), V_RAC + (t & 1), 2048 * j))
    return r
def dmaW(t):
    return (["s_add_u32 m0, s24, %d" % ((t & 3) * 16384)],
            ["buffer_load_dwordx4 v%d, s[8:11], s20 offen offset:%d%s lds @W%d" % (V_VW + j, j * 1024, WFL, t) for j in range(4)],
            ["s_add_u32 s20, s20, 262144"])
def dmaA(j, half):
    post = []
    if half == 1:
        post = ["s_add_u32 s21, s21, 128", "s_add_u32 s22, s22, 32768",
                "s_cmp_eq_u32 s22, %d\ns_cselect_b32 s22, %d, s22" % (LDS_END, LDS_A)]
    return (["s_add_u32 m0, s22, s%d" % (37 if half == 0 else 29)],
            ["buffer_load_dwordx4 v%d, s[4:7], s21 offen offset:%d%s lds @A%d" % (V_VA + 4 * half + k, k * 1024, AFL, j) for k in range(4)], post)
def dmaQ(k):
    return (["s_add_u32 s39, s38, %d" % (k * 16384), "s_add_u32 m0, s24, %d" % (QUNIT[k] * 1024)],
            ["buffer_load_dwordx4 v%d, s[12:15], s39 offen offset:%d lds%s @Q%d" % (V_DMA, j * 1024, DMAFL, k) for j in range(4)], [])
def xn_load(m):
    s_, qb = m >> 1, m & 1
    return ("buffer_load_dwordx4 %s, v%d, s[12:15], s%d offen offset:%d sc1 @X%d" % (xn_reg(qb, s_), 5 if qb else 1, (36, 35, 72, 73)[s_ >> 2], (s_ & 3) * 1024, m), 2)

def half_step(a, t, isK, vm, groups, doR=True, first=False, inject=(), wait=None, pre=(), fixed=(), rng=None):
    buf = t & 1
    mf = []
    for i in range(8):
        for j in (range(8) if i & 1 == 0 or "nochain" in E else range(7, -1, -1)):
            ws = vr(fw(buf, j)); c = acc(i, j); src = "0" if first else c
            mf.append(MF(c, ws, fa(buf, i), src) if isK else MF(c, fa(buf, i), ws, src))
    sc = Sched(mf)
    sc.at(-1, wait if wait else "WAITVM W%d,A%d lgkmcnt(0)" % (t + 1, (t + 1) // 2))
    sc.at(-1, "s_barrier")
    sc.free[63] -= 2
    for s, c in pre: sc.at(2, s, c)
    if doR:
        if (t + 1) & 1 == 0:
            sc.at(0, "s_add_u32 s25, s25, 32768")
            sc.at(1, "s_cmp_eq_u32 s25, %d\ns_cselect_b32 s25, %d, s25" % (LDS_END, LDS_A), 2)
            sc.at(5, "v_add_u32 v%d, s25, v%d" % (V_RAC, V_RA))
            sc.at(6, "v_add_u32 v%d, s25, v%d" % (V_RAC + 1, V_RA + 1))
        for n, s in enumerate(reads(t + 1)): sc.at(3 + 2 * n, s)
    ng = len(groups)
    if ng:
        span = 56 // ng
        step = (span // 4) & ~1
        for gi, (p0, ld, post) in enumerate(groups):
            pos = 4 + ((gi * span) & ~1)
            for s in p0: sc.at(pos - 1, s)
            for n in range(4): sc.at(pos + step * n, ld[n], 2)
            g = pos + step * 3 + 1
            for s in post:
                c = 1 + s.count("\n")
                g = sc.first_free(g, c); sc.at(g, s, c)
    for g, s, c in fixed: sc.at(g, s, c)
    if not rng: rng = (3 if not fixed else max(g for g, _, _ in fixed) + 1, 62)
    if inject: sc.flow(list(inject), rng[0], rng[1], vd=1)
    for s in sc.seq():
        s = vm.see(s)
        if s: a(s)
    return sc.overflow()

def std_groups(t):
    g = []
    if t + 4 <= 31: g.append(dmaW(t + 4))
    if t <= 26: g.append(dmaA((t + 5) // 2, (t + 1) & 1))
    return g

def emit_group(a, vm, g):
    for s in g[0]: a(s)
    a("s_nop 0")
    for s in g[1] + g[2]: a(vm.see(s))

def prologue(a, st, endlabel):
    a.label("M_begin")
    if st.on: a("s_memrealtime s[98:99]")
    a("s_cmp_ge_u32 s2, 256")
    a("s_cbranch_scc1 %s" % endlabel)
    a("""
    s_load_dwordx16 s[40:55], s[0:1], 0
    s_load_dwordx8 s[56:63], s[0:1], 64
    s_load_dwordx2 s[64:65], s[0:1], 96
    v_lshrrev_b32 v5, 6, v0
    v_and_b32 v2, 63, v0
    v_readfirstlane_b32 s66, v5
    v_lshlrev_b32 v1, 4, v2
    s_and_b32 s67, s2, 7
    s_lshr_b32 s68, s2, 3
    s_and_b32 s3, s68, 1
    s_lshl_b32 s30, s67, 1
    s_add_u32 s30, s30, s3
    s_bfe_u32 s28, s68, 0x10001
    s_lshr_b32 s27, s68, 2
    """)
    if st.on: a("v_mov_b32 v3, 0")
    if WARM:
        code_srd(a, 20, 24, 0)
        a("buffer_load_dword v8, v1, s[20:23], s24 offen")
    a("v_lshrrev_b32 v9, 3, v2")
    a("v_lshrrev_b32 v10, 4, v2")
    a("v_and_b32 v11, 7, v2")
    a("s_lshl_b32 s3, s66, 6")
    a("v_add_u32 v9, s3, v9")
    a("v_lshlrev_b32 v9, 11, v9")
    a("v_xor_b32 v12, v11, v10")
    a("v_xor_b32 v13, 4, v12")
    a("v_lshl_add_u32 v12, v12, 4, v9")
    a("v_lshl_add_u32 v13, v13, 4, v9")
    for j in range(8):
        a("v_add_u32 v%d, %d, v%d" % (V_VA + j, j * 8 * 2048 - (j & 3) * 1024, 12 + (j & 1)))
    a("v_lshrrev_b32 v9, 5, v2")
    a("v_and_b32 v11, 31, v2")
    a("s_and_b32 s3, s66, 1")
    a("s_lshl_b32 s3, s3, 3")
    a("s_lshl_b32 s38, s66, 3")
    for j in range(4):
        a("v_add_u32 v12, %d, v9" % (2 * j))
        a("v_and_b32 v13, 3, v12")
        a("v_lshlrev_b32 v13, 1, v13")
        a("v_or_b32 v13, s3, v13")
        a("v_xor_b32 v13, v13, v11")
        a("v_add_u32 v12, s38, v12")
        a("v_lshlrev_b32 v12, 13, v12")
        a("v_lshl_add_u32 v12, v13, 4, v12")
        a("v_subrev_u32 v%d, %d, v12" % (V_VW + j, j * 1024))
    a("""
    s_mov_b32 s20, 0
    s_mov_b32 s21, 0
    s_mov_b32 s22, %d
    s_lshl_b32 s37, s66, 13
    s_add_u32 s29, s37, 4096
    s_lshl_b32 s24, s66, 12
    s_waitcnt lgkmcnt(0)
    s_lshl_b32 s3, s27, 19
    s_add_u32 s4, s42, s3
    s_addc_u32 s5, s43, 0
    s_mov_b32 s6, 524288
    s_mov_b32 s7, 0x00020000
    s_cmp_eq_u32 s28, 0
    s_cselect_b32 s8, s46, s48
    s_cselect_b32 s9, s47, s49
    s_lshl_b32 s3, s30, 9
    s_add_u32 s8, s8, s3
    s_addc_u32 s9, s9, 0
    s_sub_u32 s10, 8388608, s3
    s_mov_b32 s11, 0x00020000
    """ % LDS_A)
    if st.on: a("v_writelane_b32 v3, s98, %d" % st.idx("entry"))
    st.rt(a, "start")
    vm = VM()
    a("s_mov_b32 s72, s40\ns_mov_b32 s73, s41\ns_mov_b32 s74, 1835008\ns_mov_b32 s75, 0x00020000")
    a("s_lshl_b32 s3, s2, 2")
    a("s_add_u32 s3, s3, s66")
    a("s_mul_i32 s3, s3, %d" % (2 * 896))
    a("v_cmp_gt_u32 vcc, 56, v2")
    a("v_mov_b32 v12, 0x7fffffff")
    a("s_nop 0")
    a("v_cndmask_b32 v12, v12, v1, vcc")
    a(vm.see("buffer_load_dwordx4 v[160:163], v12, s[72:75], s3 offen @X"))
    a(vm.see("buffer_load_dwordx4 v[164:167], v12, s[72:75], s3 offen offset:896 @X"))
    for g in (dmaA(0, 0), dmaW(0), dmaA(0, 1)): emit_group(a, vm, g)
    if "pst" in E: st.rt(a, "p16")
    a("s_mov_b32 s12, s64\ns_mov_b32 s13, s65\ns_mov_b32 s14, %d\ns_mov_b32 s15, 0x00020000" % WSZ)
    a("v_and_b32 v11, 15, v2")
    a("v_lshrrev_b32 v12, 2, v11")
    a("v_and_b32 v13, 1, v10")
    a("v_lshl_or_b32 v13, v13, 2, v12")
    a("v_lshl_add_u32 v12, v10, 3, v12")
    a("v_lshlrev_b32 v12, 9, v12")
    a("v_and_b32 v14, 3, v11")
    a("v_lshl_add_u32 v12, v14, 3, v12")
    a("s_and_b32 s3, s66, 1")
    a("s_lshl_b32 s3, s3, 8")
    a("v_add_u32 v12, s3, v12")
    for nb in range(8):
        a("v_xor_b32 v14, %d, v13" % nb)
        a("v_lshl_add_u32 v%d, v14, 5, v12" % (V_RW + nb))
    a("v_lshrrev_b32 v12, 1, v11")
    a("v_xor_b32 v12, v12, v10")
    a("v_lshlrev_b32 v12, 4, v12")
    a("v_lshl_add_u32 v12, v11, 7, v12")
    a("s_lshr_b32 s3, s66, 1")
    a("s_lshl_b32 s3, s3, 14")
    a("v_add_u32 v%d, s3, v12" % V_RA)
    a("v_xor_b32 v%d, 64, v%d" % (V_RA + 1, V_RA))
    a("s_mov_b32 s25, %d" % LDS_A)
    a("v_add_u32 v%d, s25, v%d" % (V_RAC, V_RA))
    a("v_add_u32 v%d, s25, v%d" % (V_RAC + 1, V_RA + 1))
    a("v_lshlrev_b32 v28, 2, v10")
    a("v_lshlrev_b32 v29, 3, v11")
    a("v_and_b32 v12, 3, v11")
    a("v_lshlrev_b32 v12, 5, v12")
    a("v_lshrrev_b32 v11, 2, v11")
    a("v_lshl_add_u32 v30, v11, 3, v12")
    a("s_mov_b32 s0, s49")
    a("s_lshr_b32 s49, s68, 1")
    a("s_lshl_b32 s49, s49, 2")
    a("s_add_u32 s49, s49, s66")
    a("s_mov_b32 s16, s62\ns_mov_b32 s17, s63\ns_mov_b32 s18, 256\ns_mov_b32 s19, 0x00020000\ns_mov_b32 s64, s60\ns_mov_b32 s65, s61")
    if TOUCH:
        a("s_bitcmp1_b32 s68, 4")
        a("s_cselect_b32 s60, s48, s46")
        a("s_cselect_b32 s61, s0, s47")
        a("s_and_b32 s36, s68, 15")
        a("s_lshl_b32 s36, s36, 16")
        a("s_lshl_b32 s39, s67, 10")
        a("s_add_u32 s36, s36, s39")
        a("s_add_u32 s36, s36, %d" % (TLEAD * 128 * 8192))
        a("s_lshl_b32 s39, s68, 1")
        a("s_add_u32 s39, s39, s66")
        a("s_lshl_b32 s39, s39, 16")
        a("s_add_u32 s39, s39, %d" % (TLEAD * 256))
        a("v_lshrrev_b32 v6, 3, v2")
        a("v_lshlrev_b32 v6, 13, v6")
        a("v_and_b32 v7, 7, v2")
        a("v_lshl_add_u32 v6, v7, 7, v6")
        a("v_lshrrev_b32 v7, 1, v2")
        a("v_lshlrev_b32 v7, 11, v7")
        a("v_and_b32 v12, 1, v2")
        a("v_lshl_add_u32 v7, v12, 7, v7")
        a("s_mov_b32 s53, %d" % (128 * 8192))
        a("s_mov_b32 s62, 8388608")
        a("s_cmp_lt_u32 s66, 2")
        a("s_cselect_b32 s60, s42, s60")
        a("s_cselect_b32 s61, s43, s61")
        a("s_cselect_b32 s62, 4194304, s62")
        a("s_cselect_b32 s36, s39, s36")
        a("s_cselect_b32 s53, 256, s53")
        a("s_cselect_b64 vcc, -1, 0")
        a("s_mov_b32 s63, 0x00020000")
        a("v_cndmask_b32 v6, v6, v7, vcc")
        a("v_add_u32 v6, s36, v6")
        a("s_and_b32 s52, s68, 3")
        a("s_cmp_eq_u32 s66, 3")
        a("s_cselect_b32 s52, 7, s52")
        if "tw" in E: a("s_cmp_lt_u32 s66, 2\ns_cselect_b32 s52, 7, s52")
    pack_decode(a, 0)
    code_srd(a, 44, 48, 1)
    if "pst" in E: st.rt(a, "p28")
    for g in (dmaW(1), dmaA(1, 0), dmaA(1, 1), dmaW(2))[:NPRE]: emit_group(a, vm, g)
    if "pst" in E: st.rt(a, "p36")
    a(vm.see("WAITVM W0,A0"))
    a("s_barrier")
    for s in reads(0): a(s)
    st.rt(a, "gemm_start")
    return vm

def kv_off(isK, n):
    x, y = n >> 2, n & 3
    if isK: return 4 * (8 * x + 2 * y), 4 * (8 * x + 2 * y + 1), (x >> 1) * KTS + (x & 1) * 8192 + y * 1024
    ip, j = x >> 1, (x & 1) * 4 + y
    return 4 * (8 * (2 * ip) + j), 4 * (8 * (2 * ip + 1) + j), ip * KTS + j * 1024
def kv_hold(n): return 208 + 4 * (n % 12)
def kv_store(isK, n):
    off = kv_off(isK, n)[2]
    it = [("s_add_u32 s90, s91, %d" % off, 1)] if (n & 3) == 0 else []
    return it + [("buffer_store_dwordx4 %s, v1, s[12:15], s90 offen offset:%d sc1 @KV%d" % (vr(kv_hold(n)), (n & 3) * 1024, 1 if n < 16 else 2), 2)]
def kv_conv(isK, n, r):
    t0, t1, off = kv_off(isK, n)
    it = [("v_accvgpr_read_b32 v%d, a%d" % (r + q, t0 + q), 1) for q in range(4)]
    it += [("v_accvgpr_read_b32 v%d, a%d" % (r + 4 + q, t1 + q), 1) for q in range(4)]
    it += [("v_cvt_pk_bf16_f32 v%d, v%d, v%d" % (kv_hold(n) + q, r + 2 * q, r + 2 * q + 1), 1) for q in range(4)]
    return it

def gemm(a, st, vm0, stubs, qproj):
    import copy
    a("s_cmp_eq_u32 s28, 0")
    a("s_cbranch_scc0 G_V")
    l0, l1, l2 = ln1_items()
    d1 = Items(); pack_decode(d1, 1)
    d2 = Items(); pack_decode(d2, 2)
    ui, ufx = unit_items()
    cnt = {h: 9 + sum(1 for x in ui[h] if x[0].startswith("buffer_") or x[0].startswith("global_")) for h in range(4)}
    vmq = None
    for isK in (True, False):
        nm = "G_K" if isK else "G_V"
        a.label(nm)
        ov = []
        vm = copy.deepcopy(vm0)
        ul = unit_loads(0)
        hinj = {0: l0 + misc_items(), 1: d1.it + l1[:20], 2: l1[20:] + d2.it[:40], 3: l2, 4: xn_store_items() + d2.it[40:], 5: ul}
        for t in hinj: hinj[t] = touch_items(t & 3) + hinj[t]
        for t in range(0, 6):
            fx = [(0, "ds_read_b128 v[160:163], v11", 1), (0, "ds_read_b128 v[164:167], v11 offset:1152", 1), (12, "s_waitcnt lgkmcnt(5)", 1)] if t == 4 else []
            if "hst" in E and t > 0: st.rt(a, "t%d" % t)
            if NPRE == 4: hg = {0: [dmaW(3), dmaA(2, 0), dmaA(2, 1)], 1: [dmaW(4), dmaW(5), dmaA(3, 0)]}
            else: hg = {0: [dmaW(2), dmaW(3), dmaA(2, 0)], 1: [dmaA(2, 1), dmaW(4), dmaW(5)], 2: [dmaA(3, 0), dmaA(3, 1), dmaW(6)]}
            ov.append(half_step(a, t, isK, vm, hg.get(t) or std_groups(t), first=(t == 0), inject=hinj[t], fixed=fx))
        if HEADST: st.rt(a, "t6")
        for k in range(3):
            if "nold" in E and k: a("s_mov_b32 s%d, 0\ns_mov_b32 s%d, 0\ns_mov_b32 s%d, 0" % (U_SRD[k] + 2, U_SRC[k], U_STR[k]))
            if "nost" in E: a("s_mov_b32 s%d, %d" % (U_DST[k], WSZ))
        a("s_mov_b32 s35, 5")
        a("s_branch %s_mid" % nm)
        a(".p2align 4")
        a.label(nm + "_loop")
        vm = VM()
        for t in range(20, 24):
            h = t & 3
            if h == 2: a.label(nm + "_mid")
            pre = [("s_cmp_eq_u32 s20, s79\ns_cbranch_scc1 %s_sig%d\n%s_sigback%d:" % (nm, h, nm, h), 2)]
            stubs.append("%s_sig%d:\nv_mov_b32 v24, 1\nbuffer_atomic_add v24, v31, s[16:19], 0 offen sc1\ns_branch %s_sigback%d" % (nm, h, nm, h))
            ov.append(half_step(a, t, isK, vm, std_groups(t), wait="s_waitcnt vmcnt(%d) lgkmcnt(0)" % (cnt[(h - 1) & 3] + cnt[(h - 2) & 3]), pre=pre, inject=ui[h], fixed=ufx[h], rng=(3, 56)))
        if st.on and "itst" in E:
            for k in range(1, 7): st.idx("it%d" % k)
            a("s_memrealtime s[100:101]")
            a("s_sub_u32 s3, %d, s35" % (st.idx("it1") + 6))
            a("s_waitcnt lgkmcnt(0)")
            a("s_mov_b32 m0, s3")
            a("v_writelane_b32 v3, s100, m0")
        a("s_sub_u32 s35, s35, 1")
        a("s_cmp_lg_u32 s35, 0")
        a("s_cbranch_scc1 %s_loop" % nm)
        st.rt(a, "t24")
        sp = Asm(); sp.uid = 1000 + (0 if isK else 50)
        sp.label(nm + "_spin"); poll(sp, "off", "0", 0, 9, nm + "cnt", val=256, srd="s[16:19]"); sp("s_branch %s_spinback" % nm)
        stubs.append(sp.text())
        su = Items()
        su("s_mul_i32 s38, s%d, %d" % (S_HEAD, WBLK))
        su("s_add_u32 s38, s38, %d" % WQP)
        su("s_sub_u32 s36, 3, s66")
        su("s_cmp_lt_u32 s68, 14\ns_cselect_b32 s26, s36, s66")
        su("s_lshl_b32 s36, s%d, 2" % S_QB)
        su("s_add_u32 s26, s26, s36")
        su("s_mul_i32 s36, s26, %d" % (2 * 14336))
        su("s_add_u32 s36, s36, %d" % XN)
        su("s_add_u32 s35, s36, 4096")
        su("s_add_u32 s72, s36, 8192")
        su("s_add_u32 s73, s36, 12288")
        su("v_add_u32 v5, 14336, v1")
        su("s_and_b32 s3, s66, 1")
        su("s_lshl_b32 s3, s3, %d" % (12 if isK else 13))
        su("s_add_u32 s91, s34, s3")
        k31 = []
        for n in range(6): k31 += kv_conv(isK, n, 8) + (kv_store(isK, n >> 1) if n & 1 else [])
        xl = [xn_load(m) for m in range(28)]
        touch = [("s_and_b32 s3, s49, 7", 1), ("s_lshl_b32 s3, s3, 13", 1), ("s_add_u32 s3, s3, s38", 1), ("s_add_u32 s3, s3, %d" % (10 * 16384), 1),
                 ("v_lshlrev_b32 v24, 3, v1", 1), ("buffer_load_dword v24, v24, s[12:15], s3 offen", 2)]
        def mix(x, y):
            out = []; k = 0
            for n, it in enumerate(x):
                out.append(it)
                while k < len(y) and (k + 1) * len(x) <= (n + 1) * len(y): out.append(y[k]); k += 1
            return out
        tinj = {24: [(code_warm("v24"), 2)] + su.it + [("buffer_load_dword v9, off, s[16:19], 0 sc1 @cnt", 2)],
                26: [("", 2)] * 10 + [("WAITVM cnt", 1), ("v_cmp_gt_u32 vcc, 0x100, v9", 1), ("s_nop 0", 1), ("s_nop 0", 1),
                     ("s_cbranch_vccnz %s_spin\n%s_spinback:" % (nm, nm), 1)] + fast_items()[0],
                28: xl[0:10], 29: xl[10:12] + fast_items()[1] + touch, 31: k31}
        tfix = {30: [(8 * i + 8 + (6 if i < 6 else 4), xl[12 + i][0], 2) for i in range(7)],
                31: [(19, xl[19][0], 2)]}
        tq = {27: [dmaQ(0), dmaQ(1)], 28: [dmaQ(2)], 29: [dmaQ(3), dmaQ(4)], 30: [dmaQ(5), dmaQ(6)], 31: [dmaQ(7), dmaQ(8)]}
        for t in range(24, 32):
            if "tst" in E and t > 24: st.rt(a, "t%d" % t)
            ov.append(half_step(a, t, isK, vm, std_groups(t) + tq.get(t, []), doR=(t < 31), inject=tinj.get(t, []), fixed=tfix.get(t, [])))
        if isK: print("gemm overflow", ov)
        st.rt(a, "gemm_end")
        for n in range(6, 16):
            for s_, c_ in kv_conv(isK, n, 96 + 8 * (n & 3)) + (kv_store(isK, {8: 3, 13: 4}[n]) if n in (8, 13) else []): a(vm.see(s_))
        st.rt(a, "epi_end")
        qproj(a, st, vm, isK, stubs)
        if isK: a("s_branch G_done")
        vmq = vm
    a.label("G_done")
    return vmq
```

```python
from common import *
from gemm import x_own_off, frag8_voff, frag8_soff
from attn import *
import os

def publish(a, off):
    sk = a.newlabel("pub")
    a("s_cmp_eq_u32 s%d, 1" % S_FAST)
    a("s_waitcnt vmcnt(0)")
    a("s_barrier")
    a("s_cbranch_scc1 %s" % sk)
    a("buffer_wbl2 sc1")
    a("s_waitcnt vmcnt(0)")
    a.label(sk)
    for x in sig(off): a(x)
def acquire(a, n, off, name):
    sk = a.newlabel("acq")
    grp_voff(a, 12, n)
    poll(a, "v12", "s%d" % S_GRPF, off, 13, name)
    a("s_cmp_eq_u32 s%d, 1" % S_FAST)
    a("s_cbranch_scc1 %s" % sk)
    a("buffer_inv sc1")
    a("s_waitcnt vmcnt(0)")
    a.label(sk)

NWO = 2; WR1 = (8, 9, 10)[:int(os.environ.get('WR1', 0))]
R1_X = 16; R1_X0 = 112; R1_ACC = 32; R1_L = 128
XLDS = 131072 + 1024
def r1_x_items():
    a = Items()
    a("s_lshl_b32 s25, s%d, 4" % S_R)
    a("s_add_u32 s25, s25, s%d" % S_M)
    for x in ("s_mov_b32 s8, s%d" % S_PX, "s_mov_b32 s9, s%d" % (S_PX + 1), "s_mov_b32 s10, %d" % (2048 * 896), "s_mov_b32 s11, 0x00020000"): a(x)
    a("v_cmp_gt_u32 vcc, 56, v2")
    a("v_mov_b32 v10, 0x7fffffff")
    a("s_lshl_b32 s3, s25, 2")
    a("s_add_u32 s3, s3, s66")
    a("v_cndmask_b32 v10, v10, v1, vcc")
    a("s_mul_i32 s3, s3, %d" % (2 * 896))
    a("buffer_load_dwordx4 %s, v10, s[8:11], s3 offen @X" % vr(R1_X0))
    a("buffer_load_dwordx4 %s, v10, s[8:11], s3 offen offset:896 @X" % vr(R1_X0 + 4))
    b = Items()
    b("v_and_b32 v10, 60, v2")
    b("v_and_b32 v11, 1, v2")
    b("v_lshl_add_u32 v10, v11, 1, v10")
    b("v_bfe_u32 v11, v2, 1, 1")
    b("v_mul_u32_u24 v10, 144, v10")
    b("v_lshl_add_u32 v10, v11, 3, v10")
    b("s_lshl_b32 s3, s66, 5")
    b("s_add_u32 s3, s3, %d" % XLDS)
    b("v_add_u32 v10, s3, v10")
    b("WAITVM X")
    for r in range(2):
        b("ds_write_b64 v10, %s offset:%d" % (vr(R1_X0 + 4 * r, 2), 16 * r))
        b("ds_write_b64 v10, %s offset:%d" % (vr(R1_X0 + 4 * r + 2, 2), 16 * r + 144))
    c = Items()
    c("v_lshrrev_b32 v10, 3, v0")
    c("v_add_lshl_u32 v10, v10, v0, 4")
    c("v_add_u32 v10, %d, v10" % XLDS)
    c("ds_read_b128 %s, v10" % vr(R1_X0))
    c("ds_read_b128 %s, v10 offset:%d" % (vr(R1_X0 + 4), 32 * 144))
    return a.it, b.it, c.it
def r1_pre(a):
    frag8_voff(a, 9, 11)
    frag8_soff(a, 25, PO, 38, 39)
    a("s_mov_b32 s%d, %d" % (S_B6, ALT))
    a("s_cmp_eq_u32 s%d, 1\ns_cselect_b32 s%d, %d, s%d" % (S_FAST, S_B6, PO + 10 * POH, S_B6))
    a("s_sub_u32 s3, 23, s%d" % S_R)
    a("s_cmp_ge_u32 s%d, 8\ns_cselect_b32 s28, s3, s%d" % (S_R, S_R))
    a("s_mul_i32 s28, s28, %d" % (16 * FB))
    a("s_add_u32 s28, s28, %d" % FLG)
    a("v_min_u32 v12, 15, v2")
    a("v_mul_u32_u24 v12, %d, v12" % FB)

def r1_unpack_x(a):
    for d in range(8):
        a("v_lshlrev_b32 v%d, 16, v%d" % (R1_ACC + 2 * d, R1_X0 + d))
        a("v_and_b32 v%d, 0xffff0000, v%d" % (R1_ACC + 2 * d + 1, R1_X0 + d))
def oproj(a, st, stubs):
    vm = VM(); vm.ops = ["T1"] * 8 + ["T2"] * 8
    chk = "v_and_b32 v124, v124, v125\nv_and_b32 v126, v126, v127\nv_and_b32 v124, v124, v126\nv_cmp_ne_u32 vcc, 1, v124\n"
    a("s_waitcnt vmcnt(8)")
    a(chk)
    p4_wbase(a)
    a("s_cbranch_vccnz OP_pk")
    a.label("OP_pkback")
    stubs.append("OP_pk:\ns_mov_b32 s3, 0x20000\ns_mov_b32 s29, %d\nOP_pkl:\nbuffer_load_dwordx4 v[124:127], v1, s[12:15], s29 offen sc1\ns_waitcnt vmcnt(0)\n" % PKA
                 + chk + "s_sub_u32 s3, s3, 1\ns_cbranch_scc1 OP_pkback\ns_nop 1\ns_cbranch_vccnz OP_pkl\ns_branch OP_pkback")
    xa, xb, xc = r1_x_items()
    i0 = Items()
    i0("s_mul_i32 s%d, s%d, %d" % (S_ST, S_HEAD, POH))
    i0("s_mul_i32 s3, s%d, %d" % (S_RW, 2 * 14336))
    i0("s_add_u32 s%d, s%d, s3" % (S_ST, S_ST))
    i0("s_add_u32 s%d, s%d, %d" % (S_ST, S_ST, PO))
    i0("v_add_u32 v%d, 14336, v1" % V_T2)
    i1 = Items(); r1_pre(i1)
    cost2 = lambda it: [(x, 2 if x.startswith("buffer_") else c) for x, c in it]
    W = p4_wload_items
    wl = [x for t in range(NWO) for x in W(t)]
    for k in range(7):
        p = (k + 1) & 1
        mf = []
        for s_ in range(8):
            for e in range(4):
                for qb in range(2):
                    d = vr(op_acc(p, e, qb))
                    mf.append(MF(d, Fr(4 * s_ + e), vr(V_CTX + 4 * (8 * qb + s_)), "0" if s_ == 0 else d))
        sc = Sched(mf)
        ring_fixed(sc, p, vm="WAITVM T%d%s" % (k + 1, ",S3" if k == 5 else ""), tag=" @T%d" % (k + 3), kpos=(5, 13, 21, 29) if k == 0 else (5, 9, 13, 17), vpos=(49, 53, 57, 61))
        if k == 5: sc.at(51, "buffer_store_dword v14, v31, s[12:15], s%d offen offset:%d sc1" % (S_MYF, O_PO1), 2)
        if k == 6: sc.at(59, flag_load("v12", "s28", O_PO1, 13) + " @F1", 2)
        for g in ((3, 9, 17, 25, 33, 37, 41, 45) if k == 0 else ()):
            if not wl: break
            if not wl[0][0].startswith("buffer_"): sc.at(g - 2, wl.pop(0)[0])
            sc.at(g, wl.pop(0)[0], 2)
        if k:
            fl = op_flush_items(1 - p, k - 1)
            sp_ = [21, 29, 37, 45]
            for x, g in zip([x for x, c in fl if x.startswith("buffer_")], sp_): sc.at(g, x, 2, last=True)
            g = 1
            for x, c in fl:
                if x.startswith("buffer_"): sp_.pop(0)
                else: g = sc.at(sc.first_free(max(g, 3 if x.startswith("v_") else 1), 1, sp_[0]), x)
        if k == 0: sc.flow(i0.it + xa[:-2], 4, 50)
        if k == 0:
            sc.at(59, xa[-2][0], 2); sc.at(62, xa[-1][0], 2)
        if k in (1, 2): sc.flow(i1.it[:12] if k == 1 else i1.it[12:], 46, 62)
        if k == 3: sc.flow(xb, 46, 63)
        if k == 5: sc.flow(xc, 48, 62)
        print("oproj overflow", k, sc.overflow())
        sc.emit(a, vm)
        if "ost" in E: st.rt(a, "o%d" % (k + 1))
    r1_unpack_x(a)
    for x, c in op_flush_items(1, 6): a(vm.see(x))
    st.rt(a, "oproj_end")
    return vm

def r1_ld(h, second):
    it = ["buffer_load_dwordx4 %s, v9, s[12:15], s%d offen sc1 @P%d" % (vr((128 if second else 192) + 4 * h), 39 if second else 38, h + 16 * second)]
    if h < 15: it.append("s_add_u32 s%d, s%d, %s" % ((39, 39, "s36") if second else (38, 38, str(POH))))
    return it
def r1_acc(a, vm, second):
    for h in range(16):
        a(vm.see("WAITVM P%d" % (h + 16 * second)))
        for d in range(4):
            r = (128 if second else 192) + 4 * h + d
            a("v_lshlrev_b32 v%d, 16, v%d" % (48 + 2 * d, r))
            a("v_and_b32 v%d, 0xffff0000, v%d" % (49 + 2 * d, r))
        for d in range(4):
            o = R1_ACC + 8 * second + 2 * d
            a("v_pk_add_f32 %s, %s, %s" % (vr(o, 2), vr(o, 2), vr(48 + 2 * d, 2)))
def r1_extras(a, vm):
    t3 = Asm(); hoist_tile3(t3)
    for l in t3.lines: a(vm.see(l.strip()))
    for t in WR1:
        for x, c in p4_wload_items(t): a(vm.see(x))
def r1_stage1(a, st, vm):
    po2 = "buffer_store_dword v14, v31, s[12:15], s%d offen offset:%d sc1" % (S_MYF, O_PO)
    a(vm.see("WAITVM F1"))
    a("v_cmp_ne_u32 vcc, 1, v13")
    a("s_nop 2")
    a("s_cbranch_vccnz R1_late")
    for h in range(8):
        for x in r1_ld(h, 0): a(x.split("@")[0])
    a("s_waitcnt vmcnt(8)")
    a("s_barrier")
    a(po2)
    st.rt(a, "po_pub")
    a("s_branch R1_join")
    a.label("R1_late")
    a("s_waitcnt vmcnt(0)")
    a("s_barrier")
    a(po2)
    st.rt(a, "po_pub")
    poll(a, "v12", "s28", O_PO1, 13, "fpo1")
    for h in range(8):
        for x in r1_ld(h, 0): a(x.split("@")[0])
    a.label("R1_join")
    st.rt(a, "po1_ready")
    vm = VM(); vm.ops = ["P%d" % h for h in range(8)]
    for h in range(8, 16):
        for x in r1_ld(h, 0): a(vm.see(x))
    r1_acc(a, vm, 0)
    if "ex2" not in E: r1_extras(a, vm)
def r1_main(a, lds_off):
    vm = VM()
    a("s_cmp_eq_u32 s66, 3")
    a("s_cselect_b32 s36, 0, %d" % POH)
    for h in range(16):
        for x in r1_ld(h, 1): a(vm.see(x))
    if "ex2" in E: r1_extras(a, vm)
    frag8_soff(a, 25, 4 * POH, 38, 39)
    a("s_cselect_b32 s36, 0, s%d" % S_B6)
    a("s_add_u32 s38, s38, s%d" % S_B6)
    a("s_add_u32 s39, s39, s36")
    r1_acc(a, vm, 1)
    vS, vQ, t = 56, 57, 58
    for d in range(8):
        a("v_cvt_pk_bf16_f32 v%d, v%d, v%d" % (R1_X + d, R1_ACC + 2 * d, R1_ACC + 2 * d + 1))
    a("buffer_store_dwordx4 %s, v9, s[12:15], s38 offen" % vr(R1_X))
    a("buffer_store_dwordx4 %s, v9, s[12:15], s39 offen" % vr(R1_X + 4))
    a("v_mov_b32 v%d, 0x3f803f80" % t)
    a("v_mov_b32 v%d, 0" % vS)
    a("v_mov_b32 v%d, 0" % vQ)
    for d in range(8):
        a("v_dot2_f32_bf16 v%d, v%d, v%d, v%d" % (vS, R1_X + d, t, vS))
        a("v_dot2_f32_bf16 v%d, v%d, v%d, v%d" % (vQ, R1_X + d, R1_X + d, vQ))
    a("v_and_b32 v10, 7, v2")
    a("v_lshlrev_b32 v10, 3, v10")
    a("s_lshl_b32 s3, s66, 6")
    a("v_add_u32 v10, %d, v10" % lds_off)
    a("v_add_u32 v11, s3, v10")
    a("v_add_f32_dpp v%d, v%d, v%d row_ror:8 row_mask:0xf bank_mask:0xf" % (vS, vS, vS))
    a("v_add_f32_dpp v%d, v%d, v%d row_ror:8 row_mask:0xf bank_mask:0xf" % (vQ, vQ, vQ))
    xlane_reduce2(a, "v_add_f32", vS, vQ, t)
    a("ds_write_b64 v11, %s" % vr(vS, 2))
    a("s_waitcnt lgkmcnt(0)")
    a("s_barrier")
    for w in range(4): a("ds_read_b64 %s, v10 offset:%d" % (vr(60 + 2 * w, 2), 64 * w))
    for d in range(8):
        a("v_lshlrev_b32 v%d, 16, v%d" % (R1_ACC + 2 * d, R1_X + d))
        a("v_and_b32 v%d, 0xffff0000, v%d" % (R1_ACC + 2 * d + 1, R1_X + d))
    a("s_add_u32 s38, s38, %d" % POH)
    a("s_cmp_eq_u32 s66, 3")
    a("s_cselect_b32 s36, 0, %d" % POH)
    a("s_add_u32 s39, s39, s36")
    a("s_waitcnt lgkmcnt(0)")
    for k, x in enumerate((vS, vQ)):
        a("v_add_f32 v%d, v%d, v%d" % (x, 60 + k, 62 + k))
        a("v_add_f32 v%d, v%d, v%d" % (64 + k, 64 + k, 66 + k))
        a("v_add_f32 v%d, v%d, v%d" % (x, x, 64 + k))
    a("v_mul_f32 v%d, 0x%x, v%d" % (vS, f2u(1.0 / 448), vS))
    a("v_mul_f32 v%d, 0x%x, v%d" % (vQ, f2u(1.0 / 448), vQ))
    a("v_fma_f32 v%d, -v%d, v%d, v%d" % (vQ, vS, vS, vQ))
    a("v_max_f32 v%d, 0, v%d" % (vQ, vQ))
    a("v_add_f32 v%d, 0x%x, v%d" % (vQ, f2u(1e-5), vQ))
    a("v_rsq_f32 v%d, v%d" % (vQ, vQ))
    a("s_nop 0")
    a("v_mul_f32 v%d, v%d, v%d" % (vS, vS, vQ))
    for d in range(8):
        a("v_fma_f32 v%d, v%d, v%d, -v%d" % (R1_ACC + 2 * d, R1_ACC + 2 * d, vQ, vS))
        a("v_fma_f32 v%d, v%d, v%d, -v%d" % (R1_ACC + 2 * d + 1, R1_ACC + 2 * d + 1, vQ, vS))
        a("v_cvt_pk_bf16_f32 v%d, v%d, v%d" % (72 + d, R1_ACC + 2 * d, R1_ACC + 2 * d + 1))
        if d == 3: a("buffer_store_dwordx4 %s, v9, s[12:15], s38 offen" % vr(72))
    a("buffer_store_dwordx4 %s, v9, s[12:15], s39 offen" % vr(76))

def hn_reg(qb, s): return ar(8 * s + 4 * qb)
def p3_pre(a):
    a("s_lshl_b32 s25, s%d, 2" % S_R)
    a("s_add_u32 s25, s25, s66")
    a("s_mul_i32 s25, s25, %d" % (2 * 14336))
    a("s_add_u32 s25, s25, s%d" % S_B6)
    a("s_cmp_ge_u32 s%d, 7" % S_M)
    a("s_cselect_b32 s3, %d, 0" % (POH - 14336))
    a("s_add_u32 s96, s25, s3")
    a("s_lshl_b32 s3, s%d, 11" % S_M)
    a("s_add_u32 s96, s96, s3")
    a("s_add_u32 s97, s96, %d" % (2 * POH))
    a("s_add_u32 s25, s25, %d" % (5 * POH))
    for k in range(1, 4): a("s_add_u32 s%d, s25, %d" % (34 + k, 4096 * k))
    a("v_add_u32 v11, 14336, v1")
    a("s_mov_b32 s98, 0x%x" % f2u(-math.log2(math.e)))
def hn_load(s, qb):
    return "buffer_load_dwordx4 %s, v%d, s[12:15], s%d offen offset:%d sc1 @H%d" % (hn_reg(qb, s), 11 if qb else 1, (25, 35, 36, 37)[s >> 2], (s & 3) * 1024, s)

def swiglu_items(cb, qb, pk=False):
    G = [Ot(4 * cb + e, qb) for e in range(4)]; U = [Ot(8 + 4 * cb + e, qb) for e in range(4)]
    it = []
    if pk:
        two = lambda r: vr(r, 2)
        for e in range(4):
            for j in (0, 2): it.append(("v_pk_mul_f32 %s, %s, %s" % (two(U[e] + j), two(G[e] + j), two(U[e] + j)), 1))
        for e in range(4):
            for j in (0, 2): it.append(("v_pk_mul_f32 %s, %s, s[98:99] op_sel_hi:[1,0]" % (two(G[e] + j), two(G[e] + j)), 1))
        for e in range(4):
            for j in range(4): it.append(("v_exp_f32 v%d, v%d" % (G[e] + j, G[e] + j), 2))
        for e in range(4):
            for j in (0, 2): it.append(("v_pk_add_f32 %s, %s, 1.0 op_sel_hi:[1,0]" % (two(G[e] + j), two(G[e] + j)), 1))
        for e in range(4):
            for j in range(4): it.append(("v_rcp_f32 v%d, v%d" % (G[e] + j, G[e] + j), 2))
        for e in range(4):
            for j in (0, 2): it.append(("v_pk_mul_f32 %s, %s, %s" % (two(U[e] + j), two(G[e] + j), two(U[e] + j)), 1))
    else:
        el = [(G[e] + j, U[e] + j) for e in range(4) for j in range(4)]
        st_ = [lambda g, u: ("v_mul_f32 v%d, v%d, v%d" % (u, g, u), 1), lambda g, u: ("v_mul_f32 v%d, s98, v%d" % (g, g), 1),
               lambda g, u: ("v_exp_f32 v%d, v%d" % (g, g), 2), lambda g, u: ("v_add_f32 v%d, 1.0, v%d" % (g, g), 1),
               lambda g, u: ("v_rcp_f32 v%d, v%d" % (g, g), 2), lambda g, u: ("v_mul_f32 v%d, v%d, v%d" % (u, g, u), 1)]
        off = (0, 0, 1, 2, 3, 4)
        for k in range(16 + 4):
            for stg in (2, 0, 1, 4, 3, 5):
                n = k - off[stg]
                if 0 <= n < 16: it.append(st_[stg](*el[n]))
    for sp in range(2):
        for d in range(4):
            j = 2 * sp + (d >> 1); e = 2 * (d & 1)
            it.append(("v_cvt_pk_bf16_f32 v%d, v%d, v%d" % (G[sp] + d, U[e] + j, U[e + 1] + j), 1))
        it.append(("buffer_store_dwordx4 %s, v%d, s[12:15], s%d offen offset:%d @AS%d" % (vr(G[sp]), 11 if qb else 1, 96 + cb, sp * 1024, cb), 2))
    return it

P4_ACC = 192
def p4_act(t, rb):
    if t < 4: return ar(48 + 16 * t + 4 * rb)
    if t < 7: return ar(192 + 16 * (t - 4) + 4 * rb)
    if t < 11: return vr(128 + 16 * (t - 7) + 4 * rb)
    if t == 11: return ar(240 + 4 * rb)
    return ar(48 + 16 * (t - 12) + 4 * rb)
def p4_w(t, e):
    if t < 5: return ar(112 + 16 * t + 4 * e)
    if t < 11: return vr(32 + 16 * (t - 5) + 4 * e)
    return ar(16 * (t - 11) + 4 * e)
def p4_wbase(a):
    a("s_min_u32 s86, s%d, 13" % S_M)
    a("s_lshr_b32 s86, s86, 1")
    a("s_mul_i32 s86, s86, %d" % WBLK)
    a("s_mul_i32 s3, s66, %d" % (7 * 4096))
    a("s_add_u32 s86, s86, s3")
    a("s_add_u32 s86, s86, %d" % W2P)
def p4_wload_items(t):
    it = [("s_add_u32 s89, s86, %d" % ((t if t < 7 else t + 21) * 4096), 1)]
    return it + [("buffer_load_dwordx4 %s, v1, s[12:15], s89 offen offset:%d sc1 @W%d" % (p4_w(t, e), e * 1024, t), 2) for e in range(4)]

def hoist_tile3(a):
    a("v_readlane_b32 s%d, v%d, s%d" % (S_KO, V_TABK, S_G3))
    a("v_readlane_b32 s%d, v%d, s%d" % (S_VO, V_TABV, S_G3))
    a("s_add_u32 m0, s%d, 16384" % S_WQ)
    a("s_nop 3")
    for j in range(4): a("buffer_load_dwordx4 v%d, s[12:15], s%d offen offset:%d lds" % (V_DMA, S_KO, j * 1024))
    a("s_add_u32 m0, s%d, %d" % (S_WQ, 16384 + 65536))
    a("s_nop 0")
    for j in range(4): a("buffer_load_dwordx4 v%d, s[12:15], s%d offen offset:%d lds" % (V_DMA, S_VO, j * 1024))

def gateup(a, st, vm, stubs, hloads):
    sw = swiglu_items(0, 0) + swiglu_items(0, 1)
    lq = [hn_load(s_, qb) for s_ in range(5, 14) for qb in range(2)] + [x for t in range(NWO, 11) if t not in WR1 for x, c_ in p4_wload_items(t)] + hloads
    lq += [None] + [x for t in (11, 12, 13) for x, c_ in p4_wload_items(t)]
    pos = 0
    for c in range(7):
        mf = []
        for n in range(32):
            q = 4 * c + (n >> 3); cb, s = divmod(q, 14)
            for qb in range(2):
                d = vr(Ot(8 * ((n >> 2) & 1) + 4 * cb + (n & 3), qb))
                mf.append(MF(d, Fr(n), hn_reg(qb, s), "0" if s == 0 else d))
        sc = Sched(mf)
        ring_fixed(sc, c & 1, vm="WAITVM T%d" % (c + 1) if c < 6 else "WAITVM AS0", dma=(1 <= c < 4), nxt=(c < 6), tag=" @T%d" % (c + 3), paired=(c >= 4), kpos=(5, 13, 21, 29), vpos=(49, 53, 57, 61))
        for k in range(4):
            q = 4 * c + k
            if q < 14: sc.at(16 * k - 1, "WAITVM H%d" % q, last=True)
        if c == 6:
            sc.at(48, "s_cmp_eq_u32 s%d, 1\ns_cbranch_scc0 GU_wb\nGU_wbback:" % S_FAST, 2)
            stubs.append("GU_wb:\nbuffer_wbl2 sc1\ns_waitcnt vmcnt(0)\ns_branch GU_wbback")
            for k in range(2): sc.at(49 + k, sig(O_A0)[k], 2)
        slots = {0: range(1, 62, 4), 1: (1, 9, 17, 25, 33, 37, 41, 45), 2: (1, 9, 17, 25, 33, 37, 41, 45), 3: (1, 9, 17, 25, 33, 37, 41, 45),
                 4: range(1, 62, 4), 5: range(1, 62, 4), 6: (53, 57, 61, 63)}[c]
        for g in slots:
            if not lq or (lq[0] is None and c < 5): break
            if lq[0] is None: lq.pop(0)
            if c == 5 and len(lq) <= 5: break
            if not lq[0].startswith("buffer_"): sc.at(max(g - 1, 0) if c < 4 else g + 0, lq.pop(0))
            sc.at(g, lq.pop(0), 2)
        if c >= 3:
            g = 36 if c == 3 else 0
            lim = 63 if c < 6 else 44
            if c >= 4:
                for gg in range(7, lim, 8): sc.free[gg] += 1
                for gg in range(0, lim, 4): sc.free[gg] += 2 if (c < 6 or gg % 8 == 4) else 0
            while pos < len(sw):
                x, cost = sw[pos]
                g2 = sc.first_free(g, cost, lim)
                if g2 >= lim and c < 6: break
                sc.at(g2, x, cost); g = g2; pos += 1
        print("gateup overflow", c, sc.overflow(), pos, len(sw))
        sc.emit(a, vm)
        if "gst" in E and c < 6: st.rt(a, "g%d" % (c + 1))
    assert not lq, lq

def _unused(): pass
def p4_hloads(a):
    a("s_and_b32 s3, s%d, 1" % S_M)
    a("s_lshl_b32 s3, s3, 2")
    a("s_lshl_b32 s87, s%d, 3" % S_R)
    a("s_add_u32 s87, s87, s3")
    a("s_add_u32 s88, s87, s66")
    a("s_mul_i32 s39, s88, 14336")
    a("s_lshr_b32 s3, s%d, 1" % S_M)
    a("s_lshl_b32 s3, s3, 11")
    a("s_add_u32 s39, s39, s3")
    a("s_add_u32 s39, s39, s%d" % S_B6)
    a("s_add_u32 s39, s39, %d" % (4 * POH))
    a("v_lshrrev_b32 v9, 5, v2")
    a("v_lshlrev_b32 v9, 10, v9")
    a("v_bfe_u32 v10, v2, 4, 1")
    a("v_lshl_add_u32 v9, v10, 3, v9")
    a("v_and_b32 v10, 15, v2")
    a("v_lshl_add_u32 v9, v10, 4, v9")
    return ["buffer_load_dwordx2 %s, v9, s[12:15], s39 offen offset:%d sc1" % (vr(16 + 2 * gp, 2), gp * 256) for gp in range(4)]
def p4_pre(a):
    a("s_mul_i32 s90, s87, 14336")
    a("s_lshr_b32 s3, s66, 1")
    a("s_mul_i32 s3, s3, %d" % POH)
    a("s_add_u32 s90, s90, s3")
    a("s_and_b32 s3, s66, 1")
    a("s_mul_i32 s3, s3, 7168")
    a("s_add_u32 s90, s90, s3")
    a("s_add_u32 s90, s90, s%d" % S_B6)
    for rb in range(4):
        a("s_add_u32 s3, s66, %d" % rb)
        a("s_and_b32 s3, s3, 3")
        if rb: a("s_mul_i32 s%d, s3, 12288" % (69 + rb))
        a("s_mul_i32 s3, s3, 14336")
        a("v_add_u32 v%d, s3, v1" % (24 + rb))
    a("s_mov_b32 s8, s%d\ns_mov_b32 s9, s%d\ns_mov_b32 s10, %d\ns_mov_b32 s11, 0x00020000" % (S_POUT, S_POUT + 1, 2048 * 896))
    a("s_mul_i32 s38, s88, %d" % (16 * 896))
    a("s_lshr_b32 s3, s%d, 1" % S_M)
    a("s_lshl_b32 s3, s3, 7")
    a("s_add_u32 s38, s38, s3")
    a("v_and_b32 v10, 15, v2")
    a("v_mul_u32_u24 v10, 896, v10")
    a("v_lshrrev_b32 v15, 4, v2")
    a("v_lshl_add_u32 v10, v15, 5, v10")
    a("s_mul_i32 s3, s66, 12288")
    a("v_add_u32 v15, s3, v1")
def act_load_items(t):
    k = t % 7
    it = [("s_add_u32 s91, s90, %d" % ((k & 4) * 1024 + (2 * POH if t >= 7 else 0)), 1)] if k in (0, 4) else []
    return it + [("buffer_load_dwordx4 %s, v%d, s[12:15], s91 offen offset:%d sc1 @A%d" % (p4_act(t, rb), 24 + rb, (k & 3) * 1024, t), 2) for rb in range(4)]
def p4_step(a, vm, t, fill=()):
    order = [(e, rb) for e in range(4) for rb in range(4)] if t < 13 else [(e, rb) for rb in (1, 2, 3, 0) for e in range(4)]
    fill = list(fill)
    a(vm.see("WAITVM A%d" % t))
    for n, (e, rb) in enumerate(order):
        d = vr(P4_ACC + 4 * (4 * rb + e))
        a(MF(d, p4_w(t, e), p4_act(t, rb), "0" if t == 0 else d))
        if n % 2 == 0 and fill: a(vm.see(fill.pop(0)))
    for x in fill: a(vm.see(x))
def check_flag(a, stubs, off, name):
    a("v_cmp_ne_u32 vcc, 1, v13")
    a("s_cmp_eq_u32 s%d, 1" % S_FAST)
    a("s_cbranch_scc0 %s_slow" % name)
    a("s_cbranch_vccnz %s_slow" % name)
    a.label(name + "_back")
    sp = Asm(); sp.uid = 7000 + off
    sp.label(name + "_slow"); acquire(sp, 14, off, name); sp("s_branch %s_back" % name)
    stubs.append(sp.text())
def p4_main(a, st, vm, stubs):
    grp_voff(a, 12, 14)
    sw = swiglu_items(1, 0, True)
    for n, (x, c) in enumerate(sw):
        if n == 24: a(vm.see(flag_load("v12", "s%d" % S_GRPF, O_A0, 13) + " @F0"))
        a(vm.see(x))
    a(vm.see("WAITVM F0"))
    check_flag(a, stubs, O_A0, "P4a0")
    st.rt(a, "a0_ready")
    ld = [x for t in range(7) for x, c in act_load_items(t)]
    for n, (x, c) in enumerate(swiglu_items(1, 1, True)):
        if n % 4 == 0 and n < 64: a(vm.see(ld.pop(0)))
        a(vm.see(x))
    a(vm.see(ld.pop(0))); a(vm.see(ld.pop(0)))
    p4_step(a, vm, 0, ld[:6]); p4_step(a, vm, 1, ld[6:])
    p4_step(a, vm, 2)
    a("s_cmp_eq_u32 s%d, 1" % S_FAST)
    a(vm.see("WAITVM AS1"))
    a("s_barrier")
    a("s_cbranch_scc0 P4_wb")
    a.label("P4_wbback")
    stubs.append("P4_wb:\nbuffer_wbl2 sc1\ns_waitcnt vmcnt(0)\ns_branch P4_wbback")
    st.rt(a, "act_pub")
    p4_step(a, vm, 3, sig(O_A))
    p4_step(a, vm, 4, ["s_nop 0"] * 3 + [flag_load("v12", "s%d" % S_GRPF, O_A, 13) + " @F1"])
    p4_step(a, vm, 5)
    a(vm.see("WAITVM F1"))
    check_flag(a, stubs, O_A, "P4a1")
    st.rt(a, "act_ready")
    ld = [x for t in range(7, 14) for x, c in act_load_items(t)]
    for x in ld[:9]: a(vm.see(x))
    p4_step(a, vm, 6, ld[9:18])
    p4_step(a, vm, 7, ld[18:24]); p4_step(a, vm, 8, ld[24:])
    hu = []
    for j in range(4):
        for e in range(4):
            src = 16 + 2 * j + (e >> 1)
            hu.append(("v_and_b32 v%d, 0xffff0000, v%d" if e & 1 else "v_lshlrev_b32 v%d, 16, v%d") % (32 + 4 * e + j, src))
    p4_step(a, vm, 9)
    p4_step(a, vm, 10, ["v_add_u32 v%d, s%d, v1" % (24 + rb, 69 + rb) for rb in range(1, 4)])
    p4_step(a, vm, 11, hu[:8]); p4_step(a, vm, 12, hu[8:])
    p4_step(a, vm, 13)
    st.rt(a, "p4_mfma")
    for rb in range(1, 4):
        for e in range(4):
            a("ds_write_b128 v%d, %s offset:%d" % (24 + rb, vr(P4_ACC + 4 * (4 * rb + e)), (rb - 1) * 4096 + e * 1024))
    for k in range(0, 16, 2): a("v_pk_add_f32 %s, %s, %s" % (vr(32 + k, 2), vr(32 + k, 2), vr(P4_ACC + k, 2)))
    a("s_waitcnt lgkmcnt(0)")
    a("s_barrier")
    for w in range(3):
        for e in range(4):
            a("ds_read_b128 %s, v15 offset:%d" % (vr(48 + 16 * w + 4 * e), w * 4096 + e * 1024))
    for w in range(3):
        a("s_waitcnt lgkmcnt(%d)" % (8 - 4 * w))
        for k in range(0, 16, 2): a("v_pk_add_f32 %s, %s, %s" % (vr(32 + k, 2), vr(32 + k, 2), vr(48 + 16 * w + k, 2)))
    for j in range(4):
        a("v_cvt_pk_bf16_f32 v%d, v%d, v%d" % (112 + 2 * j, 32 + j, 36 + j))
        a("v_cvt_pk_bf16_f32 v%d, v%d, v%d" % (113 + 2 * j, 40 + j, 44 + j))
        if j == 1: a("buffer_store_dwordx4 %s, v10, s[8:11], s38 offen" % vr(112))
    a("buffer_store_dwordx4 %s, v10, s[8:11], s38 offen offset:16" % vr(116))

def tail(a, st, stubs):
    vm = oproj(a, st, stubs)
    r1_stage1(a, st, vm)
    st.rt(a, "s1_done")
    poll(a, "v12", "s28", O_PO, 13, "fpo")
    st.rt(a, "po_ready")
    r1_main(a, 131072)
    st.rt(a, "r1_done")
    publish(a, O_H)
    a("s_cmp_ge_u32 s%d, 14" % S_M)
    a("s_cbranch_scc1 M_fin")
    p3_pre(a)
    hl = p4_hloads(a)
    p4_pre(a)
    acquire(a, 16, O_H, "fh")
    st.rt(a, "h_ready")
    vm = VM()
    for s_ in range(5):
        for qb in range(2): a(vm.see(hn_load(s_, qb)))
    gateup(a, st, vm, stubs, hl)
    st.rt(a, "p3_end")
    a("s_nop 7")
    p4_main(a, st, vm, stubs)
```

```python
import sys
from common import *
import gemm, attn, tail
def mega(stamp=False):
    a = Asm(); st = Stamps(stamp); stubs = []
    vm = gemm.prologue(a, st, "M_end")
    gemm.gemm(a, st, vm, stubs, attn.qproj)
    attn.attention(a, st, stubs)
    tail.tail(a, st, stubs)
    a.label("M_fin")
    a("s_waitcnt vmcnt(0) lgkmcnt(0)")
    st.rt(a, "end")
    st.flush(a)
    a.label("M_end")
    a("s_endpgm")
    for s in stubs: a(s)
    attn.subroutines(a)
    a.label("M_codeend")
    return a.text(), st.names
def write(path, stamp):
    body, names = mega(stamp)
    import os, re
    E = os.environ.get("EXP", "").split("+")
    if "plainkv" in E: body = re.sub(r"(s90 offen offset:\d+) sc1", r"\1", body)
    if "plainq" in E: body = re.sub(r"(buffer_store_dwordx4 \S+ v1, s\[12:15\], s25 offen( offset:\d+)?) sc1", r"\1", body)
    if "plainh" in E: body = re.sub(r"(buffer_store_dwordx4 \S+ v9, s\[12:15\], s3[89] offen) sc1", r"\1", body)
    if "plainf" in E: body = re.sub(r"(buffer_store_dword v\d+, v31, s\[12:15\], s2[58] offen( offset:\d+)?) sc1", r"\1", body)
    hdr = "".join(open("cdna_kernels/" + NAME + ".s.ref").readlines()[:14])
    kn = NAME + "_kernel"
    out = hdr + "; @launch grid=(256,1,1) block=(256,1,1) lds=163840\n.amdgcn_target \"amdgcn-amd-amdhsa--gfx950\"\n"
    out += kernel_header(kn) + body + kernel_desc(kn, 512, 102, 256)
    open(path, "w").write(out)
    if stamp: open(path.replace(".s", ".names"), "w").write(" ".join(names))
if __name__ == "__main__":
    tag = sys.argv[1] if len(sys.argv) > 1 else "m"
    write("exp/%s.s" % tag, False)
    write("exp/%s_st.s" % tag, True)
```

```python
from common import *
import os
from gemm import E, S_HEAD, S_I, S_ROLE, S_QB, V_DMA, xn_reg, QUNIT, dmaQ, DMAFL, Items, kv_store, kv_conv, xn_load

V_RDK, V_RDV, V_TABK, V_TABV = 5, 6, 7, 8
V_T = 9
V_NEGM, V_L, V_TS = 16, 18, 20
V_R = 26
V_T2 = 22
V_S = [32, 48]; V_P = [64, 72]; V_E = 80; V_C = 96; V_X = 112
V_O = 128
V_CTX = 32; A_SP = 64; A_Q = 128; A_F = 192
S_G3, S_END, S_WQ, S_KO, S_VO = 20, 21, 22, 23, 27
S_RW = 26
S_RET, S_RET2 = 82, 84
S_MASK = 70
S_N1, S_N2, S_ST, S_THR = 34, 35, 36, 37
S_R, S_M = 78, 79
NEG = 0xff3fffff
XA = 36
EXP = set()

def St(buf, kb, qb): return V_S[buf] + 4 * (2 * kb + qb)
def Ct(kb, qb): return V_C + 4 * (2 * kb + qb)
def Ot(db, qb): return V_O + 4 * (2 * db + qb)
def Fr(n): return ar(A_F + 4 * (n % 16))
def Qf(qb, s): return ar(A_Q + 4 * (8 * qb + s))

def FrV(n): return vr(96 + 4 * (n % 16))
def frag_reads(sc, rdK, rdV, rdN, bar, Fr=Fr, paired=False):
    out = [0, 0, 0, 0, 1, 1, 1, 1]
    def wait_for(grp):
        if grp not in out: return None
        idx = max(i for i, x in enumerate(out) if x == grp)
        n = len(out) - 1 - idx
        del out[:idx + 1]
        return n
    for gam in range(8):
        need = (gam < 4 and rdK) or (gam >= 4 and rdV)
        n = wait_for(gam) if need else None
        if gam == 0 and not rdK:
            n = 0; del out[:]
        lg = "" if n is None else "lgkmcnt(%d)" % n
        if gam == 6 and bar is not None:
            if bar or lg: sc.at(47, ((bar if bar else "s_waitcnt") + " " + lg).strip(), last=True)
            sc.at(47, "s_barrier", last=True)
        elif n is not None:
            sc.at(8 * gam - 1, "s_waitcnt " + lg, last=True)
        t = gam + 2
        src = rdK if t < 4 else rdV if t < 8 else rdN
        if not src: continue
        for k in range(4):
            sc.at(8 * gam + (4 * (k >> 1) if paired else 2 * k), "ds_read_b128 %s, v%d offset:%d" % (Fr(4 * t + k), src[0], src[1] + (4 * (t % 4) + k) * 1024))
            out.append(t if t < 8 else 100 + t)
    sc.free[63] -= 1

def ring_fixed(sc, p, useK=True, useV=True, vm=12, loop=None, dma=True, nxt=True, tag="", paired=False, kpos=(21, 25, 27, 29), vpos=(53, 57, 59, 61)):
    frag_reads(sc, (V_RDK, p * 16384) if useK else None, (V_RDV, p * 16384) if useV else None,
               (V_RDK, (1 - p) * 16384) if nxt else None, vm if isinstance(vm, str) else "s_waitcnt vmcnt(%d)" % vm, paired=paired)
    nomf0 = sc.mf[0] is None; nomf1 = sc.mf[63] is None
    if p == 1:
        if dma or not paired: sc.at(0, "s_xor_b32 s%d, s%d, 0x8000" % (S_WQ, S_WQ))
        sc.at(31 if paired else 30, "v_xor_b32 v%d, 0x8000, v%d" % (V_RDK, V_RDK))
        sc.at(55 if paired else 48, "v_xor_b32 v%d, 0x8000, v%d" % (V_RDV, V_RDV))
    if dma:
        sc.at(0 if p == 0 else 2, "v_readlane_b32 s%d, v%d, s%d" % (S_KO, V_TABK, S_G3))
        sc.at(kpos[0] - 1, "s_add_u32 m0, s%d, %d" % (S_WQ, (1 - p) * 16384))
        if nomf0: sc.at(kpos[0] - 1, "s_nop 3")
        for k, g in enumerate(kpos):
            sc.at(g, "buffer_load_dwordx4 v%d, s[12:15], s%d offen offset:%d lds%s" % (V_DMA, S_KO, k * 1024, DMAFL + tag), 2)
        sc.at(36, "v_readlane_b32 s%d, v%d, s%d" % (S_VO, V_TABV, S_G3))
        sc.at(vpos[0] - 1 if vpos[0] > 49 else 46, "s_add_u32 m0, s%d, %d" % (S_WQ, (1 - p) * 16384 + 65536))
        if nomf1: sc.at(vpos[0] - 1, "s_nop 3")
        for k, g in enumerate(vpos):
            sc.at(g, "buffer_load_dwordx4 v%d, s[12:15], s%d offen offset:%d lds%s" % (V_DMA, S_VO, k * 1024, DMAFL + tag), 2)
    if not paired: sc.at(60, "s_add_u32 s%d, s%d, 1" % (S_G3, S_G3))
    if loop:
        sc.at(62, "s_cmp_eq_u32 s%d, s%d" % (S_G3, S_END), last=True)
        sc.at(63, loop, last=True)

def ring_restart(a):
    a("v_readlane_b32 s%d, v%d, 2" % (S_KO, V_TABK))
    a("v_readlane_b32 s%d, v%d, 2" % (S_VO, V_TABV))
    a("s_mov_b32 m0, s24")
    a("v_add_u32 v%d, 0x8000, v1" % V_RDK)
    a("v_add_u32 v%d, 0x18000, v1" % V_RDV)
    a("s_mov_b32 s%d, s24" % S_WQ)
    a("s_mov_b32 s%d, 3" % S_G3)
    for j in range(4): a("buffer_load_dwordx4 v%d, s[12:15], s%d offen offset:%d lds%s" % (V_DMA, S_KO, j * 1024, DMAFL))
    a("s_add_u32 m0, s24, 65536")
    a("s_nop 0")
    for j in range(4): a("buffer_load_dwordx4 v%d, s[12:15], s%d offen offset:%d lds%s" % (V_DMA, S_VO, j * 1024, DMAFL))

def first_reads(a, vreg, imm, Fr=Fr):
    for n in range(8): a("ds_read_b128 %s, v%d offset:%d" % (Fr(n), vreg, imm + n * 1024))

def sm_ops(buf, kb):
    ex, pl = [], []
    for qb in range(2):
        s = St(buf, kb, qb); e = V_E + 8 * kb + 4 * qb; ts = V_TS + qb; P = V_P[buf] + 4 * qb + 2 * kb
        ex += ["v_exp_f32 v%d, v%d" % (e + j, s + j) for j in range(4)]
        b = 4 * qb
        if kb == 0: pl.append(("v_add_f32 v%d, v%d, v%d" % (ts, e, e + 1), b + 1))
        else: pl += [("v_add_f32 v%d, v%d, v%d" % (ts, ts, e), b), ("v_add_f32 v%d, v%d, v%d" % (ts, ts, e + 1), b + 1)]
        pl.append(("v_cvt_pk_bf16_f32 v%d, v%d, v%d" % (P, e, e + 1), b + 1))
        pl += [("v_add_f32 v%d, v%d, v%d" % (ts, ts, e + 2), b + 2), ("v_add_f32 v%d, v%d, v%d" % (ts, ts, e + 3), b + 3)]
        pl.append(("v_cvt_pk_bf16_f32 v%d, v%d, v%d" % (P + 1, e + 2, e + 3), b + 3))
    return ex, pl
def sm_serial(buf, kb):
    ex, pl = sm_ops(buf, kb)
    return ex + [s for s, _ in pl]
def place_sm(sc, buf, kb, exgaps, g0, g1, pre=(), post=()):
    ex, pl = sm_ops(buf, kb)
    for s, g in zip(ex, exgaps):
        if g is not None: sc.at(g, s, 2)
    exgaps = [-1 if g is None else g for g in exgaps]
    g = g0
    for s in pre: g = sc.at(sc.first_free(g, 1, g1), s)
    for s, d in pl: g = sc.at(sc.first_free(max(g, exgaps[d] + 1), 1, g1), s)
    for s in post: g = sc.at(sc.first_free(g, 1, g1), s)

def qk_mfmas(buf):
    mf = []
    for kb in range(2):
        order = [(s, 0) for s in range(4)] + [(s, 1) for s in range(8)] + [(s, 0) for s in range(4, 8)]
        if "nochain" in E: order = [(s, qb) for s in range(8) for qb in range(2)]
        for s, qb in order:
            d = vr(St(buf, kb, qb))
            mf.append(MF(d, Fr(8 * kb + s), Qf(qb, s), vr(Ct(kb, qb)) if s == 0 else d))
    return mf
def pv_mfmas(buf):
    return [MF(vr(Ot(db, qb)), Fr(16 + db), vr(V_P[buf] + 4 * qb), vr(Ot(db, qb))) for db in range(16) for qb in ((0, 1) if db & 1 == 0 or "nochain" in E else (1, 0))]
CHECK = ["v_max_f32 v%d, v%d, v%d" % (V_T, V_TS, V_TS + 1), "v_cmp_lt_f32 vcc, s%d, v%d" % (S_THR, V_T)]
LACC = ["v_add_f32 v%d, v%d, v%d" % (V_L + qb, V_L + qb, V_TS + qb) for qb in range(2)]

def body_full(a, p, loop, stubs):
    sc = Sched(qk_mfmas(p) + pv_mfmas(1 - p))
    sp4 = "sp4" in E
    ring_fixed(sc, p, loop=loop, kpos=(17, 21, 25, 29) if sp4 else (21, 25, 27, 29), vpos=(49, 53, 57, 61) if sp4 else (53, 57, 59, 61))
    back = "AT_full%d_back" % p
    sc.at(31, "s_cbranch_vccnz AT_full%d_stub\n%s:" % (p, back))
    stubs.append(("AT_full%d_stub" % p, p, back))
    if sp4:
        place_sm(sc, 1 - p, 1, (None, 1, 3, 5, 9, 11, 13, 19), 0, 30, post=CHECK)
        place_sm(sc, p, 0, (27, 33, 35, 37, 41, 43, 45, 51), 32, 63, pre=LACC)
        sc.at(59, sm_ops(p, 1)[0][0], 2)
    else:
        place_sm(sc, 1 - p, 1, (1, 3, 5, 9, 11, 13, 17, 19), 0, 30, post=CHECK)
        place_sm(sc, p, 0, (33, 35, 37, 41, 43, 45, 49, 51), 32, 63, pre=LACC)
    sc.emit(a)
    return sc.overflow()

def body_pvlast(a, p, stubs):
    sc = Sched([None] * 32 + pv_mfmas(1 - p))
    ring_fixed(sc, p, useK=False)
    for g in range(16, 31):
        rd = [s for s in sc.items[g] if s.startswith("ds_read")]
        sc.items[g] = [s for s in sc.items[g] if not s.startswith("ds_read")]
        sc.tail[-1] += rd
    back = "AT_pv%d_back" % p
    for s in sm_serial(1 - p, 1) + CHECK: sc.at(10, s)
    sc.at(31, "s_cbranch_vccnz AT_pv%d_stub\n%s:" % (p, back))
    stubs.append(("AT_pv%d_stub" % p, p, back))
    for k, s in enumerate(LACC): sc.at(33, s)
    sc.emit(a)

def body_qkfirst(a, p):
    sc = Sched(qk_mfmas(p) + [None] * 32)
    ring_fixed(sc, p, useV=False)
    t = Asm()
    m = V_T
    for qb in range(2):
        s0 = St(p, 0, qb)
        sc.at(23, "v_max3_f32 v%d, v%d, v%d, v%d" % (m + qb, s0, s0 + 1, s0 + 2))
        sc.at(24, "v_mov_b32 v%d, 0" % (V_L + qb))
    t("s_nop 6")
    for qb in range(2):
        s0, s1 = St(p, 0, qb), St(p, 1, qb)
        t("v_max3_f32 v%d, v%d, v%d, v%d" % (m + qb, m + qb, s0 + 3, s1))
        t("v_max3_f32 v%d, v%d, v%d, v%d" % (m + qb, m + qb, s1 + 1, s1 + 2))
        t("v_max_f32 v%d, v%d, v%d" % (m + qb, m + qb, s1 + 3))
    xlane_reduce2(t, "v_max_f32", m, m + 1, m + 2)
    for qb in range(2):
        t("v_sub_f32 v%d, 0, v%d" % (V_NEGM + qb, m + qb))
        for j in range(4): t("v_sub_f32 v%d, v%d, v%d" % (St(p, 0, qb) + j, St(p, 0, qb) + j, m + qb))
    for l in t.lines: sc.at(37, l.strip())
    t = Asm()
    for s in sm_serial(p, 0): t(s)
    for qb in range(2):
        for j in range(4): t("v_sub_f32 v%d, v%d, v%d" % (St(p, 1, qb) + j, St(p, 1, qb) + j, m + qb))
        for kb in range(2):
            for j in range(4): t("v_mov_b32 v%d, v%d" % (Ct(kb, qb) + j, V_NEGM + qb))
    t(sm_ops(p, 1)[0][0])
    NB = int(os.environ.get("QKB", 22))
    for l in t.lines[:NB]: sc.at(38, l.strip())
    for l in t.lines[NB:]: sc.at(63, l.strip())
    sc.emit(a)

def body_idle(a, p, loop):
    sc = Sched([None] * 64)
    ring_fixed(sc, p, useK=False, useV=False, loop=loop)
    sc.emit(a)

def rescale_sub(a, p):
    cur, nxt = 1 - p, p
    a.label("AT_rescale%d" % p)
    a("s_nop 7")
    for qb in range(2):
        m = V_T; f = V_T + 1
        s0, s1 = St(cur, 0, qb), St(cur, 1, qb)
        a("v_max3_f32 v%d, v%d, v%d, v%d" % (m, s0, s0 + 1, s0 + 2))
        a("v_max3_f32 v%d, v%d, v%d, v%d" % (m, m, s0 + 3, s1))
        a("v_max3_f32 v%d, v%d, v%d, v%d" % (m, m, s1 + 1, s1 + 2))
        a("v_max3_f32 v%d, v%d, v%d, 0" % (m, m, s1 + 3))
        xlane_reduce(a, "v_max_f32", m, V_T + 2)
        a("v_exp_f32 v%d, -v%d" % (f, m))
        a("v_sub_f32 v%d, v%d, v%d" % (V_NEGM + qb, V_NEGM + qb, m))
        a("v_mul_f32 v%d, v%d, v%d" % (V_L + qb, V_L + qb, f))
        for kb in range(2):
            for j in range(4):
                for r in (St(cur, kb, qb), St(nxt, kb, qb), Ct(kb, qb)):
                    a("v_sub_f32 v%d, v%d, v%d" % (r + j, r + j, m))
        for db in range(16):
            for j in range(4):
                a("v_mul_f32 v%d, v%d, v%d" % (Ot(db, qb) + j, Ot(db, qb) + j, f))
    for kb in range(2):
        for s in sm_serial(cur, kb): a(s)
    a(sm_ops(nxt, 0)[0][0])
    a("s_nop 1")
    a("s_setpc_b64 s[%d:%d]" % (S_RET2, S_RET2 + 1))

def op_acc(buf, e, qb): return V_O + 32 * buf + 4 * (2 * e + qb)
def op_flush_items(buf, k):
    it = []
    if k in (1, 2): it.append(("s_add_u32 s80, s80, 4096", 1))
    if k == 4: it.append(("s_sub_u32 s%d, s%d, 12288" % (S_ST, S_ST), 1))
    if k > 4: it.append(("s_add_u32 s%d, s%d, 4096" % (S_ST, S_ST), 1))
    if k >= 4: it.append(("WAITVM D%d" % (k - 4), 1))
    for qb in range(2):
        for sp in range(2):
            r = V_C + 4 * (2 * qb + sp)
            pd = 192 + 16 * (k & 1) + 4 * (2 * qb + sp)
            for d in range(4):
                j = 2 * sp + (d >> 1); e = 2 * (d & 1)
                o0, o1 = op_acc(buf, e, qb) + j, op_acc(buf, e + 1, qb) + j
                if k < 4:
                    it += [("v_mul_f32 v%d, v%d, v%d" % (o, o, V_R + qb), 1) for o in (o0, o1)]
                else:
                    it += [("v_lshlrev_b32 v%d, 16, v%d" % (r + d, pd + d), 1), ("v_and_b32 v%d, 0xffff0000, v%d" % (pd + d, pd + d), 1),
                           ("v_fma_f32 v%d, v%d, v%d, v%d" % (o0, o0, V_R + qb, r + d), 1), ("v_fma_f32 v%d, v%d, v%d, v%d" % (o1, o1, V_R + qb, pd + d), 1)]
                it.append(("v_cvt_pk_bf16_f32 v%d, v%d, v%d" % (r + d, o0, o1), 1))
            if k < 3: it.append(("buffer_store_dwordx4 %s, v1, s[12:15], s80 offen offset:%d @S%d" % (vr(r), (2 * qb + sp) * 1024, k), 2))
            else: it.append(("buffer_store_dwordx4 %s, v%d, s[12:15], s%d offen offset:%d sc1 @S%d" % (vr(r), V_T2 if qb else 1, S_ST, sp * 1024, k), 2))
    return it

def subroutines(a):
    stubs = []
    ret = "s_setpc_b64 s[%d:%d]" % (S_RET, S_RET + 1)
    def looped(name, fn):
        a.label("AT_%s" % name)
        a("s_bitcmp1_b32 s%d, 0" % S_G3)
        a("s_cbranch_scc0 AT_%s_odd" % name)
        a(".p2align 4")
        a.label("AT_%s_even" % name)
        fn(0, "s_cbranch_scc1 AT_%s_ret" % name)
        a.label("AT_%s_odd" % name)
        fn(1, "s_cbranch_scc0 AT_%s_even" % name)
        a.label("AT_%s_ret" % name)
        a(ret)
    def single(name, fn):
        a.label("AT_%s" % name)
        a("s_bitcmp1_b32 s%d, 0" % S_G3)
        a("s_cbranch_scc0 AT_%s_odd" % name)
        fn(0); a(ret)
        a.label("AT_%s_odd" % name)
        fn(1); a(ret)
    single("qkfirst", lambda p: body_qkfirst(a, p))
    looped("full", lambda p, l: print("full overflow", body_full(a, p, l, stubs)))
    single("pvlast", lambda p: body_pvlast(a, p, stubs))
    looped("idle", lambda p, l: body_idle(a, p, l))
    for lab, p, back in stubs:
        a.label(lab)
        a("s_call_b64 s[%d:%d], AT_rescale%d" % (S_RET2, S_RET2 + 1, p))
        a("s_branch %s" % back)
    rescale_sub(a, 0); rescale_sub(a, 1)

def call(a, name):
    if name == "pvlast":
        a("s_mov_b32 s3, %d" % PKA)
        a("buffer_load_dwordx4 v[124:127], v1, s[12:15], s3 offen sc1")
    a("s_call_b64 s[%d:%d], AT_%s" % (S_RET, S_RET + 1, name))
def run_k(a, name, k):
    a("s_add_u32 s%d, s%d, %d" % (S_END, S_G3, k))
    call(a, name)
def run_n(a, name, cnt):
    sk = a.newlabel("skip")
    a("s_cmp_lt_i32 s%d, 1" % cnt)
    a("s_cbranch_scc1 %s" % sk)
    a("s_add_u32 s%d, s%d, s%d" % (S_END, S_G3, cnt))
    call(a, name)
    a.label(sk)

def cinit(a, masked, zero):
    if masked: a("v_mov_b32 v%d, 0x%x" % (V_T, NEG))
    for kb in range(2):
        for qb in range(2):
            base = "0" if zero else "v%d" % (V_NEGM + qb)
            for j in range(4):
                r = Ct(kb, qb) + j
                if masked and kb == qb: a("v_cndmask_b32 v%d, %s, v%d, s[%d:%d]" % (r, base, V_T, S_MASK + 2 * j, S_MASK + 2 * j + 1))
                elif masked and kb > qb: a("v_mov_b32 v%d, v%d" % (r, V_T))
                elif zero: a("v_mov_b32 v%d, 0" % r)
def zero_o(a):
    for k in range(64): a("v_mov_b64 %s, 0" % vr(V_O + 2 * k, 2))

def tab_seg(a, startK, startV, base, stride, cnt1, lag, first=False):
    t = V_T
    a("v_subrev_u32 v%d, %s, v2" % (t, startK))
    a("v_min_i32 v%d, %s, v%d" % (t + 1, cnt1, t))
    a("v_subrev_u32 v%d, %d, v%d" % (t + 2, lag, t))
    a("v_max_i32 v%d, 0, v%d" % (t + 2, t + 2))
    a("v_min_i32 v%d, %s, v%d" % (t + 2, cnt1, t + 2))
    a("v_mul_i32_i24 v%d, %d, v%d" % (t + 1, stride, t + 1))
    a("v_mul_i32_i24 v%d, %d, v%d" % (t + 2, stride, t + 2))
    a("v_add_u32 v%d, %s, v%d" % (t + 1, base, t + 1))
    a("v_add_u32 v%d, %s, v%d" % (t + 2, base, t + 2))
    a("v_add_u32 v%d, 0x4000, v%d" % (t + 2, t + 2))
    if first:
        a("v_mov_b32 v%d, v%d" % (V_TABK, t + 1))
        a("v_mov_b32 v%d, v%d" % (V_TABV, t + 2))
    else:
        a("v_cmp_le_i32 vcc, 0, v%d" % t)
        a("s_nop 1")
        a("v_cndmask_b32 v%d, v%d, v%d, vcc" % (V_TABK, V_TABK, t + 1))
        a("v_cmp_le_i32 vcc, %d, v%d" % (startV, t))
        a("s_nop 1")
        a("v_cndmask_b32 v%d, v%d, v%d, vcc" % (V_TABV, V_TABV, t + 2))

def tables(a):
    a("s_lshl_b32 s86, s%d, 2" % S_I)
    a("s_sub_u32 s%d, %d, s86" % (S_N1, 64 - XA))
    a("s_add_u32 s%d, s86, 4" % S_N2)
    a("s_cmp_eq_u32 s%d, 1\ns_cselect_b32 s87, %d, 32" % (S_ROLE, XA))
    a("s_cmp_lt_u32 s68, 14\ns_cselect_b32 s%d, s%d, s87\ns_cselect_b32 s%d, s%d, 0\ns_cselect_b32 s87, %d, 0" % (S_N1, S_N1, S_N2, S_N2, XA * KTS))
    a("s_mov_b32 s%d, 0x%x" % (S_THR, f2u(65536.0)))
    a("s_mul_i32 s88, s%d, %d" % (S_HEAD, KHS))
    if KV: a("s_add_u32 s88, s88, %d" % KV)
    a("s_add_u32 s25, s88, s87")
    a("s_sub_u32 s89, s%d, 1" % S_N1)
    tab_seg(a, "0", 0, "s25", KTS, "s89", 1, first=True)
    a("s_add_u32 s86, s86, 3")
    a("s_mul_i32 s86, s86, %d" % KTS)
    a("s_add_u32 s25, s88, s86")
    a("s_sub_u32 s89, s%d, 1" % S_N2)
    tab_seg(a, "s%d" % S_N1, 1, "s25", -KTS, "s89", 1)
    a("s_add_u32 s69, s%d, s%d" % (S_N1, S_N2))
    a("s_add_u32 s69, s69, 1")
    a("s_mul_i32 s25, s%d, %d" % (S_HEAD, WBLK))
    a("s_add_u32 s25, s25, %d" % WOP)
    tab_seg(a, "s69", 0, "s25", 32768, "6", 0)
    a("s_and_b32 s86, s68, 1")
    a("s_lshl_b32 s%d, s67, 1" % S_R)
    a("s_add_u32 s%d, s%d, s86" % (S_R, S_R))
    a("s_lshr_b32 s%d, s68, 1" % S_M)
    a("s_add_u32 s69, s69, 7")
    a("s_min_u32 s25, s%d, 13" % S_M)
    a("s_mul_i32 s25, s25, %d" % WBLK)
    a("s_add_u32 s25, s25, %d" % W13P)
    tab_seg(a, "s69", 0, "s25", 32768, "6", 0)
    a("v_lshrrev_b32 v%d, 4, v2" % V_T)
    a("v_lshlrev_b32 v%d, 2, v%d" % (V_T, V_T))
    a("v_and_b32 v%d, 15, v2" % (V_T + 1))
    for j in range(4):
        a("v_add_u32 v%d, %d, v%d" % (V_T + 2, j, V_T))
        a("v_cmp_gt_u32 s[%d:%d], v%d, v%d" % (S_MASK + 2 * j, S_MASK + 2 * j + 1, V_T + 2, V_T + 1))

def qproj(a, st, vm, isK, stubs):
    a("v_add_u32 v%d, 0x10000, v1" % V_RDV)
    a("v_add_u32 v13, 0x20000, v1")
    a("v_mov_b32 v14, 1")
    a("s_cmp_lt_u32 s68, 14")
    a("s_cselect_b32 s3, %d, 0" % (2 * (XA >> 3)))
    a("v_min_u32 v15, 1, v2")
    a("v_add_u32 v15, s3, v15")
    a("v_mul_u32_u24 v15, %d, v15" % (16 * FB))
    def src(c, h):
        if c > 6: return None
        u = QUNIT[2 * c + h]
        return ((1, V_RDV, 13)[u >> 6], (u & 63) * 1024)
    a(vm.see("WAITVM X18,Q6"))
    a("s_barrier")
    first_reads(a, src(0, 0)[0], src(0, 0)[1], FrV)
    st.rt(a, "q_start")
    nm = "QK" if isK else "QV"
    def place_group(sc, g, g0, offs=(0, 2, 6, 10)):
        p0, ld, _ = g
        for x in p0: sc.at(g0 - 2, x)
        for k in range(4): sc.at(g0 + offs[k], ld[k], 2)
    def kv_group(entry, isV, slot):
        so = S_VO if isV else S_KO
        return (["v_readlane_b32 s%d, v%d, %d" % (so, V_TABV if isV else V_TABK, entry), "s_add_u32 m0, s24, %d" % (slot * 16384 + (65536 if isV else 0))],
                ["buffer_load_dwordx4 v%d, s[12:15], s%d offen offset:%d lds%s" % (V_DMA, so, j * 1024, DMAFL) for j in range(4)], [])
    tb = Items(); tables(tb)
    for c in range(7):
        mf = []
        for h in range(2):
            s = 2 * c + h
            for n in range(16):
                for qb in range(2):
                    d = ar(4 * (2 * n + qb))
                    mf.append(MF(d, FrV(16 * h + n), xn_reg(qb, s), "0" if s == 0 else d))
        sc = Sched(mf)
        bar = {4: "WAITVM Q11,KV1", 5: "WAITVM Q13", 6: "WAITVM KV2,F1"}.get(c)
        frag_reads(sc, src(c, 0), src(c, 1), src(c + 1, 0), bar, FrV)
        if c == 0:
            place_group(sc, dmaQ(9), 3, (0, 8, 16, 24))
            for k in range(8): sc.at(5 + 8 * k - (2 if k == 7 else 0), xn_load(20 + k)[0], 2)
        if c in (2, 3):
            sc.at(-1, "WAITVM X19,Q8" if c == 2 else "WAITVM X27,Q9", last=True)
            sc.at(-1, "s_barrier", last=True)
            for h in range(2): place_group(sc, dmaQ(2 * c + 6 + h), 3 + 32 * h, (0, 8, 16, 24))
        if c == 4:
            for k in range(2): sc.at(49 + 2 * k, sig(O_KV1)[k], 2)
        if c == 6:
            sc.at(29, flag_load("v15", "s%d" % S_GRPF, O_KV1, 12) + " @F1", 2)
            for k in range(2): sc.at(48 + 2 * k, sig(O_KV2)[k], 2)
            sc.at(49, "v_cmp_ne_u32 vcc, 1, v12")
            sc.at(51, "s_cbranch_vccnz %s_spin\n%s_spinback:" % (nm, nm))
            sp = Asm(); sp.label(nm + "_spin"); poll(sp, "v15", "s%d" % S_GRPF, O_KV1, 12, nm + "f1"); sp("s_branch %s_spinback" % nm)
            stubs.append(sp.text())
            g = kv_group(0, False, 2)
            sc.at(45, g[0][0]); sc.at(45, g[0][1])
            for k in range(4): sc.at(52 + k, g[1][k], 2)
            g = kv_group(1, True, 3)
            sc.at(43, g[0][0]); sc.at(56, g[0][1])
            sc.at(56, kv_group(1, False, 3)[0][0])
            for k in range(4): sc.at(57 + k, g[1][k], 2)
            g = kv_group(1, False, 3)
            sc.at(61, g[0][1])
            for k in range(4): sc.at(62 + min(k, 1), g[1][k], 2)
        it = []
        ntb = {0: (0, 24), 1: (24, 84), 6: (84, 999)}.get(c, (0, 0))
        tbi = tb.it[ntb[0]:ntb[1]]
        ns = list({0: range(5, 9), 1: range(9, 14), 2: range(14, 18), 3: range(18, 23), 4: range(23, 27), 5: range(27, 32)}.get(c, ()))
        for k, n in enumerate(ns):
            if n >= 16: it += kv_conv(isK, n, 16)
            elif c == 2: it += [("", 1)] * 12
            it += kv_store(isK, n) + tbi[k * len(tbi) // len(ns):(k + 1) * len(tbi) // len(ns)]
        if c == 6: it = tbi
        if it: sc.flow(it, 0, {6: 40}.get(c, 62))
        if isK: print("qproj overflow", c, sc.overflow())
        sc.emit(a, vm)
        if "qst" in E and c < 6: st.rt(a, "q%d" % (c + 1))

def pair_off(a, dst, base, per_wave):
    a("s_lshl_b32 s%d, s%d, 3" % (dst, S_HEAD))
    a("s_add_u32 s%d, s%d, s%d" % (dst, dst, S_I))
    a("s_lshl_b32 s%d, s%d, 2" % (dst, dst))
    a("s_add_u32 s%d, s%d, s66" % (dst, dst))
    a("s_mul_i32 s%d, s%d, %d" % (dst, dst, per_wave))
    a("s_add_u32 s%d, s%d, %d" % (dst, dst, base))
def ex_base(a, dst):
    pair_off(a, dst, 0, 17408)
    a("s_cmp_eq_u32 s%d, 1\ns_cselect_b32 s3, %d, %d" % (S_ROLE, OPX, QX))
    a("s_add_u32 s%d, s%d, s3" % (dst, dst))
def ex_touch(a):
    ex_base(a, 80)
    a("v_lshlrev_b32 v%d, 3, v1" % (V_X + 9))
    a("s_add_u32 s3, s80, 4096")
    a("buffer_load_dword v%d, v%d, s[12:15], s80 offen" % (V_X + 10, V_X + 9))
    a("buffer_load_dword v%d, v%d, s[12:15], s3 offen" % (V_X + 11, V_X + 9))
def partner_flags(a, dst):
    a("s_xor_b32 s%d, s2, 128" % dst)
    a("s_mul_i32 s%d, s%d, %d" % (dst, dst, FB))
    a("s_add_u32 s%d, s%d, %d" % (dst, dst, FLG))

def q_epilogue(a, qb, dst, store):
    for sd in range(8):
        cb, sp = sd >> 1, sd & 1
        r = 32 + 12 * (sd % 4)
        f = 8 * qb + sd
        for d in range(4):
            j = 2 * sp + (d >> 1); e = 2 * (d & 1)
            a("v_accvgpr_read_b32 v%d, a%d" % (r + 2 * d, 4 * (2 * (4 * cb + e) + qb) + j))
            a("v_accvgpr_read_b32 v%d, a%d" % (r + 2 * d + 1, 4 * (2 * (4 * cb + e + 1) + qb) + j))
        for d in range(4): a("v_cvt_pk_bf16_f32 v%d, v%d, v%d" % (r + 8 + d, r + 2 * d, r + 2 * d + 1))
        if store:
            if f % 4 == 0 and f: a("s_add_u32 s25, s25, s39")
            a("buffer_store_dwordx4 %s, v1, s[12:15], s25 offen offset:%d sc1" % (vr(r + 8), (f % 4) * 1024))
        for d in range(4): a("v_accvgpr_write_b32 a%d, v%d" % (dst + 4 * f + d, r + 8 + d))

def l_total(a): xlane_reduce2(a, "v_add_f32", V_L, V_L + 1, V_T)

def pkmul(a, d, x, sc):
    if "nopk" in E:
        a("v_mul_f32 v%d, v%d, v%d\nv_mul_f32 v%d, v%d, v%d" % (d, x, sc, d + 1, x + 1, sc)); return
    lo = sc & ~1; h = sc & 1
    a("v_pk_mul_f32 %s, %s, %s op_sel:[0,%d] op_sel_hi:[1,%d]" % (vr(d, 2), vr(x, 2), vr(lo, 2), h, h))
def pkfma(a, d, x, sc, c):
    lo = sc & ~1; h = sc & 1
    a("v_pk_fma_f32 %s, %s, %s, %s op_sel:[0,%d,0] op_sel_hi:[1,%d,1]" % (vr(d, 2), vr(x, 2), vr(lo, 2), vr(c, 2), h, h))

def normalize(a, soff=None, f0=0, f1=16, rcp=True, nst=16):
    if soff is None and rcp:
        for qb in range(2): a("v_rcp_f32 v%d, v%d" % (V_R + qb, V_L + qb))
    for f in range(f0, f1):
        qb, s = f >> 3, f & 7
        r = V_CTX + 4 * f
        if soff is not None:
            for h in range(2):
                o = Ot(2 * s + h, qb)
                pkmul(a, o, o, V_T2 + qb); pkmul(a, o + 2, o + 2, V_T2 + qb)
        for h in range(2):
            o = Ot(2 * s + h, qb)
            a("v_cvt_pk_bf16_f32 v%d, v%d, v%d" % (r + 2 * h, o, o + 1))
            a("v_cvt_pk_bf16_f32 v%d, v%d, v%d" % (r + 2 * h + 1, o + 2, o + 3))
        if soff is not None and f < nst: part_store(a, soff, f)
def part_store(a, soff, f):
    if f % 4 == 0 and f: a("s_add_u32 s%d, s%d, 4096" % (soff, soff))
    a("buffer_store_dwordx4 %s, v1, s[12:15], s%d offen offset:%d sc1" % (vr(V_CTX + 4 * f) if f < 16 else vr(V_NEGM), soff, (f % 4) * 1024))

def partner_loads(a):
    pair_off(a, 25, OPX, 17408)
    for f in range(17):
        if f % 4 == 0 and f: a("s_add_u32 s25, s25, 4096")
        a("buffer_load_dwordx4 %s, v1, s[12:15], s25 offen offset:%d sc1" % (ar(A_SP + 4 * f) if f < 16 else vr(V_X), (f % 4) * 1024))

def combine(a):
    al, be = V_T2, V_T2 + 2
    for qb in range(2):
        t = V_T
        a("v_min_f32 v%d, v%d, v%d" % (t, V_NEGM + qb, V_X + qb))
        a("v_sub_f32 v%d, v%d, v%d" % (t + 1, t, V_NEGM + qb))
        a("v_sub_f32 v%d, v%d, v%d" % (t + 2, t, V_X + qb))
        a("v_exp_f32 v%d, v%d" % (t + 1, t + 1))
        a("v_exp_f32 v%d, v%d" % (t + 2, t + 2))
        a("s_nop 0")
        a("v_mul_f32 v%d, v%d, v%d" % (t, t + 2, V_X + 2 + qb))
        a("v_fma_f32 v%d, v%d, v%d, v%d" % (t, t + 1, V_L + qb, t))
        a("v_rcp_f32 v%d, v%d" % (t, t))
        a("s_nop 0")
        a("v_mul_f32 v%d, v%d, v%d" % (al + qb, t + 1, t))
        a("v_mul_f32 v%d, v%d, v%d" % (be + qb, t + 2, t))
        a("v_mov_b32 v%d, 1.0" % (V_R + qb))
    for f in range(16):
        qb, s = f >> 3, f & 7
        for d in range(4): a("v_accvgpr_read_b32 v%d, a%d" % (V_C + 2 * d + 1, A_SP + 4 * f + d))
        for d in range(4):
            o = Ot(2 * s + (d >> 1), qb) + 2 * (d & 1)
            pkmul(a, o, o, al + qb)
        for d in range(4):
            a("v_lshlrev_b32 v%d, 16, v%d" % (V_C + 2 * d, V_C + 2 * d + 1))
            a("v_and_b32 v%d, 0xffff0000, v%d" % (V_C + 2 * d + 1, V_C + 2 * d + 1))
        for d in range(4):
            o = Ot(2 * s + (d >> 1), qb) + 2 * (d & 1)
            pkfma(a, o, V_C + 2 * d, be + qb, o)
        for d in range(4):
            o = Ot(2 * s + (d >> 1), qb) + 2 * (d & 1)
            a("v_cvt_pk_bf16_f32 v%d, v%d, v%d" % (V_CTX + 4 * f + d, o, o + 1))

def attention(a, st, stubs):
    st.rt(a, "q_end")
    a("s_xor_b32 s87, s%d, 1" % S_ROLE)
    a("s_cmp_eq_u32 s%d, 7" % S_I)
    a("s_cselect_b32 s86, 0, s%d" % S_ROLE)
    a("s_cselect_b32 s87, 0, s87")
    pair_off(a, 25, QX, 17408)
    a("s_cmp_eq_u32 s86, 1")
    a("s_cselect_b32 s25, s25, %d" % WSZ)
    a("s_cselect_b32 s39, 4096, 0")
    grp_voff(a, V_T, 16)
    partner_flags(a, 29)
    q_epilogue(a, 0, A_Q, True)
    a(flag_load("v%d" % V_T, "s%d" % S_GRPF, O_KV2, V_T + 1))
    q_epilogue(a, 1, A_Q, True)
    zero_o(a)
    cinit(a, False, True)
    a("s_waitcnt vmcnt(8)")
    a("v_cmp_ne_u32 vcc, 1, v%d" % (V_T + 1))
    a("s_nop 2")
    a("s_cbranch_vccz AT_kvok")
    poll(a, "v%d" % V_T, "s%d" % S_GRPF, O_KV2, V_T + 1, "fkv")
    a.label("AT_kvok")
    st.rt(a, "kv_ready")
    ring_restart(a)
    a("s_lshl_b32 s3, s2, 2")
    a("s_add_u32 s3, s3, %d" % PKA)
    a("buffer_store_dword v14, v31, s[12:15], s3 offen sc1")
    a("s_cmp_eq_u32 s86, 1")
    a("s_cbranch_scc0 AT_notA")
    a("s_waitcnt vmcnt(9)")
    a("s_barrier")
    for x in sig(O_Q): a(x)
    first_reads(a, V_RDK, 0)
    st.rt(a, "at_start")
    call(a, "qkfirst")
    a("s_add_u32 s25, s25, 4096")
    a("buffer_store_dwordx2 %s, v1, s[12:15], s25 offen sc1" % vr(V_NEGM, 2))
    run_k(a, "full", 2)
    for x in sig(O_M): a(x)
    if st.on and "fcyc" in E:
        run_k(a, "full", XA - 6 - 28)
        st.cyc(a, "f0_c")
        run_k(a, "full", 28)
        st.cyc(a, "f1_c")
    else:
        run_k(a, "full", XA - 6)
    a(code_warm("v%d" % (V_X + 8)))
    a("s_lshl_b32 s3, s66, 2")
    a("s_add_u32 s29, s29, s3")
    a(flag_load("off", "s29", O_O, V_X + 4))
    run_k(a, "full", 2)
    a("v_readfirstlane_b32 s39, v%d" % (V_X + 4))
    a("s_cmp_eq_u32 s39, 1")
    a("s_cbranch_scc0 AT_A_late")
    partner_loads(a)
    run_k(a, "full", 1)
    a("s_branch AT_A_last")
    a.label("AT_A_late")
    a(flag_load("off", "s29", O_O, V_X + 4))
    run_k(a, "full", 1)
    a("s_waitcnt vmcnt(8)")
    a("v_readfirstlane_b32 s39, v%d" % (V_X + 4))
    a("s_cmp_eq_u32 s39, 1")
    a("s_cbranch_scc0 AT_A_last")
    partner_loads(a)
    a.label("AT_A_last")
    call(a, "pvlast")
    st.rt(a, "seg_done")
    a("s_cmp_eq_u32 s39, 1")
    a("s_cbranch_scc1 AT_A_have")
    poll(a, "off", "s29", O_O, V_T, "fo")
    partner_loads(a)
    a("s_waitcnt vmcnt(0)")
    a.label("AT_A_have")
    l_total(a)
    a("v_lshrrev_b32 v%d, 4, v2" % V_T)
    a("v_and_b32 v%d, 15, v2" % (V_T + 1))
    a("v_lshlrev_b32 v%d, 2, v%d" % (V_T, V_T))
    a("v_sub_u32 v%d, v%d, v%d" % (V_T, V_T + 1, V_T))
    a("v_and_b32 v%d, 1, v%d" % (V_T + 1, V_T))
    a("v_lshlrev_b32 v%d, 4, v%d" % (V_T + 1, V_T + 1))
    a("v_mov_b32 v%d, 0x3f80" % (V_T + 2))
    a("v_lshlrev_b32 v%d, v%d, v%d" % (V_T + 1, V_T + 1, V_T + 2))
    a("v_lshrrev_b32 v%d, 1, v%d" % (V_T, V_T))
    a("v_cmp_eq_u32 vcc, 0, v%d" % V_T)
    a("v_mov_b64 %s, 0" % vr(V_C, 2))
    a("v_mov_b64 %s, 0" % vr(V_C + 4, 2))
    a("v_cndmask_b32 v%d, 0, v%d, vcc" % (V_C + 2, V_T + 1))
    a("v_cmp_eq_u32 vcc, 1, v%d" % V_T)
    a("s_waitcnt vmcnt(9)")
    a("v_add_f32 v%d, v%d, v%d" % (V_R, V_L, V_X + 2))
    a("v_cndmask_b32 v%d, 0, v%d, vcc" % (V_C + 3, V_T + 1))
    a("v_cmp_ne_u64 vcc, %s, %s" % (vr(V_NEGM, 2), vr(V_X, 2)))
    a("v_add_f32 v%d, v%d, v%d" % (V_R + 1, V_L + 1, V_X + 3))
    if "nopva" in E: a("s_mov_b64 vcc, -1")
    for qb in range(2): a("v_rcp_f32 v%d, v%d" % (V_R + qb, V_R + qb))
    a("s_cbranch_vccnz AT_A_gen")
    D = int(os.environ.get('AD', 3))
    for f in range(16 + D):
        nz = []
        if f >= D:
            t = Asm(); normalize(t, None, f - D, f - D + 1, rcp=False); nz = [l.strip() for l in t.lines]
        for h in range(2):
            if f < 16:
                o = vr(Ot(2 * (f & 7) + h, f >> 3))
                a(MF(o, vr(V_C + 2 - 2 * h), ar(A_SP + 4 * f), o))
            if f == D and h == 0: a("s_nop 1")
            for x in nz[2 * h:2 * h + 2]: a(x)
    a("s_branch AT_oproj_start")
    a.label("AT_A_gen")
    combine(a)
    a("s_branch AT_oproj_start")
    a.label("AT_notA")
    a("s_cmp_eq_u32 s87, 1")
    a("s_cbranch_scc1 AT_B")
    a("s_barrier")
    first_reads(a, V_RDK, 0)
    st.rt(a, "at_start")
    a("s_branch AT_seg1")
    a.label("AT_B")
    for k in range(64): a("v_accvgpr_mov_b32 a%d, a%d" % (A_SP + k, A_Q + k))
    poll(a, "off", "s29", O_Q, V_T, "fq")
    pair_off(a, 25, QX, 17408)
    for f in range(16):
        if f % 4 == 0 and f: a("s_add_u32 s25, s25, 4096")
        a("buffer_load_dwordx4 %s, v1, s[12:15], s25 offen offset:%d sc1" % (ar(A_Q + 4 * f), (f % 4) * 1024))
    a("s_barrier")
    first_reads(a, V_RDK, 0)
    a("s_waitcnt vmcnt(0)")
    st.rt(a, "at_start")
    a.label("AT_seg1")
    a("s_add_u32 s25, s%d, s66" % S_N1)
    a("s_cmp_eq_u32 s25, 4")
    a("s_cbranch_scc1 AT_s1_single")
    call(a, "qkfirst")
    a("s_sub_u32 s25, s25, 5")
    run_n(a, "full", 25)
    cinit(a, True, False)
    run_k(a, "full", 1)
    a("s_branch AT_s1_last")
    a.label("AT_s1_single")
    cinit(a, True, True)
    call(a, "qkfirst")
    a.label("AT_s1_last")
    pair_off(a, 25, QX + 16384, 17408)
    a(flag_load("off", "s29", O_M, V_X + 2))
    a("buffer_load_dwordx2 %s, v1, s[12:15], s25 offen sc1" % vr(V_X, 2))
    call(a, "pvlast")
    a("s_nop 3")
    l_total(a)
    a("s_cmp_eq_u32 s87, 1")
    a("s_cbranch_scc1 AT_B_gap")
    st.rt(a, "seg_done")
    ex_touch(a)
    a(code_warm("v%d" % (V_X + 8)))
    normalize(a)
    a("s_sub_u32 s25, 3, s66")
    run_n(a, "idle", 25)
    a("s_branch AT_oproj_start")
    a.label("AT_B_gap")
    a("s_waitcnt vmcnt(9)")
    a("v_readfirstlane_b32 s3, v%d" % (V_X + 2))
    a("s_cmp_eq_u32 s3, 1")
    a("s_cbranch_scc1 AT_B_havem")
    a(flag_load("off", "s29", O_M, V_X + 2))
    a("buffer_load_dwordx2 %s, v1, s[12:15], s25 offen sc1" % vr(V_X, 2))
    a("s_waitcnt vmcnt(0)")
    a.label("AT_B_havem")
    pair_off(a, 25, OPX, 17408)
    a("s_mov_b32 s3, 0x42700000")
    a("v_cmp_eq_u32 s[88:89], 1, v%d" % (V_X + 2))
    for qb in range(2):
        a("v_sub_f32 v%d, v%d, v%d" % (V_T, V_X + qb, V_NEGM + qb))
        a("v_cmp_ge_f32 vcc, s3, abs(v%d)" % V_T)
        a("s_nop 1")
        a("s_and_b64 vcc, vcc, s[88:89]")
        a("v_cndmask_b32 v%d, 0, v%d, vcc" % (V_T, V_T))
        a("v_cndmask_b32 v%d, v%d, v%d, vcc" % (V_NEGM + qb, V_NEGM + qb, V_X + qb))
        a("v_exp_f32 v%d, v%d" % (V_T2 + qb, V_T))
        a("s_nop 0")
        a("v_mul_f32 v%d, v%d, v%d" % (V_L + qb, V_L + qb, V_T2 + qb))
    NS = int(os.environ.get("GAPS", 9))
    normalize(a, 25, nst=NS)
    run_k(a, "idle", 1)
    mv = ["v_accvgpr_mov_b32 a%d, a%d" % (A_Q + k, A_SP + k) for k in range(64)]
    for f in range(NS, 17):
        part_store(a, 25, f)
        for x in mv[:8]: a(x)
        mv = mv[8:]
    for x in mv: a(x)
    zero_o(a)
    cinit(a, True, True)
    sig_wave(a, O_O, "s_waitcnt vmcnt(0)")
    run_k(a, "idle", 1)
    a.label("AT_seg2")
    call(a, "qkfirst")
    a("s_sub_u32 s25, s%d, s66" % S_N2)
    a("s_sub_u32 s25, s25, 1")
    run_n(a, "full", 25)
    ex_touch(a)
    a(code_warm("v%d" % (V_X + 8)))
    call(a, "pvlast")
    st.rt(a, "seg_done")
    l_total(a)
    normalize(a)
    a.label("AT_oproj_start")
    st.rt(a, "oproj_start")
```

```python
from common import *
from gemm import x_own_off, frag8_voff, frag8_soff
from attn import *
import os

def publish(a, off):
    sk = a.newlabel("pub")
    a("s_cmp_eq_u32 s%d, 1" % S_FAST)
    a("s_waitcnt vmcnt(0)")
    a("s_barrier")
    a("s_cbranch_scc1 %s" % sk)
    a("buffer_wbl2 sc1")
    a("s_waitcnt vmcnt(0)")
    a.label(sk)
    for x in sig(off): a(x)
def acquire(a, n, off, name):
    sk = a.newlabel("acq")
    grp_voff(a, 12, n)
    poll(a, "v12", "s%d" % S_GRPF, off, 13, name)
    a("s_cmp_eq_u32 s%d, 1" % S_FAST)
    a("s_cbranch_scc1 %s" % sk)
    a("buffer_inv sc1")
    a("s_waitcnt vmcnt(0)")
    a.label(sk)

KD = int(os.environ.get('KD', 6)); NPRE_ = int(os.environ.get('NPRE_', 1)); GLN = eval(os.environ.get('GLN', '[3]'))
W3E = int(os.environ.get('W3E', 1))
NWO = 2; WR1 = (8, 9, 10)[:int(os.environ.get('WR1', 0))]
R1_X = 16; R1_X0 = 112; R1_ACC = 32; R1_L = 128
XLDS = 131072 + 1024
def r1_x_items():
    a = Items()
    a("s_lshl_b32 s25, s%d, 4" % S_R)
    a("s_add_u32 s25, s25, s%d" % S_M)
    for x in ("s_mov_b32 s8, s%d" % S_PX, "s_mov_b32 s9, s%d" % (S_PX + 1), "s_mov_b32 s10, %d" % (2048 * 896), "s_mov_b32 s11, 0x00020000"): a(x)
    a("v_cmp_gt_u32 vcc, 56, v2")
    a("v_mov_b32 v10, 0x7fffffff")
    a("s_lshl_b32 s3, s25, 2")
    a("s_add_u32 s3, s3, s66")
    a("v_cndmask_b32 v10, v10, v1, vcc")
    a("s_mul_i32 s3, s3, %d" % (2 * 896))
    a("buffer_load_dwordx4 %s, v10, s[8:11], s3 offen @X" % vr(R1_X0))
    a("buffer_load_dwordx4 %s, v10, s[8:11], s3 offen offset:896 @X" % vr(R1_X0 + 4))
    b = Items()
    b("v_and_b32 v10, 60, v2")
    b("v_and_b32 v11, 1, v2")
    b("v_lshl_add_u32 v10, v11, 1, v10")
    b("v_bfe_u32 v11, v2, 1, 1")
    b("v_mul_u32_u24 v10, 144, v10")
    b("v_lshl_add_u32 v10, v11, 3, v10")
    b("s_lshl_b32 s3, s66, 5")
    b("s_add_u32 s3, s3, %d" % XLDS)
    b("v_add_u32 v10, s3, v10")
    b("WAITVM X")
    for r in range(2):
        b("ds_write_b64 v10, %s offset:%d" % (vr(R1_X0 + 4 * r, 2), 16 * r))
        b("ds_write_b64 v10, %s offset:%d" % (vr(R1_X0 + 4 * r + 2, 2), 16 * r + 144))
    c = Items()
    c("v_lshrrev_b32 v10, 3, v0")
    c("v_add_lshl_u32 v10, v10, v0, 4")
    c("s_cmp_eq_u32 s66, 3\ns_cselect_b32 s3, %d, 0\ns_cselect_b32 s87, %d, 0" % (24 * 144, 8 * 144))
    c("v_add_u32 v10, %d, v10" % XLDS)
    c("v_add_u32 v11, s87, v10")
    c("v_add_u32 v10, s3, v10")
    c("ds_read_b128 %s, v10" % vr(R1_X0))
    c("ds_read_b128 %s, v11 offset:%d" % (vr(R1_X0 + 4), 24 * 144))
    return a.it, b.it, c.it
def r1_pre(a):
    frag8_voff(a, 9, 11)
    a("s_lshr_b32 s38, s25, 1")
    a("s_mul_i32 s38, s38, %d" % B16S)
    a("s_and_b32 s3, s25, 1")
    a("s_lshl_b32 s3, s3, 7")
    a("s_add_u32 s38, s38, s3")
    a("s_add_u32 s39, s38, %d" % (24 * 256))
    a("s_cmp_eq_u32 s66, 3\ns_cselect_b32 s38, s39, s38\ns_cselect_b32 s3, 2048, 0")
    a("s_add_u32 s39, s39, s3")
    a("s_mov_b32 s%d, %d" % (S_B6, ALT))
    a("s_cmp_eq_u32 s%d, 1\ns_cselect_b32 s%d, %d, s%d" % (S_FAST, S_B6, PO + 2 * POH, S_B6))
    a("s_sub_u32 s3, 23, s%d" % S_R)
    a("s_cmp_ge_u32 s%d, 8\ns_cselect_b32 s28, s3, s%d" % (S_R, S_R))
    a("s_mul_i32 s28, s28, %d" % (16 * FB))
    a("s_add_u32 s28, s28, %d" % FLG)
    a("v_min_u32 v12, 15, v2")
    a("v_mul_u32_u24 v12, %d, v12" % FB)

def r1_unpack_x(a):
    for d in range(8):
        a("v_lshlrev_b32 v%d, 16, v%d" % (R1_ACC + 2 * d, R1_X0 + d))
        a("v_and_b32 v%d, 0xffff0000, v%d" % (R1_ACC + 2 * d + 1, R1_X0 + d))
def oproj(a, st, stubs):
    vm = VM(); vm.ops = ["T1"] * 8 + ["T2"] * 8
    chk = "v_and_b32 v124, v124, v125\nv_and_b32 v126, v126, v127\nv_and_b32 v124, v124, v126\nv_cmp_ne_u32 vcc, 1, v124\n"
    a("s_waitcnt vmcnt(8)")
    a(chk)
    p4_wbase(a)
    a("s_cbranch_vccnz OP_pk")
    a.label("OP_pkback")
    stubs.append("OP_pk:\ns_mov_b32 s3, 0x20000\ns_mov_b32 s29, %d\nOP_pkl:\nbuffer_load_dwordx4 v[124:127], v1, s[12:15], s29 offen sc1\ns_waitcnt vmcnt(0)\n" % PKA
                 + chk + "s_sub_u32 s3, s3, 1\ns_cbranch_scc1 OP_pkback\ns_nop 1\ns_cbranch_vccnz OP_pkl\ns_branch OP_pkback")
    xa, xb, xc = r1_x_items()
    i0 = Items()
    ex_base(i0, 80)
    i0("s_add_u32 s81, s80, %d" % (32 * 17408))
    i0("s_sub_u32 s3, s80, %d" % (32 * 17408))
    i0("s_bitcmp1_b32 s%d, 0\ns_cselect_b32 s81, s3, s81\ns_cselect_b32 s3, 2048, 0" % S_HEAD)
    i0("s_mul_i32 s%d, s67, %d" % (S_ST, POH))
    i0("s_add_u32 s%d, s%d, s3" % (S_ST, S_ST))
    i0("s_mul_i32 s3, s%d, %d" % (S_RW, 2 * B16S))
    i0("s_add_u32 s%d, s%d, s3" % (S_ST, S_ST))
    i0("s_add_u32 s%d, s%d, %d" % (S_ST, S_ST, PO + 12288))
    i0("v_add_u32 v%d, %d, v1" % (V_T2, B16S))
    i2 = Items()
    i2("s_xor_b32 s29, s2, 8")
    i2("s_mul_i32 s29, s29, %d" % FB)
    i2("s_lshl_b32 s3, s66, 2")
    i2("s_add_u32 s29, s29, s3")
    i2("s_add_u32 s29, s29, %d" % FLG)
    i2("s_add_u32 s3, s3, s%d" % S_MYF)
    i2("s_cmp_eq_u32 s%d, 1\ns_cselect_b32 s34, s3, %d" % (S_FAST, WSZ))
    i2("s_cmp_eq_u32 s%d, 1\ns_cselect_b32 s35, %d, s3" % (S_FAST, WSZ))
    i2("v_cmp_eq_u32 vcc, 0, v2")
    i2("v_mov_b32 v28, %d" % WSZ)
    i2("s_nop 0")
    i2("v_cndmask_b32 v28, v28, 0, vcc")
    cost2 = lambda it: [(x, 2 if x.startswith("buffer_") else c) for x, c in it]
    W = p4_wload_items
    wl = [x for t in range(NWO) for x in W(t)]
    for k in range(7):
        p = (k + 1) & 1
        mf = []
        for s_ in range(8):
            for e in range(4):
                for qb in range(2):
                    d = vr(op_acc(p, e, qb))
                    mf.append(MF(d, Fr(4 * s_ + e), vr(V_CTX + 4 * (8 * qb + s_)), "0" if s_ == 0 else d))
        sc = Sched(mf)
        ring_fixed(sc, p, vm="WAITVM T%d" % (k + 1) if k < 6 else "WAITVM S3", tag=" @T%d" % (k + 3), dma=(k < KD), nxt=(k < 6),
                   kpos=(5, 13, 21, 29) if k == 0 else (5, 9, 13, 17) if k < 4 else (25, 33, 41, 43), vpos=(49, 53, 57, 61))
        if 4 <= k <= 6:
            m = k - 4
            sc.at(1, "WAITVM L%d" % m); sc.at(1, "v_cmp_gt_u32 vcc, %d, v13" % (m + 1))
            sc.at(3, "s_cmp_eq_u32 s%d, 1\ns_cbranch_scc0 OP_x%d\ns_cbranch_vccnz OP_x%d\nOP_xb%d:" % (S_FAST, m, m, m), 3)
            sp = Asm(); sp.uid = 8000 + 10 * m
            sp.label("OP_x%d" % m); sp("s_mov_b32 s87, s3")
            poll(sp, "off", "s29", O_X, 13, "opx", val=-(m + 1))
            sp("s_mov_b32 s3, s87\ns_cmp_eq_u32 s%d, 1\ns_cbranch_scc1 OP_xb%d\nbuffer_inv sc1\ns_waitcnt vmcnt(0)\ns_branch OP_xb%d" % (S_FAST, m, m))
            stubs.append(sp.text())
            for n, g in enumerate((5, 9, 13, 17)):
                sc.at(g, "buffer_load_dwordx4 %s, v1, s[12:15], s81 offen offset:%d sc1 @D%d" % (vr(192 + 16 * (k & 1) + 4 * n), n * 1024, m), 2)
            if k < 6: sc.at(23, "s_add_u32 s81, s81, 4096")
        if 3 <= k <= 5: sc.at(19, flag_load("off", "s29", O_X, 13) + " @L%d" % (k - 3), 2)
        if 2 <= k <= 4:
            m = k - 2
            g = 11
            sc.at(g - 1, "v_mov_b32 v15, %d" % (m + 1))
            sc.at(g, "WAITVM S%d" % m)
            sc.at(g, "s_cmp_eq_u32 s%d, 1\ns_cbranch_scc0 OP_w%d\nOP_wb%d:" % (S_FAST, m, m), 2)
            stubs.append("OP_w%d:\nbuffer_wbl2 sc1\ns_waitcnt vmcnt(0)\ns_branch OP_wb%d" % (m, m))
            sc.at(g, "buffer_store_dword v15, v28, s[12:15], s34 offen offset:%d" % O_X)
            sc.at(g, "buffer_store_dword v15, v28, s[12:15], s35 offen offset:%d sc1" % O_X)
        for g in ((3, 9, 17, 25, 33, 37, 41, 45) if k == 0 else ()):
            if not wl: break
            if not wl[0][0].startswith("buffer_"): sc.at(g - 2, wl.pop(0)[0])
            sc.at(g, wl.pop(0)[0], 2)
        if k:
            fl = op_flush_items(1 - p, k - 1)
            sp_ = {1: [21, 29, 37, 45], 2: [25, 33, 41, 51], 3: [25, 33, 41, 51], 4: [29, 45, 55, 63]}.get(k, [21, 37, 51, 63])
            if k >= 5:
                for g in range(4, 64, 2 if k < KD else 4): sc.free[g] += 1
            for x, g in zip([x for x, c in fl if x.startswith("buffer_")], sp_): sc.at(g, x, 2, last=True)
            g = 1
            for x, c in fl:
                if x.startswith("buffer_"): sp_.pop(0)
                else: g = sc.at(sc.first_free(max(g, 3 if x.startswith("v_") else 2), 1, sp_[0]), x)
        if k == 0: sc.flow(i0.it + i2.it, 1, 62)
        if k == 1: sc.flow(xa[:-2], 46, 63)
        if k == 2: sc.at(1, xa[-2][0], 2)
        if k == 2: sc.at(59, xa[-1][0], 2)
        if W3E and k == 6:
            sc.at(49, "buffer_store_dword v14, v31, s[12:15], s%d offen offset:%d sc1" % (S_MYF, O_PO1), 2)
        print("oproj overflow", k, sc.overflow())
        sc.emit(a, vm)
        if "ost" in E: st.rt(a, "o%d" % (k + 1))
    a("s_nop 5")
    for x, c in op_flush_items(1, 6): a(vm.see(x))
    st.rt(a, "oproj_end")
    for x, c in xb: a(vm.see(x))
    r1_pre(a)
    pre = [c for c in range(KD - 4, 4) if c < 3][:NPRE_]
    for c in pre: g_tile(a, c)
    a("s_waitcnt vmcnt(%d) lgkmcnt(0)" % (8 * len(pre)))
    a("s_barrier")
    a("buffer_store_dword v14, v31, s[12:15], s%d offen offset:%d sc1" % (S_MYF, O_PO))
    st.rt(a, "po_pub")
    for x, c in xc: a(x)
    for c in range(KD - 4, 4):
        if c not in pre and c not in GLN: g_tile(a, c)
    a("s_waitcnt lgkmcnt(0)")
    r1_unpack_x(a)
    if W3E:
        a("s_cmp_eq_u32 s66, 3")
        a("s_cselect_b32 s3, 4, 0")
        a("s_add_u32 s28, s28, s3")

def r1_main(a, lds_off):
    vm = VM()
    a("s_add_u32 s34, s38, %d" % PO)
    a("s_add_u32 s35, s39, %d" % PO)
    for h in range(8):
        for n in range(2):
            a(vm.see("buffer_load_dwordx4 %s, v9, s[12:15], s%d offen sc1 @P%d" % (vr(128 + 8 * h + 4 * n), 34 + n, 2 * h + n)))
            if h < 7: a("s_add_u32 s%d, s%d, %d" % (34 + n, 34 + n, POH))
    a("s_add_u32 s38, s38, s%d" % S_B6)
    a("s_add_u32 s39, s39, s%d" % S_B6)
    a("s_add_u32 s38, s38, %d" % (4 * POH))
    a("s_add_u32 s39, s39, %d" % (4 * POH))
    a("s_cmp_eq_u32 s66, 3")
    a("s_cselect_b32 s39, %d, s39" % WSZ)
    for h in range(16):
        a(vm.see("WAITVM P%d" % h))
        for d in range(4):
            r = 128 + 4 * h + d
            a("v_lshlrev_b32 v%d, 16, v%d" % (48 + 2 * d, r))
            a("v_and_b32 v%d, 0xffff0000, v%d" % (49 + 2 * d, r))
        for d in range(4):
            o = R1_ACC + 8 * (h & 1) + 2 * d
            a("v_pk_add_f32 %s, %s, %s" % (vr(o, 2), vr(o, 2), vr(48 + 2 * d, 2)))
    a("s_cbranch_scc0 R1_nomerge")
    for d in range(4):
        o = R1_ACC + 2 * d
        a("v_pk_add_f32 %s, %s, %s" % (vr(o, 2), vr(o, 2), vr(o + 8, 2)))
        a("v_mov_b64 %s, 0" % vr(o + 8, 2))
    a.label("R1_nomerge")
    gt = Asm()
    for c in GLN: g_tile(gt, c)
    gq = [l.strip() for l in gt.lines if not l.strip().startswith("s_nop")]
    a0 = a; cnt = [0]
    for x in gq[:4]: a0(x)
    gq = gq[4:]
    def a(x):
        a0(x); cnt[0] += 1
        if gq and cnt[0] >= 6 and cnt[0] % 6 == (0 if gq[0].startswith("buffer") else 3): a0(gq.pop(0))
    vS, vQ, t = 56, 57, 58
    for d in range(8):
        a("v_cvt_pk_bf16_f32 v%d, v%d, v%d" % (R1_X + d, R1_ACC + 2 * d, R1_ACC + 2 * d + 1))
    a("buffer_store_dwordx4 %s, v9, s[12:15], s38 offen" % vr(R1_X))
    a("buffer_store_dwordx4 %s, v9, s[12:15], s39 offen" % vr(R1_X + 4))
    a("v_mov_b32 v%d, 0x3f803f80" % t)
    a("v_mov_b32 v%d, 0" % vS)
    a("v_mov_b32 v%d, 0" % vQ)
    for d in range(8):
        a("v_dot2_f32_bf16 v%d, v%d, v%d, v%d" % (vS, R1_X + d, t, vS))
        a("v_dot2_f32_bf16 v%d, v%d, v%d, v%d" % (vQ, R1_X + d, R1_X + d, vQ))
    a("v_and_b32 v10, 7, v2")
    a("v_lshlrev_b32 v10, 3, v10")
    a("s_lshl_b32 s3, s66, 6")
    a("v_add_u32 v10, %d, v10" % lds_off)
    a("v_add_u32 v11, s3, v10")
    a("v_add_f32_dpp v%d, v%d, v%d row_ror:8 row_mask:0xf bank_mask:0xf" % (vS, vS, vS))
    a("v_add_f32_dpp v%d, v%d, v%d row_ror:8 row_mask:0xf bank_mask:0xf" % (vQ, vQ, vQ))
    xlane_reduce2(a, "v_add_f32", vS, vQ, t)
    a("ds_write_b64 v11, %s" % vr(vS, 2))
    a("s_waitcnt lgkmcnt(0)")
    a("s_barrier")
    for w in range(4): a("ds_read_b64 %s, v10 offset:%d" % (vr(60 + 2 * w, 2), 64 * w))
    for d in range(8):
        a("v_lshlrev_b32 v%d, 16, v%d" % (R1_ACC + 2 * d, R1_X + d))
        a("v_and_b32 v%d, 0xffff0000, v%d" % (R1_ACC + 2 * d + 1, R1_X + d))
    a("s_add_u32 s38, s38, %d" % POH)
    a("s_cmp_eq_u32 s66, 3")
    a("s_cselect_b32 s36, 0, %d" % POH)
    a("s_add_u32 s39, s39, s36")
    a("s_waitcnt lgkmcnt(0)")
    for k, x in enumerate((vS, vQ)):
        a("v_add_f32 v%d, v%d, v%d" % (x, 60 + k, 62 + k))
        a("v_add_f32 v%d, v%d, v%d" % (64 + k, 64 + k, 66 + k))
        a("v_add_f32 v%d, v%d, v%d" % (x, x, 64 + k))
    a("v_mul_f32 v%d, 0x%x, v%d" % (vS, f2u(1.0 / 448), vS))
    a("v_mul_f32 v%d, 0x%x, v%d" % (vQ, f2u(1.0 / 448), vQ))
    a("v_fma_f32 v%d, -v%d, v%d, v%d" % (vQ, vS, vS, vQ))
    a("v_max_f32 v%d, 0, v%d" % (vQ, vQ))
    a("v_add_f32 v%d, 0x%x, v%d" % (vQ, f2u(1e-5), vQ))
    a("v_rsq_f32 v%d, v%d" % (vQ, vQ))
    a("s_nop 0")
    a("v_mul_f32 v%d, v%d, v%d" % (vS, vS, vQ))
    for d in range(8):
        a("v_fma_f32 v%d, v%d, v%d, -v%d" % (R1_ACC + 2 * d, R1_ACC + 2 * d, vQ, vS))
        a("v_fma_f32 v%d, v%d, v%d, -v%d" % (R1_ACC + 2 * d + 1, R1_ACC + 2 * d + 1, vQ, vS))
        a("v_cvt_pk_bf16_f32 v%d, v%d, v%d" % (72 + d, R1_ACC + 2 * d, R1_ACC + 2 * d + 1))
        if d == 3: a("buffer_store_dwordx4 %s, v9, s[12:15], s38 offen" % vr(72))
    a("buffer_store_dwordx4 %s, v9, s[12:15], s39 offen" % vr(76))
    assert not gq

def hn_reg(qb, s): return ar(8 * s + 4 * qb)
def p3_pre(a):
    a("s_lshl_b32 s25, s%d, 2" % S_R)
    a("s_add_u32 s25, s25, s66")
    a("s_mul_i32 s25, s25, %d" % (2 * B16S))
    a("s_add_u32 s25, s25, s%d" % S_B6)
    a("s_cmp_ge_u32 s%d, 7" % S_M)
    a("s_cselect_b32 s3, %d, 0" % (POH - 14 * 1024))
    a("s_add_u32 s96, s25, s3")
    a("s_lshl_b32 s3, s%d, 11" % S_M)
    a("s_add_u32 s96, s96, s3")
    a("s_add_u32 s97, s96, %d" % (2 * POH))
    a("s_add_u32 s25, s25, %d" % (5 * POH))
    for k in range(1, 4): a("s_add_u32 s%d, s25, %d" % (34 + k, 4096 * k))
    a("v_add_u32 v11, %d, v1" % B16S)
    a("s_mov_b32 s98, 0x%x" % f2u(-math.log2(math.e)))
def hn_load(s, qb):
    return "buffer_load_dwordx4 %s, v%d, s[12:15], s%d offen offset:%d sc1 @H%d" % (hn_reg(qb, s), 11 if qb else 1, (25, 35, 36, 37)[s >> 2], (s & 3) * 1024, s)

def swiglu_items(cb, qb, pk=False):
    G = [Ot(4 * cb + e, qb) for e in range(4)]; U = [Ot(8 + 4 * cb + e, qb) for e in range(4)]
    it = []
    if pk:
        two = lambda r: vr(r, 2)
        for e in range(4):
            for j in (0, 2): it.append(("v_pk_mul_f32 %s, %s, %s" % (two(U[e] + j), two(G[e] + j), two(U[e] + j)), 1))
        for e in range(4):
            for j in (0, 2): it.append(("v_pk_mul_f32 %s, %s, s[98:99] op_sel_hi:[1,0]" % (two(G[e] + j), two(G[e] + j)), 1))
        for e in range(4):
            for j in range(4): it.append(("v_exp_f32 v%d, v%d" % (G[e] + j, G[e] + j), 2))
        for e in range(4):
            for j in (0, 2): it.append(("v_pk_add_f32 %s, %s, 1.0 op_sel_hi:[1,0]" % (two(G[e] + j), two(G[e] + j)), 1))
        for e in range(4):
            for j in range(4): it.append(("v_rcp_f32 v%d, v%d" % (G[e] + j, G[e] + j), 2))
        for e in range(4):
            for j in (0, 2): it.append(("v_pk_mul_f32 %s, %s, %s" % (two(U[e] + j), two(G[e] + j), two(U[e] + j)), 1))
    else:
        el = [(G[e] + j, U[e] + j) for e in range(4) for j in range(4)]
        st_ = [lambda g, u: ("v_mul_f32 v%d, v%d, v%d" % (u, g, u), 1), lambda g, u: ("v_mul_f32 v%d, s98, v%d" % (g, g), 1),
               lambda g, u: ("v_exp_f32 v%d, v%d" % (g, g), 2), lambda g, u: ("v_add_f32 v%d, 1.0, v%d" % (g, g), 1),
               lambda g, u: ("v_rcp_f32 v%d, v%d" % (g, g), 2), lambda g, u: ("v_mul_f32 v%d, v%d, v%d" % (u, g, u), 1)]
        off = (0, 0, 1, 2, 3, 4)
        for k in range(16 + 4):
            for stg in (2, 0, 1, 4, 3, 5):
                n = k - off[stg]
                if 0 <= n < 16: it.append(st_[stg](*el[n]))
    for sp in range(2):
        for d in range(4):
            j = 2 * sp + (d >> 1); e = 2 * (d & 1)
            it.append(("v_cvt_pk_bf16_f32 v%d, v%d, v%d" % (G[sp] + d, U[e] + j, U[e + 1] + j), 1))
        it.append(("buffer_store_dwordx4 %s, v%d, s[12:15], s%d offen offset:%d @AS%d" % (vr(G[sp]), 11 if qb else 1, 96 + cb, sp * 1024, cb), 2))
    return it

P4_ACC = 192
def p4_act(t, rb):
    if t < 4: return ar(48 + 16 * t + 4 * rb)
    if t < 7: return ar(192 + 16 * (t - 4) + 4 * rb)
    if t < 11: return vr(128 + 16 * (t - 7) + 4 * rb)
    if t == 11: return ar(240 + 4 * rb)
    return ar(48 + 16 * (t - 12) + 4 * rb)
def p4_w(t, e):
    if t < 5: return ar(112 + 16 * t + 4 * e)
    if t < 11: return vr(32 + 16 * (t - 5) + 4 * e)
    return ar(16 * (t - 11) + 4 * e)
def p4_wbase(a):
    a("s_min_u32 s86, s%d, 13" % S_M)
    a("s_lshr_b32 s86, s86, 1")
    a("s_mul_i32 s86, s86, %d" % WBLK)
    a("s_mul_i32 s3, s66, %d" % (7 * 4096))
    a("s_add_u32 s86, s86, s3")
    a("s_add_u32 s86, s86, %d" % W2P)
def p4_wload_items(t):
    it = [("s_add_u32 s89, s86, %d" % ((t if t < 7 else t + 21) * 4096), 1)]
    return it + [("buffer_load_dwordx4 %s, v1, s[12:15], s89 offen offset:%d sc1 @W%d" % (p4_w(t, e), e * 1024, t), 2) for e in range(4)]

def g_tile(a, c):
    a("s_sub_u32 s3, s%d, %d" % (S_G3, 3 - c))
    a("v_readlane_b32 s%d, v%d, s3" % (S_KO, V_TABK))
    a("v_readlane_b32 s%d, v%d, s3" % (S_VO, V_TABV))
    a("s_add_u32 m0, s24, %d" % (((2 + c) & 3) * 16384))
    a("s_nop 3")
    for j in range(4): a("buffer_load_dwordx4 v%d, s[12:15], s%d offen offset:%d lds" % (V_DMA, S_KO, j * 1024))
    a("s_add_u32 m0, s24, %d" % (((2 + c) & 3) * 16384 + 65536))
    a("s_nop 0")
    for j in range(4): a("buffer_load_dwordx4 v%d, s[12:15], s%d offen offset:%d lds" % (V_DMA, S_VO, j * 1024))

def gateup(a, st, vm, stubs, hloads):
    sw = swiglu_items(0, 0) + swiglu_items(0, 1)
    lq = [hn_load(s_, qb) for s_ in range(5, 14) for qb in range(2)] + [x for t in range(NWO, 11) if t not in WR1 for x, c_ in p4_wload_items(t)] + hloads
    lq += [None] + [x for t in (11, 12, 13) for x, c_ in p4_wload_items(t)]
    pos = 0
    for c in range(7):
        mf = []
        for n in range(32):
            q = 4 * c + (n >> 3); cb, s = divmod(q, 14)
            for qb in range(2):
                d = vr(Ot(8 * ((n >> 2) & 1) + 4 * cb + (n & 3), qb))
                mf.append(MF(d, Fr(n), hn_reg(qb, s), "0" if s == 0 else d))
        sc = Sched(mf)
        ring_fixed(sc, c & 1, vm="WAITVM T%d" % (c + 1) if c < 6 else "WAITVM AS0", dma=(1 <= c < 4), nxt=(c < 6), tag=" @T%d" % (c + 3), paired=(c >= 4), kpos=(5, 13, 21, 29), vpos=(49, 53, 57, 61))
        for k in range(4):
            q = 4 * c + k
            if q < 14: sc.at(16 * k - 1, "WAITVM H%d" % q, last=True)
        if c == 6:
            sc.at(48, "s_cmp_eq_u32 s%d, 1\ns_cbranch_scc0 GU_wb\nGU_wbback:" % S_FAST, 2)
            stubs.append("GU_wb:\nbuffer_wbl2 sc1\ns_waitcnt vmcnt(0)\ns_branch GU_wbback")
            for k in range(2): sc.at(49 + k, sig(O_A0)[k], 2)
        slots = {0: range(1, 62, 4), 1: (1, 9, 17, 25, 33, 37, 41, 45), 2: (1, 9, 17, 25, 33, 37, 41, 45), 3: (1, 9, 17, 25, 33, 37, 41, 45),
                 4: range(1, 62, 4), 5: range(1, 62, 4), 6: (53, 57, 61, 63)}[c]
        for g in slots:
            if not lq or (lq[0] is None and c < 5): break
            if lq[0] is None: lq.pop(0)
            if c == 5 and len(lq) <= 5: break
            if not lq[0].startswith("buffer_"): sc.at(max(g - 1, 0) if c < 4 else g + 0, lq.pop(0))
            sc.at(g, lq.pop(0), 2)
        if c >= 3:
            g = 36 if c == 3 else 0
            lim = 63 if c < 6 else 44
            if c >= 4:
                for gg in range(7, lim, 8): sc.free[gg] += 1
                for gg in range(0, lim, 4): sc.free[gg] += 2 if (c < 6 or gg % 8 == 4) else 0
            while pos < len(sw):
                x, cost = sw[pos]
                g2 = sc.first_free(g, cost, lim)
                if g2 >= lim and c < 6: break
                sc.at(g2, x, cost); g = g2; pos += 1
        print("gateup overflow", c, sc.overflow(), pos, len(sw))
        sc.emit(a, vm)
        if "gst" in E and c < 6: st.rt(a, "g%d" % (c + 1))
    assert not lq, lq

def _unused(): pass
def p4_hloads(a):
    a("s_and_b32 s3, s%d, 1" % S_M)
    a("s_lshl_b32 s3, s3, 2")
    a("s_lshl_b32 s87, s%d, 3" % S_R)
    a("s_add_u32 s87, s87, s3")
    a("s_add_u32 s88, s87, s66")
    a("s_mul_i32 s39, s88, %d" % B16S)
    a("s_lshr_b32 s3, s%d, 1" % S_M)
    a("s_lshl_b32 s3, s3, 11")
    a("s_add_u32 s39, s39, s3")
    a("s_add_u32 s39, s39, s%d" % S_B6)
    a("s_add_u32 s39, s39, %d" % (4 * POH))
    a("v_lshrrev_b32 v9, 5, v2")
    a("v_lshlrev_b32 v9, 10, v9")
    a("v_bfe_u32 v10, v2, 4, 1")
    a("v_lshl_add_u32 v9, v10, 3, v9")
    a("v_and_b32 v10, 15, v2")
    a("v_lshl_add_u32 v9, v10, 4, v9")
    return ["buffer_load_dwordx2 %s, v9, s[12:15], s39 offen offset:%d sc1" % (vr(16 + 2 * gp, 2), gp * 256) for gp in range(4)]
def p4_pre(a):
    a("s_mul_i32 s90, s87, %d" % B16S)
    a("s_lshr_b32 s3, s66, 1")
    a("s_mul_i32 s3, s3, %d" % POH)
    a("s_add_u32 s90, s90, s3")
    a("s_and_b32 s3, s66, 1")
    a("s_mul_i32 s3, s3, 7168")
    a("s_add_u32 s90, s90, s3")
    a("s_add_u32 s90, s90, s%d" % S_B6)
    for rb in range(4):
        a("s_add_u32 s3, s66, %d" % rb)
        a("s_and_b32 s3, s3, 3")
        if rb: a("s_mul_i32 s%d, s3, 12288" % (69 + rb))
        a("s_mul_i32 s3, s3, %d" % B16S)
        a("v_add_u32 v%d, s3, v1" % (24 + rb))
    a("s_mov_b32 s8, s%d\ns_mov_b32 s9, s%d\ns_mov_b32 s10, %d\ns_mov_b32 s11, 0x00020000" % (S_POUT, S_POUT + 1, 2048 * 896))
    a("s_mul_i32 s38, s88, %d" % (16 * 896))
    a("s_lshr_b32 s3, s%d, 1" % S_M)
    a("s_lshl_b32 s3, s3, 7")
    a("s_add_u32 s38, s38, s3")
    a("v_and_b32 v10, 15, v2")
    a("v_mul_u32_u24 v10, 896, v10")
    a("v_lshrrev_b32 v15, 4, v2")
    a("v_lshl_add_u32 v10, v15, 5, v10")
    a("s_mul_i32 s3, s66, 12288")
    a("v_add_u32 v15, s3, v1")
def act_load_items(t):
    k = t % 7
    it = [("s_add_u32 s91, s90, %d" % ((k & 4) * 1024 + (2 * POH if t >= 7 else 0)), 1)] if k in (0, 4) else []
    return it + [("buffer_load_dwordx4 %s, v%d, s[12:15], s91 offen offset:%d sc1 @A%d" % (p4_act(t, rb), 24 + rb, (k & 3) * 1024, t), 2) for rb in range(4)]
def p4_step(a, vm, t, fill=(), per=4):
    order = [(e, rb) for e in range(4) for rb in range(4)] if t < 13 else [(e, rb) for rb in (1, 2, 3, 0) for e in range(4)]
    fill = list(fill)
    a(vm.see("WAITVM A%d" % t))
    for n, (e, rb) in enumerate(order):
        d = vr(P4_ACC + 4 * (4 * rb + e))
        a(MF(d, p4_w(t, e), p4_act(t, rb), "0" if t == 0 else d))
        if n % per == 0 and fill:
            a(vm.see(fill.pop(0)))
        elif n % per == per - 1 and fill and not fill[0].startswith("buffer_load_dwordx4"): a(vm.see(fill.pop(0)))
    for x in fill: a(vm.see(x))
def check_flag(a, stubs, off, name):
    a("v_cmp_ne_u32 vcc, 1, v13")
    a("s_cmp_eq_u32 s%d, 1" % S_FAST)
    a("s_cbranch_scc0 %s_slow" % name)
    a("s_cbranch_vccnz %s_slow" % name)
    a.label(name + "_back")
    sp = Asm(); sp.uid = 7000 + off
    sp.label(name + "_slow"); acquire(sp, 14, off, name); sp("s_branch %s_back" % name)
    stubs.append(sp.text())
def p4_main(a, st, vm, stubs):
    grp_voff(a, 12, 14)
    sw = swiglu_items(1, 0, True)
    for n, (x, c) in enumerate(sw):
        if n == 24: a(vm.see(flag_load("v12", "s%d" % S_GRPF, O_A0, 13) + " @F0"))
        a(vm.see(x))
    a(vm.see("WAITVM F0"))
    check_flag(a, stubs, O_A0, "P4a0")
    st.rt(a, "a0_ready")
    LEAD = int(os.environ.get("LEAD", 4))
    ld = [x for t in range(LEAD) for x, c in act_load_items(t)]
    N1_ = int(os.environ.get("P4A", 6)); N2_ = len(ld) - N1_
    k = 0
    for n, (x, c) in enumerate(swiglu_items(1, 1, True)):
        if n % 10 == 0 and k < N1_: a(vm.see(ld.pop(0))); k += 1
        a(vm.see(x))
    for k in range(N2_): a(vm.see(ld.pop(0)))
    a("s_cmp_eq_u32 s%d, 1" % S_FAST)
    a(vm.see("WAITVM AS1"))
    a("s_barrier")
    a("s_cbranch_scc0 P4_wb")
    a.label("P4_wbback")
    stubs.append("P4_wb:\nbuffer_wbl2 sc1\ns_waitcnt vmcnt(0)\ns_branch P4_wbback")
    for x in sig(O_A): a(vm.see(x))
    st.rt(a, "act_pub")
    hu = []
    for j in range(4):
        for e in range(4):
            src = 16 + 2 * j + (e >> 1)
            hu.append(("v_and_b32 v%d, 0xffff0000, v%d" if e & 1 else "v_lshlrev_b32 v%d, 16, v%d") % (32 + 4 * e + j, src))
    for t in range(12):
        f = [x for x, c in act_load_items(t + LEAD)] if t + LEAD < 14 else []
        if f and not f[0].startswith("buffer_"): a(f.pop(0))
        if t == 5 - LEAD: f.insert(1, flag_load("v12", "s%d" % S_GRPF, O_A, 13) + " @F1")
        if t == 7 - LEAD:
            a(vm.see("WAITVM F1"))
            check_flag(a, stubs, O_A, "P4a1")
            st.rt(a, "act_ready")
        if t == 11: p4_step(a, vm, t, ["v_add_u32 v%d, s%d, v1" % (24 + rb, 69 + rb) for rb in range(1, 4)] + hu, per=1)
        else: p4_step(a, vm, t, f)
    a(vm.see("WAITVM A13"))
    wr = []
    n = 0
    for rb in (1, 2, 3, 0):
        for e in range(4):
            for t in (12, 13):
                d = vr(P4_ACC + 4 * (4 * rb + e))
                a(MF(d, p4_w(t, e), p4_act(t, rb), d))
                n += 1
                if wr and wr[0][0] + 7 <= n and n % 2 == 0: a(wr.pop(0)[1])
            if rb: wr.append((n, "ds_write_b128 v%d, %s offset:%d" % (24 + rb, vr(P4_ACC + 4 * (4 * rb + e)), (rb - 1) * 4096 + e * 1024)))
    st.rt(a, "p4_mfma")
    for n_, x in wr: a(x)
    a("s_nop 7")
    for k in range(0, 16, 2): a("v_pk_add_f32 %s, %s, %s" % (vr(32 + k, 2), vr(32 + k, 2), vr(P4_ACC + k, 2)))
    a("s_waitcnt lgkmcnt(0)")
    a("s_barrier")
    for w in range(3):
        for e in range(4):
            a("ds_read_b128 %s, v15 offset:%d" % (vr(48 + 16 * w + 4 * e), w * 4096 + e * 1024))
    for w in range(3):
        a("s_waitcnt lgkmcnt(%d)" % (8 - 4 * w))
        for k in range(0, 16, 2): a("v_pk_add_f32 %s, %s, %s" % (vr(32 + k, 2), vr(32 + k, 2), vr(48 + 16 * w + k, 2)))
    for j in range(4):
        a("v_cvt_pk_bf16_f32 v%d, v%d, v%d" % (112 + 2 * j, 32 + j, 36 + j))
        a("v_cvt_pk_bf16_f32 v%d, v%d, v%d" % (113 + 2 * j, 40 + j, 44 + j))
        if j == 1: a("buffer_store_dwordx4 %s, v10, s[8:11], s38 offen" % vr(112))
    a("buffer_store_dwordx4 %s, v10, s[8:11], s38 offen offset:16" % vr(116))

def tail(a, st, stubs):
    oproj(a, st, stubs)
    poll(a, "v12", "s28", O_PO, 13, "fpo")
    st.rt(a, "po_ready")
    r1_main(a, 131072)
    st.rt(a, "r1_done")
    publish(a, O_H)
    a("s_cmp_ge_u32 s%d, 14" % S_M)
    a("s_cbranch_scc1 M_fin")
    first_reads(a, V_RDK, 0)
    p3_pre(a)
    hl = p4_hloads(a)
    p4_pre(a)
    acquire(a, 16, O_H, "fh")
    st.rt(a, "h_ready")
    vm = VM()
    for s_ in range(5):
        for qb in range(2): a(vm.see(hn_load(s_, qb)))
    gateup(a, st, vm, stubs, hl)
    st.rt(a, "p3_end")
    a("s_nop 7")
    p4_main(a, st, vm, stubs)
```
